```python
import torch

def _softmax(x, axis=-1):
    return torch.softmax(x, dim=axis)
def _gelu(x):
    return torch.nn.functional.gelu(x, approximate="tanh")
def _silu(x):
    return torch.nn.functional.silu(x)
def _sigmoid(x):
    return torch.sigmoid(x)
def _layernorm(x, axis=-1, eps=1e-5):
    m = x.mean(dim=axis, keepdim=True)
    v = x.var(dim=axis, keepdim=True, unbiased=False)
    return (x - m) / torch.sqrt(v + eps)
def _scatter_add(tgt, idx, src, axis=0):
    return tgt.clone().index_add_(axis, idx, src)
def _segment_sum(src, seg, n):
    out = torch.zeros((n,) + src.shape[1:], dtype=src.dtype)
    return out.index_add_(0, seg, src)
def _pad(x, pw):
    flat = tuple(v for pair in reversed(pw) for v in pair)
    return torch.nn.functional.pad(x, flat)

kernel_name = 'interleave_layers__linear_kernel_hedgehog__geglu_ffn__prompt'

def setup_inputs():

    _w = (lambda a: (lambda t: t.to(torch.bfloat16) if t.is_floating_point() else t)(torch.as_tensor(a)))
    def _A_setup():
        B, S, D, H = 1, 2048, 1024, 32
        Dh = D // H
        return {
            "x": _w((lambda *s: torch.randn(*s, dtype=torch.bfloat16) * 0.05)(B, S, D)),
            "wqkv": _w((lambda *s: torch.randn(*s, dtype=torch.bfloat16) * 0.2)(D, 3 * D)),
            "w_phi": _w((lambda *s: torch.randn(*s, dtype=torch.bfloat16) * 0.2)(H, Dh, Dh) * (Dh ** -0.5)),
            "wo": _w((lambda *s: torch.randn(*s, dtype=torch.bfloat16) * 0.05)(D, D)),
        }
    _A_in = _A_setup()

    def _B_setup():
        B, S, D, F = 1, 2048, 1024, 3584
        return {
            "x": _w((lambda *s: torch.randn(*s, dtype=torch.bfloat16) * 0.05)(B, S, D)),
            "w_gate": _w((lambda *s: torch.randn(*s, dtype=torch.bfloat16) * 0.05)(D, F)),
            "w_up": _w((lambda *s: torch.randn(*s, dtype=torch.bfloat16) * 0.05)(D, F)),
            "w_down": _w((lambda *s: torch.randn(*s, dtype=torch.bfloat16) * 0.05)(F, D)),
        }
    _B_in = _B_setup()

    return {
        "A_x": _A_in["x"],
        "A_wqkv": _A_in["wqkv"],
        "A_w_phi": _A_in["w_phi"],
        "A_wo": _A_in["wo"],
        "B_x": _B_in["x"],
        "B_w_gate": _B_in["w_gate"],
        "B_w_up": _B_in["w_up"],
        "B_w_down": _B_in["w_down"],
    }

def reference(A_x, A_wqkv, A_w_phi, A_wo, B_x, B_w_gate, B_w_up, B_w_down):
    def _A_ref(x, wqkv, w_phi, wo):
        B, S, D = x.shape
        H = 32; Dh = D // H
        qkv = (lambda x, *d: x.permute(*d))((x @ wqkv).reshape(B, S, 3, H, Dh), 2, 0, 3, 1, 4)
        q, k, v = qkv[0], qkv[1], qkv[2]
        pq = torch.einsum("bhsd,hdf->bhsf", q, w_phi)
        pk = torch.einsum("bhsd,hdf->bhsf", k, w_phi)
        phi_q = torch.concatenate([_softmax(pq, axis=-1), _softmax(-pq, axis=-1)], axis=-1)
        phi_k = torch.concatenate([_softmax(pk, axis=-1), _softmax(-pk, axis=-1)], axis=-1)
        kv = torch.einsum("bhsf,bhsd->bhfd", phi_k, v)
        z  = torch.einsum("bhsf->bhf", phi_k)
        num = torch.einsum("bhqf,bhfd->bhqd", phi_q, kv)
        den = torch.einsum("bhqf,bhf->bhq", phi_q, z)[..., None] + 1e-6
        o = num / den
        return (lambda x, *d: x.permute(*d))(o, 0, 2, 1, 3).reshape(B, S, D) @ wo

    def _B_ref(x, w_gate, w_up, w_down):
        return (_gelu(x @ w_gate) * (x @ w_up)) @ w_down

    x = A_x
    x = x + _A_ref(_layernorm(x, axis=-1), A_wqkv, A_w_phi, A_wo)
    x = x + _B_ref(_layernorm(x, axis=-1), B_w_gate, B_w_up, B_w_down)
    x = x + _A_ref(_layernorm(x, axis=-1), A_wqkv, A_w_phi, A_wo)
    x = x + _B_ref(_layernorm(x, axis=-1), B_w_gate, B_w_up, B_w_down)
    return x
```

```python
import re

TRANS = ('v_exp_f32', 'v_log_f32', 'v_rcp_f32', 'v_rsq_f32', 'v_sqrt_f32', 'v_sin_f32', 'v_cos_f32')

def parse_regs(tok):
    tok = tok.strip()
    tok = re.sub(r'^(-|neg\()', '', tok)
    tok = tok.replace('abs(', '').replace('|', '').rstrip(')')
    m = re.fullmatch(r'([vas])(\d+)', tok)
    if m: return [(m.group(1), int(m.group(2)))]
    m = re.fullmatch(r'([vas])\[(\d+):(\d+)\]', tok)
    if m: return [(m.group(1), i) for i in range(int(m.group(2)), int(m.group(3)) + 1)]
    if tok == 'vcc': return [('s', 106), ('s', 107)]
    if tok == 'vcc_lo': return [('s', 106)]
    if tok == 'vcc_hi': return [('s', 107)]
    if tok == 'exec': return [('x', 0)]
    if tok == 'm0': return [('m', 0)]
    return []

class Ins:
    __slots__ = ('text', 'op', 'ops', 'dst', 'src', 'kind', 'passes', 'srcC', 'srcAB')
    def __init__(self, text):
        self.text = text
        t = text.split(';')[0].strip()
        self.op = ''
        self.dst = []; self.src = []; self.kind = 'other'; self.passes = 0; self.srcC = []; self.srcAB = []
        if not t or t.endswith(':') or t.startswith('.'):
            self.kind = 'label' if t.endswith(':') else 'none'
            return
        parts = t.split(None, 1)
        op = parts[0]; self.op = op
        rest = parts[1] if len(parts) > 1 else ''
        ops = []; cur = ''; d = 0
        for ch in rest:
            if ch in '[(': d += 1
            if ch in '])': d -= 1
            if ch == ',' and d == 0: ops.append(cur.strip()); cur = ''
            else: cur += ch
        if cur.strip(): ops.append(cur.strip())
        mods = ''
        if ops:
            lp = ops[-1].split(None, 1)
            ops[-1] = lp[0]
            mods = lp[1] if len(lp) > 1 else ''
        self.ops = ops
        R = [parse_regs(o) for o in ops]
        if op.startswith('v_mfma'):
            self.kind = 'mfma'
            self.passes = 8 if '32x32x16' in op else 4
            self.dst = R[0]; self.srcAB = R[1] + R[2]; self.srcC = R[3]; self.src = self.srcAB + self.srcC
        elif op.startswith('v_'):
            self.kind = 'trans' if op.replace('_e32', '').replace('_e64', '') in TRANS else 'valu'
            if op.startswith('v_cmp'):
                self.dst = R[0]; self.src = sum(R[1:], [])
            elif 'permlane' in op and 'swap' in op:
                self.dst = R[0] + R[1]; self.src = R[0] + R[1]; self.kind = 'permlane'
            elif op.startswith('v_readfirstlane') or op.startswith('v_readlane'):
                self.dst = R[0]; self.src = sum(R[1:], []); self.kind = 'readlane'
            elif op.startswith('v_add_co') or op.startswith('v_sub_co') or op.startswith('v_addc_co'):
                self.dst = R[0] + R[1]; self.src = sum(R[2:], [])
            else:
                self.dst = R[0]; self.src = sum(R[1:], [])
                if op.startswith('v_fmac') or op.startswith('v_pk_fmac') or op.startswith('v_dot2c'):
                    self.src = self.src + R[0]
                if op.startswith('v_cndmask') and len(ops) == 3:
                    self.src = self.src + parse_regs('vcc')
            if 'dpp' in op or 'row_' in mods or 'quad_perm' in mods:
                self.kind = 'dpp'
                self.src = self.src + self.dst
        elif op.startswith('ds_read') or op.startswith('ds_bpermute') or op.startswith('ds_permute') or op.startswith('ds_swizzle'):
            self.kind = 'ds'; self.dst = R[0]; self.src = sum(R[1:], [])
        elif op.startswith('ds_'):
            self.kind = 'ds'; self.src = sum(R, [])
        elif op.startswith('buffer_load') or op.startswith('global_load'):
            self.kind = 'vmem'
            if ' lds' in (' ' + mods) or op.startswith('global_load_lds'):
                self.src = sum(R, []) + [('m', 0)]; self.kind = 'dma'
            else:
                self.dst = R[0]; self.src = sum(R[1:], [])
        elif op.startswith('buffer_store') or op.startswith('global_store') or op.startswith('buffer_atomic') or op.startswith('global_atomic'):
            self.kind = 'store'; self.src = sum(R, [])
            if 'sc0' in mods and 'atomic' in op:
                self.dst = R[0]
        elif op.startswith('buffer_') :
            self.kind = 'vmem'
        elif op == 's_nop':
            self.kind = 'nop'
        elif op.startswith('s_'):
            self.kind = 'salu'
            if op.startswith('s_cmp') or op.startswith('s_cbranch') or op in ('s_branch', 's_barrier', 's_waitcnt', 's_endpgm', 's_setprio', 's_sleep', 's_bitcmp1_b32', 's_bitcmp0_b32'):
                self.src = sum(R, [])
            else:
                self.dst = R[0] if R else []; self.src = sum(R[1:], [])
    def states(self):
        if self.kind in ('label', 'none'): return 0
        if self.kind == 'nop': return int(self.ops[0], 0) + 1
        return 1

VALUK = ('valu', 'trans', 'permlane', 'readlane', 'dpp')

def need(p, c):
    n = 0
    pd = set(p.dst); cs = set(c.src); cd = set(c.dst)
    vec = lambda s: {r for r in s if r[0] in 'va'}
    sc = lambda s: {r for r in s if r[0] == 's'}
    if p.kind in VALUK:
        if vec(pd) & vec(cs):
            if c.kind == 'mfma': n = max(n, 2)
            if c.kind == 'permlane': n = max(n, 2)
            if c.kind == 'dpp': n = max(n, 2)
            if c.kind == 'readlane': n = max(n, 1)
            if p.kind == 'trans' and c.kind in VALUK + ('mfma',) and c.kind != 'trans': n = max(n, 1)
            if p.kind == 'trans' and c.kind in ('store', 'ds', 'vmem', 'dma'): n = max(n, 1)
        if sc(pd) & sc(cs):
            if c.kind in ('vmem', 'store', 'dma'): n = max(n, 5)
            if c.kind == 'readlane': n = max(n, 4)
            elif c.kind in VALUK: n = max(n, 2)
            if c.kind == 'salu': n = max(n, 1)
        if ('x', 0) in pd and c.kind in VALUK + ('mfma',): n = max(n, 5)
    if p.kind == 'salu' and ('m', 0) in pd and c.kind == 'dma': n = max(n, 1)
    if p.kind == 'store' and ('x4' in p.op or 'x3' in p.op):
        data = set(parse_regs(p.ops[0])) if p.op.startswith('buffer') else set(parse_regs(p.ops[1]))
        if data & vec(cd): n = max(n, 2)
    if p.kind == 'mfma':
        ps = p.passes
        if c.kind == 'mfma':
            if vec(pd) & set(c.srcAB): n = max(n, {4: 8, 8: 12}[ps])
            if vec(pd) & set(c.srcC):
                if not (p.dst == c.srcC and p.passes == c.passes): n = max(n, {4: 6, 8: 10}[ps])
            elif vec(pd) & vec(cd):
                n = max(n, {4: 8, 8: 12}[ps])
        else:
            if vec(pd) & (vec(cs) | vec(cd)): n = max(n, {4: 8, 8: 12}[ps])
            if c.kind in VALUK and set(p.srcC) & vec(cd): n = max(n, {4: 3, 8: 7}[ps])
    return n

def hazard_pass(lines, window=24):
    out = []
    for t in lines:
        ins = Ins(t)
        if ins.kind not in ('label', 'none', 'nop'):
            dist = 0; req = 0
            for p in reversed(out):
                if dist >= window: break
                if p.kind not in ('label', 'none', 'nop'):
                    r = need(p, ins)
                    if r > dist: req = max(req, r - dist)
                dist += p.states()
            while req > 0:
                k = min(req, 16)
                out.append(Ins(f's_nop {k-1}'))
                req -= k
        out.append(ins)
    return [i.text for i in out]

class Asm:
    def __init__(self):
        self.L = []
    def __call__(self, s):
        for l in s.split('\n'):
            l = l.strip()
            if l: self.L.append(l)
    def ext(self, lst):
        for s in lst: self(s)
    def label(self, n): self.L.append(n + ':')

def kernel_text(name, body_lines, vgpr, agpr, sgpr=96):
    acc = (vgpr + 3) // 4 * 4
    nfv = acc + agpr if agpr else vgpr
    code = [f'.globl {name}', '.p2align 8', f'.type {name},@function', f'{name}:'] + body_lines
    desc = ['.p2align 6', f'.amdhsa_kernel {name}',
            f'  .amdhsa_next_free_vgpr {nfv}', f'  .amdhsa_next_free_sgpr {sgpr}', f'  .amdhsa_accum_offset {acc}',
            '  .amdhsa_group_segment_fixed_size 0', '  .amdhsa_kernarg_size 88', '  .amdhsa_user_sgpr_count 2',
            '  .amdhsa_user_sgpr_kernarg_segment_ptr 1', '  .amdhsa_system_sgpr_workgroup_id_x 1',
            '  .amdhsa_float_denorm_mode_32 3',
            '.end_amdhsa_kernel']
    return code, desc

def interleave(mfmas, fillers, start=0, per_gap=2, end=None):
    out = []
    n = len(mfmas)
    end = n if end is None else end
    fi = 0
    for i, m in enumerate(mfmas):
        out.append(m)
        if i >= start:
            k = 0
            while fi < len(fillers) and k < per_gap:
                out.extend(fillers[fi]); fi += 1; k += 1
    while fi < len(fillers):
        out.extend(fillers[fi]); fi += 1
    return out
```

```python
import sys
HEADER = open('interleave_layers__linear_kernel_hedgehog__geglu_ffn__prompt.s.ref').read().split('; Override launch')[0] if __name__ != 'x' else ''
def assemble_file(launches, kernels):
    L = []
    for n, g, b, lds in launches:
        L.append(f'; @launch kernel={n} grid=({g},1,1) block=({b},1,1) lds={lds}')
    L.append('.amdgcn_target "amdgcn-amd-amdhsa--gfx950"')
    L.append('.text')
    for c, d in kernels: L += c
    L.append('.section .rodata,"a"')
    for c, d in kernels: L += d
    return HEADER + '\n'.join(L) + '\n'
```

```python
MB = 1 << 20
WS_X1 = 0
WS_X2 = 4 * MB
WS_O = 8 * MB
WS_H = 12 * MB
WS_ST0 = 28 * MB
WS_ST1 = 28 * MB + 256 * 1024
WS_CS = 29 * MB
CS_QKV = WS_CS
CS_G = WS_CS + 3072 * 4
CS_U = CS_G + 3584 * 4
WS_KVP = 30 * MB
WS_PHIQ = 36 * MB
WS_SIZE = 268435456
S, D, F = 2048, 1024, 3584

class DmaQ:
    def __init__(self): self.q = []
    def issue(self, tag): self.q.append(tag)
    def wait_for(self, tags):
        last = -1
        for i, t in enumerate(self.q):
            if t in tags: last = i
        n = len(self.q) - 1 - last
        if last >= 0: self.q = self.q[last + 1:]
        return min(n, 63)

def loopify(bodies, label, cnt_sreg):
    out = []
    i = 0; k = 0
    while i < len(bodies):
        j = i
        while j + 1 < len(bodies) and bodies[j + 1] == bodies[i]: j += 1
        n = j - i + 1
        if n >= 2:
            out.append(f's_mov_b32 s{cnt_sreg}, {n}')
            out.append(f'{label}_{k}:')
            out.extend(bodies[i])
            out.append(f's_sub_u32 s{cnt_sreg}, s{cnt_sreg}, 1')
            out.append(f's_cmp_lg_u32 s{cnt_sreg}, 0')
            out.append(f's_cbranch_scc1 {label}_{k}')
            k += 1
        else:
            out.extend(bodies[i])
        i = j + 1
    return out

def stats_code(e, srd, voff_tok, soff, tmp, out_negm, out_sd, hi_mask_vcc=True):
    pass

import struct
f2u = lambda f: struct.unpack('<I', struct.pack('<f', f))[0]

class Planner:
    def __init__(self, pend): self.pend = list(pend)
    def take(self, step, maxg):
        out = []
        while len(out) < maxg:
            cand = None; seen = set()
            for g in self.pend:
                cls = g[1][0]
                if cls in seen: continue
                seen.add(cls)
                if g[3] <= step and (cand is None or g[2] < cand[2]): cand = g
            if cand is None: break
            self.pend.remove(cand); out.append(cand)
        return out

def build_step(ms, pre, bar, rd, dm, extra, nb=3, rper=1, dstart=None, dshift=0, dmax_shift=0, head=True):
    gaps = [[] for _ in ms]
    for i, x in enumerate(pre): gaps[min(i // 4, nb - 1)].append(x)
    gaps[nb - 1] += bar
    for i, g in enumerate(rd): gaps[min(nb + i // rper, len(ms) - 1)].extend(g)
    if dm:
        ds = nb + 1 if dstart is None else dstart
        span = len(ms) - 1 - ds - dmax_shift
        for i, ins in enumerate(dm):
            gaps[ds + dshift + (i * span) // len(dm)].extend(ins)
    if extra:
        cap = 2
        while sum(max(0, cap - len(g)) for g in gaps[nb:]) < len(extra): cap += 1
        ex = list(extra)
        for g in gaps[nb:]:
            while ex and len(g) < cap: g.append(ex.pop(0))
    step = ['s_waitcnt lgkmcnt(0)'] if head else []
    for m, g in zip(ms, gaps): step.append(m); step.extend(g)
    return step

def stamp_out(e, nw_shift=2):
    e('s_waitcnt lgkmcnt(0)')
    e(f's_add_u32 s24, s16, {60*MB}')
    e('s_addc_u32 s25, s17, 0')
    e('s_mov_b32 s26, 1048576')
    for i in range(10): e(f'v_mov_b32 v{4+i}, s{60+2*i}')
    e(f's_lshl_b32 s18, s2, {nw_shift}')
    e('s_add_u32 s18, s18, s20')
    e('s_lshl_b32 s18, s18, 6')
    e('v_mov_b32 v1, s18')
    e('s_mov_b64 exec, 1')
    e('buffer_store_dwordx4 v[4:7], v1, s[24:27], 0 offen')
    e('buffer_store_dwordx4 v[8:11], v1, s[24:27], 0 offen offset:16')
    e('buffer_store_dwordx4 v[12:15], v1, s[24:27], 0 offen offset:32')

def stats_finish(rr, n=4):
    L = []
    def each(fmt):
        for tb in range(n):
            r = rr(tb)
            L.append(eval("f'''" + fmt + "'''", {'r': r}))
    each('v_pk_add_f32 v[{r}:{r+1}], v[{r}:{r+1}], v[{r+2}:{r+3}]')
    each('v_pk_add_f32 v[{r+4}:{r+5}], v[{r+4}:{r+5}], v[{r+6}:{r+7}]')
    each('v_pk_add_f32 v[{r}:{r+1}], v[{r}:{r+1}], v[{r+4}:{r+5}]')
    for sw in ('v_permlane32_swap_b32', 'v_permlane16_swap_b32'):
        each('v_mov_b32 v{r+2}, v{r}')
        each('v_mov_b32 v{r+3}, v{r+1}')
        each(sw + ' v{r}, v{r+2}')
        each(sw + ' v{r+1}, v{r+3}')
        each('v_pk_add_f32 v[{r}:{r+1}], v[{r}:{r+1}], v[{r+2}:{r+3}]')
    each('v_mul_f32 v{r}, s46, v{r}')
    each('v_mul_f32 v{r+1}, s46, v{r+1}')
    each('v_fma_f32 v{r+1}, -v{r}, v{r}, v{r+1}')
    each('v_max_f32 v{r+1}, 0, v{r+1}')
    each('v_cvt_pk_bf16_f32 v{r+2}, v{r+1}, v{r+1}')
    each('v_and_b32 v{r+2}, 0xffff0000, v{r+2}')
    each('v_add_f32 v{r+2}, s47, v{r+2}')
    each('v_cvt_pk_bf16_f32 v{r+2}, v{r+2}, v{r+2}')
    each('v_and_b32 v{r+2}, 0xffff0000, v{r+2}')
    each('v_sqrt_f32 v{r+2}, v{r+2}')
    each('v_cvt_pk_bf16_f32 v{r+4}, -v{r}, -v{r}')
    each('v_cvt_pk_bf16_f32 v{r+2}, v{r+2}, v{r+2}')
    each('v_and_b32 v{r+2}, 0xffff0000, v{r+2}')
    each('v_rcp_f32 v{r+3}, v{r+2}')
    each('v_cndmask_b32 v{r+4}, 0, v{r+4}, vcc')
    return L

KVP_HEAD = 8448
WS_EQ = WS_PHIQ
LOG2E = 1.4426950408889634
```

```python
from asmlib import *
from common import *
LDS_BYTES = 4096
NCS = 160
NST = 128
def gen(name, opts=None):
    e = Asm()
    e(f'''
    s_cmp_ge_u32 s2, {NCS + NST}
    s_cbranch_scc1 {name}_end
    s_load_dwordx4 s[4:7], s[0:1], 0        ; x s[4:5], wqkv s[6:7]
    s_load_dwordx4 s[28:31], s[0:1], 40
    s_load_dwordx2 s[16:17], s[0:1], 80
    v_lshrrev_b32 v1, 6, v0
    v_and_b32 v2, 63, v0
    v_readfirstlane_b32 s20, v1
    s_mov_b32 s11, 0x00020000
    s_mov_b32 s26, {WS_SIZE}
    s_mov_b32 s27, 0x00020000
    s_mov_b32 s18, 0x3f803f80
    s_cmp_ge_u32 s2, {NCS}
    s_cbranch_scc1 {name}_stats
    s_waitcnt lgkmcnt(0)
    s_mov_b32 s24, s16
    s_mov_b32 s25, s17
    s_mov_b32 s8, s6
    s_mov_b32 s9, s7
    s_mov_b32 s10, {D*3*D*2}
    s_mov_b32 s21, {3*D*2}
    s_mov_b32 s22, s2
    s_cmp_lt_u32 s2, 48
    s_cbranch_scc1 {name}_go
    s_mov_b32 s8, s28
    s_mov_b32 s9, s29
    s_mov_b32 s10, {D*F*2}
    s_mov_b32 s21, {F*2}
    s_sub_u32 s22, s2, 48
    s_cmp_lt_u32 s2, 104
    s_cbranch_scc1 {name}_go
    s_mov_b32 s8, s30
    s_mov_b32 s9, s31
    s_sub_u32 s22, s2, 104
    {name}_go:
    v_lshrrev_b32 v3, 3, v2
    s_lshl_b32 s19, s20, 8
    v_add_u32 v3, s19, v3
    v_mul_lo_u32 v3, v3, s21
    v_and_b32 v4, 7, v2
    v_lshl_add_u32 v3, v4, 4, v3
    s_lshl_b32 s19, s22, 7
    v_add_u32 v3, s19, v3
    s_lshl_b32 s23, s21, 3             ; 8 rows
    s_mov_b32 s19, 0
    ''')
    for i in range(32):
        e(f'buffer_load_dwordx4 v[{32+4*i}:{35+4*i}], v3, s[8:11], s19 offen')
        if i < 31: e('s_add_u32 s19, s19, s23')
    for i in range(8): e(f'v_mov_b32 v{8+i}, 0')
    for i in range(32):
        e(f's_waitcnt vmcnt({31-i})')
        for j in range(4):
            r = 32 + 4*i + j
            e(f'v_lshlrev_b32 v{16+2*j}, 16, v{r}')
            e(f'v_and_b32 v{17+2*j}, 0xffff0000, v{r}')
        for j in range(4):
            e(f'v_pk_add_f32 v[{8+2*j}:{9+2*j}], v[{8+2*j}:{9+2*j}], v[{16+2*j}:{17+2*j}]')
    for i in range(8): e(f'v_add_f32_dpp v{8+i}, v{8+i}, v{8+i} row_ror:8 row_mask:0xf bank_mask:0xf')
    for sw in ('v_permlane16_swap_b32', 'v_permlane32_swap_b32'):
        for i in range(8): e(f'v_mov_b32 v{16+i}, v{8+i}')
        for i in range(8): e(f'{sw} v{8+i}, v{16+i}')
        for i in range(4): e(f'v_pk_add_f32 v[{8+2*i}:{9+2*i}], v[{8+2*i}:{9+2*i}], v[{16+2*i}:{17+2*i}]')
    e(f'''
    v_lshlrev_b32 v3, 5, v4
    s_lshl_b32 s19, s20, 8
    v_add_u32 v3, s19, v3
    s_mov_b64 exec, 0xff
    ds_write_b128 v3, v[8:11]
    ds_write_b128 v3, v[12:15] offset:16
    s_mov_b64 exec, -1
    s_waitcnt lgkmcnt(0)
    s_barrier
    s_cmp_lg_u32 s20, 0
    s_cbranch_scc1 {name}_end
    v_lshlrev_b32 v3, 2, v2
    ds_read_b32 v8, v3
    ds_read_b32 v9, v3 offset:256
    ds_read_b32 v10, v3 offset:512
    ds_read_b32 v11, v3 offset:768
    s_waitcnt lgkmcnt(0)
    v_add_f32 v8, v8, v9
    v_add_f32 v10, v10, v11
    v_add_f32 v8, v8, v10
    v_cvt_pk_bf16_f32 v9, v8, v8
    v_and_b32 v10, 0xffff0000, v9
    v_sub_f32 v10, v8, v10
    v_cvt_pk_bf16_f32 v9, v8, v10
    s_lshl_b32 s19, s2, 8
    s_add_u32 s19, s19, {WS_CS}
    buffer_store_dword v9, v3, s[24:27], s19 offen
    s_endpgm
    {name}_stats:
    s_waitcnt lgkmcnt(0)
    s_mov_b32 s24, s16
    s_mov_b32 s25, s17
    s_mov_b32 s8, s4
    s_mov_b32 s9, s5
    s_mov_b32 s10, {S*D*2}
    s_sub_u32 s22, s2, {NCS}
    s_lshl_b32 s22, s22, 2
    s_add_u32 s22, s22, s20
    s_lshl_b32 s22, s22, 2
    v_lshlrev_b32 v3, 5, v2
    s_lshl_b32 s19, s22, 11
    ''')
    for r in range(4):
        for h in range(2):
            e(f'buffer_load_dwordx4 v[{32+r*8+h*4}:{35+r*8+h*4}], v3, s[8:11], s19 offen offset:{(r%2)*2048 + h*16}')
        if r == 1: e('s_add_u32 s19, s19, 4096')
    for r in range(4): e(f'v_mov_b32 v{8+2*r}, 0'); e(f'v_mov_b32 v{9+2*r}, 0')
    e('s_waitcnt vmcnt(0)')
    for d in range(8):
        for r in range(4):
            x = 32 + r*8 + d
            e(f'v_dot2_f32_bf16 v{8+2*r}, v{x}, s18, v{8+2*r}')
            e(f'v_dot2_f32_bf16 v{9+2*r}, v{x}, v{x}, v{9+2*r}')
    e('s_nop 4')
    for i in range(8): e(f'v_add_f32_dpp v{8+i}, v{8+i}, v{8+i} quad_perm:[1,0,3,2] row_mask:0xf bank_mask:0xf')
    for i in range(8): e(f'v_add_f32_dpp v{8+i}, v{8+i}, v{8+i} quad_perm:[2,3,0,1] row_mask:0xf bank_mask:0xf')
    e(f'''
    v_lshlrev_b32 v3, 1, v2            ; (lane>>2)*8 for lanes with lane%4==0
    s_lshl_b32 s19, s22, 7
    s_add_u32 s19, s19, {WS_ST0}
    s_mov_b32 exec_lo, 0x11111111
    s_mov_b32 exec_hi, 0x11111111
    ''')
    for r in range(4):
        e(f'buffer_store_dwordx2 v[{8+2*r}:{9+2*r}], v3, s[24:27], s19 offen offset:{r*128}')
    e(f'{name}_end:')
    e('s_endpgm')
    return kernel_text(name, hazard_pass(e.L), 160, 0), LDS_BYTES
```

```python
from asmlib import *
from common import *

XT = 16384; WG_ = 8192; STAGE = XT + 3 * WG_; NS = 4
LDS_BYTES = STAGE * NS
LDW = 3 * D * 2
NBODY = 16; NSTEP = 32
ROWB = 352; HREG = 128 * ROWB

def acc(blk, tb): return 32 + (blk * 4 + tb) * 4
def xfrag(p, tb): return 128 + p * 40 + tb * 4
def wfrag(p, b): return 128 + p * 40 + 16 + b * 4
V_RAW = 208
V_PHI = 240
V_A = 248
CSA = 0; NMB = 24; PHH = 40
V_XOFF = 4; V_WOFF = 8; V_XRD = 12; V_WRD = 14
V_LW = 16; V_LR = 17; V_KV = 18; V_EQ = 19; V_KZ = 20

def gen(name, x_src, opts=None):
    opts = opts or {}
    e = Asm()
    stamp = opts.get('stamp')
    def st(i):
        if stamp: e(f's_memtime s[{60+4*i}:{61+4*i}]'); e(f's_memrealtime s[{62+4*i}:{63+4*i}]')
    st(0)
    e(f'''
    s_cmp_ge_u32 s2, 256
    s_cbranch_scc1 {name}_end
    s_load_dwordx4 s[4:7], s[0:1], 8
    s_load_dwordx2 s[16:17], s[0:1], 80
    ''')
    if x_src[0] == 'arg': e(f's_load_dwordx2 s[8:9], s[0:1], {x_src[1]}')
    e(f'''
    v_lshrrev_b32 v1, 6, v0
    v_and_b32 v2, 63, v0
    v_readfirstlane_b32 s20, v1
    s_and_b32 s21, s2, 7
    s_lshr_b32 s22, s2, 3
    s_lshr_b32 s23, s21, 1
    s_lshl_b32 s23, s23, 2
    s_and_b32 s18, s22, 3
    s_add_u32 s53, s23, s18          ; mt
    s_and_b32 s18, s21, 1
    s_lshl_b32 s18, s18, 3
    s_lshr_b32 s19, s22, 2
    s_add_u32 s22, s18, s19          ; hp
    s_lshl_b32 s23, s53, 7           ; m0
    s_lshr_b32 s28, s20, 1           ; wm
    s_and_b32 s29, s20, 1            ; wh
    v_and_b32 v30, 15, v2
    v_lshrrev_b32 v31, 4, v2
    v_lshrrev_b32 v3, 3, v2
    s_lshl_b32 s18, s20, 5
    s_add_u32 s18, s18, s23
    v_add_u32 v3, s18, v3
    v_lshlrev_b32 v3, 11, v3
    v_and_b32 v1, 7, v2
    v_xor_b32 v1, v1, v31
    v_lshl_add_u32 v{V_XOFF}, v1, 4, v3
    v_xor_b32 v1, 4, v1
    v_lshl_add_u32 v{V_XOFF+1}, v1, 4, v3
    v_add_u32 v{V_XOFF+1}, {8*2048 - 1024}, v{V_XOFF+1}
    v_add_u32 v{V_XOFF+2}, {16*2048 - 2048}, v{V_XOFF}
    v_add_u32 v{V_XOFF+3}, {16*2048 - 2048}, v{V_XOFF+1}
    v_lshrrev_b32 v3, 3, v2
    s_lshl_b32 s18, s20, 4
    v_add_u32 v3, s18, v3
    v_mul_u32_u24 v3, {LDW}, v3
    s_lshl_b32 s18, s22, 7
    v_add_u32 v3, s18, v3
    v_and_b32 v1, 1, v31
    v_lshlrev_b32 v1, 1, v1
    v_and_b32 v28, 7, v2
    v_xor_b32 v1, v1, v28
    v_lshl_add_u32 v{V_WOFF}, v1, 4, v3
    v_xor_b32 v1, 4, v1
    v_lshl_add_u32 v{V_WOFF+1}, v1, 4, v3
    v_add_u32 v{V_WOFF+1}, {8*LDW - 1024}, v{V_WOFF+1}
    s_mov_b32 s30, 0
    s_mov_b32 s31, 0
    s_mov_b32 s32, 2048
    s_mov_b32 s33, 4096
    s_mov_b32 s34, 0
    s_lshl_b32 s40, s20, 12
    s_lshl_b32 s41, s20, 11
    s_add_u32 s41, s41, {XT}
    s_add_u32 s43, s41, {WG_}
    s_add_u32 s52, s41, {2*WG_}
    s_mov_b32 s10, {S*D*2}
    s_mov_b32 s11, 0x00020000
    s_mov_b32 s14, {D*LDW}
    s_mov_b32 s15, 0x00020000
    s_mov_b32 s26, {WS_SIZE}
    s_mov_b32 s27, 0x00020000
    s_waitcnt lgkmcnt(0)
    s_mov_b32 s12, s4
    s_mov_b32 s13, s5
    s_mov_b32 s24, s16
    s_mov_b32 s25, s17
    ''')
    if x_src[0] == 'ws': e(f's_add_u32 s8, s16, {x_src[1]}\ns_addc_u32 s9, s17, 0')
    q = DmaQ()
    aux = opts.get('aux', ''); auxw = opts.get('auxw', aux)
    def dma_tile():
        g = []
        for j in range(4):
            ins = [f'buffer_load_dwordx4 v{V_XOFF+j}, s[8:11], s30 offen offset:{j*1024} {aux} lds']
            if j == 0: ins = ['s_add_u32 m0, s34, s40', 's_nop 0'] + ins
            if j == 3: ins += ['s_add_u32 s30, s30, 128']
            g.append(ins)
        for grp in range(3):
            for j in range(2):
                ins = [f'buffer_load_dwordx4 v{V_WOFF+j}, s[12:15], s{31+grp} offen offset:{j*1024} {auxw} lds']
                if j == 0: ins = [f's_add_u32 m0, s34, s{[41,43,52][grp]}', 's_nop 0'] + ins
                if j == 1: ins += [f's_add_u32 s{31+grp}, s{31+grp}, {64*LDW}']
                if j == 1 and grp == 2: ins += [f's_add_u32 s34, s34, {STAGE}', f's_cmp_eq_u32 s34, {STAGE*NS}', 's_cselect_b32 s34, 0, s34']
                g.append(ins)
        return g
    flat = []
    for u in range(NBODY):
        for ins in dma_tile(): flat.append((ins, f'T{u}', 2*(u - NS) + 1))
    def take(step, n):
        out = []
        while flat and len(out) < n and flat[0][2] <= step: out.append(flat.pop(0))
        return out
    for ins, tag, _ in take(-1, 10): e.ext(ins); q.issue(tag)
    e(f'''
    s_lshl_b32 s18, s28, 6
    s_add_u32 s18, s18, s23
    v_add_u32 v28, s18, v30
    v_lshlrev_b32 v29, 7, v28
    v_lshl_add_u32 v29, v31, 5, v29
    s_mov_b32 s18, {WS_ST0}
    s_mov_b32 s19, {WS_ST0 + 4096}
    ''')
    for tb in range(4):
        for i in range(2):
            r = V_RAW + tb*8 + i*4
            e(f'buffer_load_dwordx4 v[{r}:{r+3}], v29, s[24:27], s{18 + tb//2} offen offset:{(tb%2)*2048+i*16}')
            q.issue('st')
    for ins, tag, _ in take(-1, 10): e.ext(ins); q.issue(tag)
    e(f'''
    s_lshl_b32 s18, s22, 1
    s_add_u32 s54, s18, s29            ; head
    s_lshl_b32 s18, s54, 5
    v_add_u32 v1, s18, v30
    v_lshlrev_b32 v1, 2, v1
    s_mov_b32 s18, {CS_QKV}
    s_mov_b32 s19, {CS_QKV + 4096}
    s_mov_b32 s44, {CS_QKV + 8192}
    ''')
    for b in range(6):
        e(f'buffer_load_dword a{CSA+4*b}, v1, s[24:27], s{[18,19,44][b//2]} offen offset:{(b%2)*64}')
        q.issue('cs')
    e(f'''
    s_mov_b32 s56, s6
    s_mov_b32 s57, s7
    s_mov_b32 s58, 65536
    s_mov_b32 s59, 0x00020000
    v_lshlrev_b32 v1, 8, v31           ; 4g*64
    v_lshl_add_u32 v1, v30, 1, v1
    s_lshl_b32 s18, s54, 11
    ''')
    for fb in range(2):
        for i in range(8):
            d = (i & 3) + 16 * (i >> 2)
            dst = f'v{V_PHI + fb*4 + i//2}' if i % 2 == 0 else f'a{PHH + fb*4 + i//2}'
            e(f'buffer_load_ushort {dst}, v1, s[56:59], s18 offen offset:{d*64 + fb*32}')
            q.issue('phi')
    e(f'''
    v_lshrrev_b32 v1, 1, v30
    v_lshlrev_b32 v3, 7, v30
    s_lshl_b32 s18, s28, 13
    v_add_u32 v3, s18, v3
    v_xor_b32 v{V_XRD}, v31, v1
    v_xor_b32 v{V_XRD+1}, 4, v{V_XRD}
    v_lshl_add_u32 v{V_XRD}, v{V_XRD}, 4, v3
    v_lshl_add_u32 v{V_XRD+1}, v{V_XRD+1}, 4, v3
    v_bfe_u32 v1, v2, 2, 2            ; r
    v_lshl_add_u32 v3, v31, 3, v1
    v_lshlrev_b32 v3, 7, v3
    v_add_u32 v3, {XT}, v3
    v_and_b32 v29, 1, v2
    v_lshl_add_u32 v3, v29, 3, v3
    v_and_b32 v1, 2, v1
    v_and_b32 v29, 1, v31
    v_lshl_add_u32 v1, v29, 2, v1     ; f
    v_bfe_u32 v29, v2, 1, 1
    v_or_b32 v1, v1, v29
    s_lshl_b32 s18, s29, 2
    v_xor_b32 v1, s18, v1
    v_lshl_add_u32 v{V_WRD}, v1, 4, v3
    v_xor_b32 v1, 2, v1
    v_lshl_add_u32 v{V_WRD+1}, v1, 4, v3
    s_lshl_b32 s18, s28, 6
    v_add_u32 v1, s18, v30
    v_mul_u32_u24 v1, {ROWB}, v1
    v_lshrrev_b32 v3, 2, v30
    v_xor_b32 v3, v3, v31
    v_lshl_add_u32 v1, v3, 3, v1
    s_mul_i32 s18, s29, {HREG}
    v_add_u32 v{V_LW}, s18, v1
    v_bfe_u32 v1, v2, 2, 2
    v_lshl_add_u32 v1, v31, 2, v1
    v_mul_u32_u24 v1, {ROWB}, v1
    v_and_b32 v3, 3, v2
    v_xor_b32 v3, v3, v31
    v_lshl_add_u32 v1, v3, 3, v1
    v_add_u32 v{V_LR}, s18, v1
    s_lshl_b32 s18, s53, 5
    s_add_u32 s18, s18, s54
    s_mul_i32 s18, s18, {KVP_HEAD}
    s_add_u32 s18, s18, {WS_KVP}
    s_lshl_b32 s19, s28, 7
    s_add_u32 s19, s19, s18
    s_add_u32 s19, s19, 8192
    v_lshlrev_b32 v1, 4, v31
    v_add_u32 v{V_KZ}, s19, v1
    s_lshl_b32 s19, s28, 12
    s_add_u32 s18, s18, s19
    v_lshlrev_b32 v1, 4, v2
    v_add_u32 v{V_KV}, s18, v1
    s_lshl_b32 s18, s53, 3
    s_lshl_b32 s19, s28, 2
    s_add_u32 s18, s18, s19
    s_lshl_b32 s18, s18, 5
    s_add_u32 s18, s18, s54
    s_lshl_b32 s18, s18, 11
    s_add_u32 s18, s18, {WS_EQ}
    v_add_u32 v{V_EQ}, s18, v1
    s_mov_b32 s36, 0
    s_mov_b32 s42, 0
    s_mov_b32 s50, {STAGE}
    s_mov_b32 s51, {(-(NS-1)*STAGE) & 0xffffffff:#x}
    s_mov_b32 s46, {f2u(1.0/1024):#x}
    s_mov_b32 s47, {f2u(1e-5):#x}
    v_cmp_gt_u32 vcc, 16, v2
    ''')
    def mfma(b, tb, p, c=None):
        a = acc(b, tb)
        cc = f'v[{a}:{a+3}]' if c is None else c
        return f'v_mfma_f32_16x16x32_bf16 v[{a}:{a+3}], v[{wfrag(p,b)}:{wfrag(p,b)+3}], v[{xfrag(p,tb)}:{xfrag(p,tb)+3}], {cc}'
    def reads(p, s):
        x = lambda tb: [f'ds_read_b128 v[{xfrag(p,tb)}:{xfrag(p,tb)+3}], v{V_XRD+s} offset:{tb*2048}']
        w = lambda b, h: [f'ds_read_b64_tr_b16 v[{wfrag(p,b)+2*h}:{wfrag(p,b)+2*h+1}], v{V_WRD+(b&1)} offset:{(b>>1)*WG_ + (32*s+4*h)*128}']
        g = [x(0), w(0, 0), w(0, 1), x(1), x(2), x(3)]
        for b in range(1, 6): g += [w(b, 0), w(b, 1)]
        return g
    n = q.wait_for({'T0'})
    e(f's_waitcnt vmcnt({n})')
    e('s_barrier')
    st(1)
    if stamp: e('s_waitcnt lgkmcnt(0)')
    for g in reads(0, 0): e.ext(g)
    extra = []
    for b in range(6):
        for i in range(1, 4): extra.append(f'v_accvgpr_write_b32 a{CSA+4*b+i}, 0')
    for tb in range(4):
        for i in range(1, 4): extra.append(f'v_accvgpr_write_b32 a{NMB+4*tb+i}, 0')
    for i in range(8):
        extra.append(f'v_accvgpr_read_b32 v21, a{PHH+i}')
        extra.append(f'v_lshl_or_b32 v{V_PHI+i}, v21, 16, v{V_PHI+i}')
    extra += stats_finish(lambda tb: V_RAW + tb*8)
    for tb in range(4):
        extra.append(f'v_mov_b32 v{V_A+tb}, v{V_RAW+tb*8+3}')
        extra.append(f'v_accvgpr_write_b32 a{NMB+4*tb}, v{V_RAW+tb*8+4}')
    bodies = []
    for u in range(NBODY):
        L = []
        for s in range(2):
            t = 2 * u + s; p = s
            last = (t == NSTEP - 1)
            ms = [mfma(b, tb, p, '0' if t == 0 else None) for b in range(6) for tb in range(4)]
            pre = []; bar = []; rd = []
            if not last:
                if s == 1:
                    pre = [f's_add_u32 s36, s36, {STAGE}', f's_cmp_eq_u32 s36, {STAGE*NS}', 's_cselect_b32 s42, s51, s50',
                           's_cselect_b32 s36, 0, s36', f'v_add_u32 v{V_XRD}, s42, v{V_XRD}'] + \
                          [f'v_add_u32 v{V_WRD+i}, s42, v{V_WRD+i}' for i in range(2)]
                    n = q.wait_for({f'T{u+1}'})
                    bar = [f's_waitcnt vmcnt({n})', 's_barrier']
                else:
                    pre = [f'v_add_u32 v{V_XRD+1}, s42, v{V_XRD+1}']
                rd = reads(p ^ 1, s ^ 1)
            dm = []
            for ins, tag, _ in take(t, {0: 10, 1: 15}.get(t, 5)): dm.append(ins); q.issue(tag)
            ex = []
            if t >= 4 and extra:
                ex = extra[:16]; extra = extra[16:]
            L += build_step(ms, pre, bar, rd, dm, ex, nb=(2 if s == 1 else 1))
        bodies.append(L)
    assert not flat and not extra
    e.ext(loopify(bodies, f'{name}_L', 38))
    for b in range(6):
        for tb in range(4):
            a = acc(b, tb)
            e(f'v_mfma_f32_16x16x32_bf16 v[{a}:{a+3}], a[{CSA+4*b}:{CSA+4*b+3}], a[{NMB+4*tb}:{NMB+4*tb+3}], v[{a}:{a+3}]')
    st(2)
    e('s_barrier')
    e(f's_mov_b32 s44, {f2u(LOG2E):#x}')
    e(f's_mov_b32 s45, {f2u(LOG2E):#x}')
    def bc(r): return (f'v[{r}:{r+1}]', 0) if r % 2 == 0 else (f'v[{r-1}:{r}]', 1)
    for i in range(4): e(f'v_mov_b32 v{24+i}, 0x3f803f80')
    PB = 128
    PP = 144
    MX = 176
    EP = 192
    PK = 208
    def feat(m):
        for tb in range(4):
            ar, sl = bc(V_A + tb)
            for db in range(2):
                a = acc(2*m + db, tb)
                for h in range(2):
                    e(f'v_pk_mul_f32 v[{a+2*h}:{a+2*h+1}], v[{a+2*h}:{a+2*h+1}], {ar} op_sel:[0,{sl}] op_sel_hi:[1,{sl}]')
        for tb in range(4):
            for db in range(2):
                a = acc(2*m + db, tb)
                for h in range(2):
                    e(f'v_cvt_pk_bf16_f32 v{PB+tb*4+db*2+h}, v{a+2*h}, v{a+2*h+1}')
        for tb in range(4):
            for fb in range(2):
                p = PP + tb*8 + fb*4
                e(f'v_mfma_f32_16x16x32_bf16 v[{p}:{p+3}], v[{V_PHI+fb*4}:{V_PHI+fb*4+3}], v[{PB+tb*4}:{PB+tb*4+3}], 0')
        for tb in range(4):
            p = PP + tb*8; mx = MX + 2*tb
            e(f'v_max3_f32 v{mx}, v{p}, v{p+1}, v{p+2}')
            e(f'v_max3_f32 v{mx+1}, -v{p}, -v{p+1}, -v{p+2}')
        for k in (3, 5):
            for tb in range(4):
                p = PP + tb*8; mx = MX + 2*tb
                e(f'v_max3_f32 v{mx}, v{mx}, v{p+k}, v{p+k+1}')
                e(f'v_max3_f32 v{mx+1}, v{mx+1}, -v{p+k}, -v{p+k+1}')
        for tb in range(4):
            p = PP + tb*8; mx = MX + 2*tb
            e(f'v_max_f32 v{mx}, v{mx}, v{p+7}')
            e(f'v_max_f32_e64 v{mx+1}, v{mx+1}, -v{p+7}')
        for tb in range(4): e(f'v_permlane32_swap_b32 v{MX+2*tb}, v{MX+2*tb+1}')
        for tb in range(4): e(f'v_max_f32 v{MX+2*tb}, v{MX+2*tb}, v{MX+2*tb+1}')
        for pr in range(2): e(f'v_permlane16_swap_b32 v{MX+4*pr}, v{MX+4*pr+2}')
        for pr in range(2): e(f'v_max_f32 v{MX+4*pr}, v{MX+4*pr}, v{MX+4*pr+2}')
        for pr in range(2): e(f'v_mul_f32 v{MX+4*pr}, s44, v{MX+4*pr}')
        for pr in range(2): e(f'v_mov_b32 v{MX+4*pr+2}, v{MX+4*pr}')
        for pr in range(2): e(f'v_permlane16_swap_b32 v{MX+4*pr}, v{MX+4*pr+2}')
        for tb in range(4): e(f'v_mov_b32 v{MX+2*tb+1}, v{MX+2*tb}')
        for tb in range(4): e(f'v_permlane32_swap_b32 v{MX+2*tb}, v{MX+2*tb+1}')
        for tb in range(4):
            p = PP + tb*8; mx = MX + 2*tb
            for i in range(4):
                e(f'v_pk_fma_f32 v[{EP+2*i}:{EP+2*i+1}], v[{p+2*i}:{p+2*i+1}], s[44:45], v[{mx}:{mx+1}] op_sel:[0,0,0] op_sel_hi:[1,1,0] neg_lo:[0,0,1] neg_hi:[0,0,1]')
            for i in range(4):
                e(f'v_pk_fma_f32 v[{EP+8+2*i}:{EP+8+2*i+1}], v[{p+2*i}:{p+2*i+1}], s[44:45], v[{mx}:{mx+1}] op_sel:[0,0,1] op_sel_hi:[1,1,1] neg_lo:[1,0,1] neg_hi:[1,0,1]')
            for i in range(16): e(f'v_exp_f32 v{EP+i}, v{EP+i}')
            for i in range(8): e(f'v_cvt_pk_bf16_f32 v{PK+tb*8+i}, v{EP+2*i}, v{EP+2*i+1}')
    feat(1)
    SS = 144
    for tb in range(4):
        for sg in range(2):
            r = SS + (tb*2+sg)*4
            e(f'v_mfma_f32_16x16x32_bf16 v[{r}:{r+3}], v[24:27], v[{PK+tb*8+sg*4}:{PK+tb*8+sg*4+3}], 0')
    for tb in range(4):
        for sg in range(2):
            for fb in range(2):
                r = PK + tb*8 + sg*4 + fb*2
                e(f'ds_write_b64 v{V_LW}, v[{r}:{r+1}] offset:{tb*16*ROWB + sg*64 + fb*32}')
    for tb in range(4):
        for sg in range(2):
            r = SS + (tb*2+sg)*4
            e(f'v_rcp_f32 v{r}, v{r}')
    for tb in range(4):
        for sg in range(2):
            r = SS + (tb*2+sg)*4
            e(f'v_mul_f32 v{r+2}, v{r}, v{V_A+tb}')
            e(f'v_cvt_pk_bf16_f32 v{r}, v{r}, 0')
            e(f'v_mov_b32 v{r+1}, 0')
    for tb in range(4):
        for sg in range(2):
            r = SS + (tb*2+sg)*4
            t = 176 + sg*8
            for db in range(2):
                a = acc(4 + db, tb)
                for h in range(2):
                    e(f'v_pk_mul_f32 v[{t+db*4+2*h}:{t+db*4+2*h+1}], v[{a+2*h}:{a+2*h+1}], v[{r+2}:{r+3}] op_sel:[0,0] op_sel_hi:[1,0]')
            o = 192 + (tb % 2) * 8 + sg * 4
            for i in range(4): e(f'v_cvt_pk_bf16_f32 v{o+i}, v{t+2*i}, v{t+2*i+1}')
            for db in range(2):
                e(f'ds_write_b64 v{V_LW}, v[{o+2*db}:{o+2*db+1}] offset:{tb*16*ROWB + 128 + sg*64 + db*32}')
            e(f'ds_write_b64 v{V_LW}, v[{r}:{r+1}] offset:{tb*16*ROWB + 256 + sg*32}')
    e('s_waitcnt lgkmcnt(0)')
    e('s_barrier')
    e(f's_lshl_b32 s18, s28, 6')
    e(f'v_add_u32 v21, s18, v{V_LR}')
    e(f's_lshl_b32 s18, s28, 5')
    e(f'v_add_u32 v22, s18, v{V_LR}')
    FA = 128
    for ks in range(4):
        f = FA + ks * 20
        for h in range(2):
            ro = (ks*32 + h*16) * ROWB
            for fb in range(2): e(f'ds_read_b64_tr_b16 v[{f+fb*4+2*h}:{f+fb*4+2*h+1}], v21 offset:{ro + fb*32}')
            for db in range(2): e(f'ds_read_b64_tr_b16 v[{f+8+db*4+2*h}:{f+8+db*4+2*h+1}], v21 offset:{ro + 128 + db*32}')
            e(f'ds_read_b64_tr_b16 v[{f+16+2*h}:{f+16+2*h+1}], v22 offset:{ro + 256}')
    KV = acc(2, 0)
    for ks in range(4):
        f = FA + ks * 20
        e(f's_waitcnt lgkmcnt({min(15, (3-ks)*10)})')
        for fb in range(2):
            for bk in range(3):
                d = KV + (fb*3+bk)*4
                e(f'v_mfma_f32_16x16x32_bf16 v[{d}:{d+3}], v[{f+fb*4}:{f+fb*4+3}], v[{f+8+bk*4}:{f+8+bk*4+3}], ' + ('0' if ks == 0 else f'v[{d}:{d+3}]'))
    for fb in range(2):
        for db in range(2):
            d = KV + (fb*3+db)*4
            e(f'buffer_store_dwordx4 v[{d}:{d+3}], v{V_KV}, s[24:27], 0 offen offset:{(fb*2+db)*1024}')
    e('s_mov_b32 exec_lo, 0x00010001')
    e('s_mov_b32 exec_hi, 0x00010001')
    for fb in range(2):
        d = KV + (fb*3+2)*4
        e(f'buffer_store_dwordx4 v[{d}:{d+3}], v{V_KZ}, s[24:27], 0 offen offset:{fb*64}')
    e('s_mov_b64 exec, -1')
    feat(0)
    for tb in range(4): e(f's_mov_b32 s{44+tb}, {tb*65536}')
    for tb in range(4):
        for sg in range(2):
            r = PK + tb*8 + sg*4
            e(f'buffer_store_dwordx4 v[{r}:{r+3}], v{V_EQ}, s[24:27], s{44+tb} offen offset:{sg*1024}')
    if stamp:
        st(3); e('s_waitcnt vmcnt(0)'); st(4); stamp_out(e)
    e(f'{name}_end:')
    e('s_endpgm')
    body = hazard_pass(e.L)
    return kernel_text(name, body, 256, 48), LDS_BYTES
```

```python
from asmlib import *
from common import *

LDS_BYTES = 8192

def o_compute(e, tbs, KA, EB, NN, T, OUT):
    for tb in tbs:
        for sg in range(2):
            for bk in range(3):
                d = NN(tb) + (sg*3+bk)*4; a = KA + (sg*3+bk)*4; b = EB(tb) + sg*4
                e(f'v_mfma_f32_16x16x32_bf16 v[{d}:{d+3}], v[{a}:{a+3}], v[{b}:{b+3}], 0')
    for tb in tbs:
        for sg in range(2):
            z = NN(tb) + (sg*3+2)*4
            e(f'v_rcp_f32 v{z+1}, v{z+1}')
    for tb in tbs:
        zp = NN(tb) + 8; zm = NN(tb) + 20
        e(f'v_fma_f32 v{zp+2}, v{zp}, v{zp+1}, s44')
        e(f'v_fma_f32 v{zp+2}, v{zm}, v{zm+1}, v{zp+2}')
    for tb in tbs:
        zp = NN(tb) + 8
        e(f'v_rcp_f32 v{zp+2}, v{zp+2}')
    for tb in tbs:
        zp = NN(tb) + 8; zm = NN(tb) + 20
        e(f'v_mul_f32 v{zp}, v{zp+1}, v{zp+2}')
        e(f'v_mul_f32 v{zm}, v{zm+1}, v{zp+2}')
    for tb in tbs:
        n = NN(tb); zp = n + 8; zm = n + 20
        for i in range(4):
            e(f'v_pk_mul_f32 v[{n+2*i}:{n+2*i+1}], v[{n+2*i}:{n+2*i+1}], v[{zp}:{zp+1}] op_sel:[0,0] op_sel_hi:[1,0]')
        for i in range(4):
            e(f'v_pk_fma_f32 v[{n+2*i}:{n+2*i+1}], v[{n+12+2*i}:{n+12+2*i+1}], v[{zm}:{zm+1}], v[{n+2*i}:{n+2*i+1}] op_sel:[0,0,0] op_sel_hi:[1,0,1]')
    for tb in tbs:
        n = NN(tb); o = OUT(tb)
        for i in range(4): e(f'v_cvt_pk_bf16_f32 v{o+i}, v{n+2*i}, v{n+2*i+1}')
    for tb in tbs:
        o = OUT(tb)
        e(f'v_permlane16_swap_b32 v{o}, v{o+2}')
        e(f'v_permlane16_swap_b32 v{o+1}, v{o+3}')

def gen(name, opts=None):
    opts = opts or {}
    e = Asm()
    e(f'''
    s_cmp_ge_u32 s2, 256
    s_cbranch_scc1 {name}_end
    s_load_dwordx2 s[16:17], s[0:1], 80
    v_lshrrev_b32 v1, 6, v0
    v_and_b32 v2, 63, v0
    v_readfirstlane_b32 s20, v1
    s_and_b32 s21, s2, 7
    s_lshr_b32 s22, s2, 3
    s_lshr_b32 s23, s21, 1
    s_lshl_b32 s23, s23, 1
    s_and_b32 s18, s22, 1
    s_add_u32 s23, s23, s18          ; rb
    s_and_b32 s18, s21, 1
    s_lshl_b32 s18, s18, 4
    s_lshr_b32 s19, s22, 1
    s_add_u32 s22, s18, s19          ; head
    v_and_b32 v30, 15, v2
    v_lshrrev_b32 v31, 4, v2
    v_lshlrev_b32 v3, 4, v2
    s_mov_b32 s26, {WS_SIZE}
    s_mov_b32 s27, 0x00020000
    s_lshr_b32 s28, s20, 1
    s_and_b32 s29, s20, 1
    s_mul_i32 s18, s22, {KVP_HEAD}
    s_add_u32 s18, s18, {WS_KVP}
    s_lshl_b32 s19, s28, 12
    s_add_u32 s30, s18, s19
    s_lshl_b32 s19, s29, 10
    s_add_u32 s30, s30, s19
    v_add_u32 v4, s30, v3
    s_lshl_b32 s19, s20, 6
    s_add_u32 s31, s18, s19
    s_add_u32 s31, s31, 8192
    v_lshlrev_b32 v5, 4, v31
    v_add_u32 v5, s31, v5
    s_lshl_b32 s18, s23, 4
    s_lshl_b32 s19, s20, 2
    s_add_u32 s18, s18, s19
    s_lshl_b32 s33, s18, 4
    s_lshl_b32 s18, s18, 5
    s_add_u32 s18, s18, s22
    s_lshl_b32 s18, s18, 11
    s_add_u32 s18, s18, {WS_EQ}
    v_add_u32 v6, s18, v3
    s_waitcnt lgkmcnt(0)
    s_mov_b32 s24, s16
    s_mov_b32 s25, s17
    s_mov_b32 s34, 0
    ''')
    P = 32
    for m in range(16):
        r = P + m*12
        e(f'buffer_load_dwordx4 v[{r}:{r+3}], v4, s[24:27], s34 offen')
        e(f'buffer_load_dwordx4 v[{r+4}:{r+7}], v4, s[24:27], s34 offen offset:2048')
        e(f'buffer_load_dwordx4 v[{r+8}:{r+11}], v5, s[24:27], s34 offen')
        if m < 15: e(f's_add_u32 s34, s34, {32*KVP_HEAD}')
    EB0 = 224
    for tb in range(4):
        e(f's_mov_b32 s35, {tb*65536}')
        for sg in range(2):
            r = EB0 + tb*8 + sg*4
            e(f'buffer_load_dwordx4 v[{r}:{r+3}], v6, s[24:27], s35 offen offset:{sg*1024}')
    e(f'''
    v_add_u32 v7, s33, v30
    v_lshlrev_b32 v7, 11, v7
    v_and_b32 v1, 1, v31
    v_lshl_add_u32 v7, v1, 5, v7
    v_lshrrev_b32 v1, 1, v31
    v_lshl_add_u32 v7, v1, 4, v7
    s_lshl_b32 s18, s22, 6
    s_add_u32 s18, s18, {WS_O}
    v_add_u32 v7, s18, v7
    s_mov_b32 s44, {f2u(1e-6):#x}
    ''')
    for m in range(1, 16):
        e(f's_waitcnt vmcnt({8 + (15-m)*3})')
        r = P + m*12
        for i in range(6):
            e(f'v_pk_add_f32 v[{P+2*i}:{P+2*i+1}], v[{P+2*i}:{P+2*i+1}], v[{r+2*i}:{r+2*i+1}]')
    for i in range(6): e(f'v_cvt_pk_bf16_f32 v{8+i}, v{P+2*i}, v{P+2*i+1}')
    e(f'''
    s_mul_i32 s18, s28, 3072
    s_lshl_b32 s19, s29, 10
    s_add_u32 s18, s18, s19
    v_add_u32 v1, s18, v3
    ds_write_b128 v1, v[8:11]
    ; z operand tile at (sign*3+2)*1024 + lane*16 + fb*8 : row%4==0 -> z, row%4==1 -> ones, else 0
    v_and_b32 v14, 3, v2
    v_cmp_eq_u32 vcc, 0, v14
    v_mov_b32 v15, 0x3f803f80
    v_cmp_eq_u32 s[36:37], 1, v14
    v_cndmask_b32 v16, 0, v15, s[36:37]
    v_cndmask_b32 v12, v16, v12, vcc
    v_cndmask_b32 v13, v16, v13, vcc
    s_mul_i32 s18, s28, 3072
    s_lshl_b32 s19, s29, 3
    s_add_u32 s18, s18, s19
    s_add_u32 s18, s18, 2048
    v_add_u32 v1, s18, v3
    ds_write_b64 v1, v[12:13]
    s_waitcnt lgkmcnt(0)
    s_barrier
    ''')
    KA = 8
    for i in range(6): e(f'ds_read_b128 v[{KA+4*i}:{KA+4*i+3}], v3 offset:{i*1024}')
    e('s_waitcnt vmcnt(0) lgkmcnt(0)')
    o_compute(e, range(4), KA, lambda tb: EB0 + tb*8, lambda tb: 32 + tb*24, None, lambda tb: 128 + tb*4)
    for tb in range(4):
        e(f's_mov_b32 s35, {tb*16*2048}')
        e(f'buffer_store_dwordx4 v[{128+tb*4}:{128+tb*4+3}], v7, s[24:27], s35 offen')
    e(f'{name}_end:')
    e('s_endpgm')
    return kernel_text(name, hazard_pass(e.L), 256, 0), LDS_BYTES
```

```python
from asmlib import *
from common import *
import struct
f2u = lambda f: struct.unpack('<I', struct.pack('<f', f))[0]

XSLOT = 32768; NXS = 3
WREG = 7680
WHALF = 2 * WREG; NWS = 4; WBASE = XSLOT * NXS
LDS_BYTES = WBASE + NWS * WHALF
LDW = F * 2
NB = 16
NSTEP = 2 * NB

def acc(b, tb): return 32 + (b * 4 + tb) * 4
def xfrag(p, tb): return p * 72 + tb * 4
def wfrag(p, b): return p * 72 + 16 + b * 4
CSA = 144
NMB = 200

V_XOFF = 4
V_WOFF = 8
V_XRD = 12
V_WRD = 14
V_ST = 15
V_K = 16

def gen(name, opts=None):
    opts = opts or {}
    e = Asm()
    stamp = opts.get('stamp'); pst = opts.get('pst')
    def ps(i):
        if pst: e(f's_memtime s[{60+4*i}:{61+4*i}]'); e(f's_memrealtime s[{62+4*i}:{63+4*i}]')
    def st(i):
        if stamp and not pst: e(f's_memtime s[{60+4*i}:{61+4*i}]'); e(f's_memrealtime s[{62+4*i}:{63+4*i}]')
    st(0); ps(0)
    e(f'''
    s_cmp_ge_u32 s2, 256
    s_cbranch_scc1 {name}_end
    s_load_dwordx4 s[4:7], s[0:1], 40
    s_load_dwordx2 s[16:17], s[0:1], 80
    v_lshrrev_b32 v1, 6, v0
    v_and_b32 v2, 63, v0
    v_readfirstlane_b32 s20, v1
    s_and_b32 s21, s2, 7
    s_lshr_b32 s22, s2, 3
    s_and_b32 s23, s21, 1
    s_lshl_b32 s23, s23, 2
    s_and_b32 s18, s22, 3
    s_add_u32 s23, s23, s18          ; mt
    s_lshr_b32 s18, s21, 1
    s_lshl_b32 s18, s18, 3
    s_lshr_b32 s19, s22, 2
    s_add_u32 s22, s18, s19          ; nt
    s_lshl_b32 s23, s23, 8
    s_lshl_b32 s18, s20, 6
    s_add_u32 s23, s23, s18
    s_mul_i32 s22, s22, 112          ; n0
    v_and_b32 v30, 15, v2
    v_lshrrev_b32 v31, 4, v2          ; q
    v_add_u32 v28, s23, v30
    v_lshlrev_b32 v29, 7, v28
    v_lshl_add_u32 v29, v31, 5, v29
    v_lshrrev_b32 v3, 3, v2
    v_add_u32 v3, s23, v3
    v_lshlrev_b32 v3, 11, v3
    v_and_b32 v1, 7, v2
    v_xor_b32 v1, v1, v31
    v_lshl_add_u32 v{V_XOFF}, v1, 4, v3
    v_xor_b32 v1, 4, v1
    v_lshl_add_u32 v{V_XOFF+1}, v1, 4, v3
    v_add_u32 v{V_XOFF+1}, {8*2048 - 1024}, v{V_XOFF+1}
    v_add_u32 v{V_XOFF+2}, {16*2048 - 2048}, v{V_XOFF}
    v_add_u32 v{V_XOFF+3}, {16*2048 - 2048}, v{V_XOFF+1}
    v_mul_u32_u24 v1, 4682, v2
    v_lshrrev_b32 v1, 16, v1          ; lane/14
    v_mul_u32_u24 v3, 14, v1
    v_sub_u32 v3, v2, v3              ; lane%14
    v_lshlrev_b32 v3, 4, v3
    s_and_b32 s18, s20, 1
    s_lshl_b32 s18, s18, 4
    v_add_u32 v1, s18, v1
    v_mul_u32_u24 v1, {LDW}, v1
    v_add_u32 v1, v1, v3
    s_lshl_b32 s19, s22, 1
    v_add_u32 v{V_WOFF}, s19, v1
    ''')
    WL = [0, 896, 1920, 2816]
    for j in range(1, 4):
        e(f'v_add_u32 v{V_WOFF+j}, {j*4*LDW - WL[j]}, v{V_WOFF}')
    e(f'''
    s_mov_b32 s30, 0
    s_mov_b32 s31, 65536
    s_mov_b32 s32, 0
    s_mov_b32 s34, 0
    s_mov_b32 s35, 0
    s_lshl_b32 s40, s20, 13
    s_lshr_b32 s18, s20, 1
    s_mul_i32 s41, s18, {WREG}
    s_and_b32 s18, s20, 1
    s_mul_i32 s18, s18, 3840
    s_add_u32 s41, s41, s18
    s_add_u32 s41, s41, {WBASE}
    s_mov_b32 s10, {S*D*2}
    s_mov_b32 s11, 0x00020000
    s_mov_b32 s14, {D*F*2}
    s_mov_b32 s15, 0x00020000
    s_mov_b32 s26, {WS_SIZE}
    s_mov_b32 s27, 0x00020000
    s_mov_b32 s18, {WS_ST1}
    s_cmp_lt_u32 s20, 2
    s_waitcnt lgkmcnt(0)
    s_cselect_b32 s12, s4, s6
    s_cselect_b32 s13, s5, s7
    s_add_u32 s8, s16, {WS_X1}
    s_addc_u32 s9, s17, 0
    s_mov_b32 s24, s16
    s_mov_b32 s25, s17
    ''')
    ps(1)
    q = DmaQ()
    aux = opts.get('aux', ''); auxw = opts.get('auxw', aux)
    def dma_x(half):
        g = []
        first = ['s_add_u32 m0, s34, s40'] if half == 0 else ['s_add_u32 m0, s34, s52']
        for j in range(4):
            ins = [f'buffer_load_dwordx4 v{V_XOFF+j}, s[8:11], s{30+half} offen offset:{j*1024} {aux} lds']
            if j == 0: ins = first + ['s_nop 0'] + ins
            if half == 1 and j == 1: ins += ['s_add_u32 s30, s30, 128']
            if half == 1 and j == 2: ins += [f's_add_u32 s34, s34, {XSLOT}', f's_cmp_eq_u32 s34, {XSLOT*NXS}', 's_cselect_b32 s34, 0, s34']
            if half == 1 and j == 3: ins += ['s_add_u32 s31, s31, 128']
            g.append(ins)
        return g
    def dma_w():
        g = []
        for j in range(4):
            ins = [f'buffer_load_dwordx4 v{V_WOFF+j}, s[12:15], s32 offen offset:{WL[j]} {auxw} lds']
            if j == 0: ins = ['s_add_u32 m0, s35, s41', 's_nop 0'] + ins
            if j == 1: ins += [f's_add_u32 s35, s35, {WHALF}', f's_cmp_eq_u32 s35, {WHALF*NWS}', 's_cselect_b32 s35, 0, s35']
            if j == 3: ins += [f's_add_u32 s32, s32, {32*LDW}']
            g.append(ins)
        return g
    e('s_add_u32 s52, s40, 4096')
    for tb in range(4):
        for i in range(2):
            e(f'buffer_load_dwordx4 v[{64+tb*8+i*4}:{64+tb*8+i*4+3}], v29, s[24:27], s18 offen offset:{tb*2048+i*16}' if tb < 2 else
              f'buffer_load_dwordx4 v[{64+tb*8+i*4}:{64+tb*8+i*4+3}], v29, s[24:27], s19 offen offset:{(tb-2)*2048+i*16}')
            q.issue('st')
        if tb == 0: e(f's_mov_b32 s19, {WS_ST1 + 4096}')
    pend = []
    for u in range(NB):
        pend.append(('X%d' % u, 'xa', 2*u - 1, 2*(u-3) + 1))
        pend.append(('X%d' % u, 'xb', 2*u - 1, 2*(u-3) + 1))
        pend.append(('W%d' % (2*u), 'w', 2*u - 1, 2*u - 4))
        pend.append(('W%d' % (2*u+1), 'w', 2*u, 2*u + 1 - 4))
    mk = {'xa': lambda: dma_x(0), 'xb': lambda: dma_x(1), 'w': dma_w}
    def take(step, maxg):
        out = []
        while len(out) < maxg:
            cand = None
            seen = set()
            for g in pend:
                cls = g[1][0]
                if cls in seen: continue
                seen.add(cls)
                if g[3] <= step and (cand is None or g[2] < cand[2]): cand = g
            if cand is None: break
            pend.remove(cand); out.append(cand)
        return out
    for g in take(-1, 4):
        for ins in mk[g[1]](): e.ext(ins); q.issue(g[0])
    ps(2)
    e(f'''
    v_add_u32 v1, s22, v30
    v_lshlrev_b32 v1, 2, v1
    s_mov_b32 s18, {CS_G}
    s_mov_b32 s19, {CS_U}
    ''')
    for b in range(14):
        e(f'buffer_load_dword a{CSA+4*b}, v1, s[24:27], s{18 + b//7} offen offset:{(b%7)*64}')
        q.issue('cs')
    e(f'''
    v_mul_u32_u24 v{V_ST}, {LDW}, v28
    v_and_b32 v1, 1, v31
    v_lshl_add_u32 v{V_ST}, v1, 5, v{V_ST}
    v_lshrrev_b32 v1, 1, v31
    v_lshl_add_u32 v{V_ST}, v1, 4, v{V_ST}
    s_lshl_b32 s19, s22, 1
    v_add_u32 v{V_ST}, s19, v{V_ST}
    v_lshrrev_b32 v1, 1, v30          ; (row>>1)&7
    v_lshlrev_b32 v3, 7, v30
    v_add_u32 v3, s40, v3
    v_xor_b32 v{V_XRD}, v31, v1
    v_xor_b32 v{V_XRD+1}, 4, v{V_XRD}
    v_lshl_add_u32 v{V_XRD}, v{V_XRD}, 4, v3
    v_lshl_add_u32 v{V_XRD+1}, v{V_XRD+1}, 4, v3
    v_mul_u32_u24 v1, 1920, v31
    v_bfe_u32 v3, v2, 2, 2
    v_mul_u32_u24 v3, 224, v3
    v_add_u32 v1, v1, v3
    v_and_b32 v3, 3, v2
    v_lshl_add_u32 v1, v3, 3, v1
    v_add_u32 v{V_WRD}, {WBASE}, v1
    s_mov_b32 s36, 0
    s_mov_b32 s37, 0
    s_mov_b32 s42, 0
    s_mov_b32 s48, {WHALF}
    s_mov_b32 s49, {(-(NWS-1)*WHALF) & 0xffffffff:#x}
    s_mov_b32 s50, {XSLOT}
    s_mov_b32 s51, {(-(NXS-1)*XSLOT) & 0xffffffff:#x}
    ''')
    for b in range(14):
        for i in range(1, 4): e(f'v_accvgpr_write_b32 a{CSA+4*b+i}, 0')
    for tb in range(4):
        for i in range(1, 4): e(f'v_accvgpr_write_b32 a{NMB+4*tb+i}, 0')
    n = q.wait_for({'st'})
    e(f's_waitcnt vmcnt({n})')
    C1 = -2.0 * 0.7978845608028654 * 1.4426950408889634
    C2 = C1 * 0.044715
    e(f's_mov_b32 s44, {f2u(C1):#x}')
    e(f's_mov_b32 s45, {f2u(C2):#x}')
    e(f's_mov_b32 s46, {f2u(1.0/1024):#x}')
    e(f's_mov_b32 s47, {f2u(1e-5):#x}')
    e('v_cmp_gt_u32 vcc, 16, v2')
    R4 = range(4)
    rr = lambda tb: 64 + tb * 8
    def each(fmt):
        for tb in R4:
            r = rr(tb); k = V_K + tb * 3
            e(eval("f'''" + fmt + "'''", {'r': r, 'k': k, 'tb': tb, 'NMB': NMB}))
    each('v_pk_add_f32 v[{r}:{r+1}], v[{r}:{r+1}], v[{r+2}:{r+3}]')
    each('v_pk_add_f32 v[{r+4}:{r+5}], v[{r+4}:{r+5}], v[{r+6}:{r+7}]')
    each('v_pk_add_f32 v[{r}:{r+1}], v[{r}:{r+1}], v[{r+4}:{r+5}]')
    for sw in ('v_permlane32_swap_b32', 'v_permlane16_swap_b32'):
        each('v_mov_b32 v{r+2}, v{r}')
        each('v_mov_b32 v{r+3}, v{r+1}')
        each(sw + ' v{r}, v{r+2}')
        each(sw + ' v{r+1}, v{r+3}')
        each('v_pk_add_f32 v[{r}:{r+1}], v[{r}:{r+1}], v[{r+2}:{r+3}]')
    each('v_mul_f32 v{r}, s46, v{r}')
    each('v_mul_f32 v{r+1}, s46, v{r+1}')
    each('v_fma_f32 v{r+1}, -v{r}, v{r}, v{r+1}')
    each('v_max_f32 v{r+1}, 0, v{r+1}')
    each('v_cvt_pk_bf16_f32 v{r+2}, v{r+1}, v{r+1}')
    each('v_and_b32 v{r+2}, 0xffff0000, v{r+2}')
    each('v_add_f32 v{r+2}, s47, v{r+2}')
    each('v_cvt_pk_bf16_f32 v{r+2}, v{r+2}, v{r+2}')
    each('v_and_b32 v{r+2}, 0xffff0000, v{r+2}')
    each('v_sqrt_f32 v{r+2}, v{r+2}')
    each('v_cvt_pk_bf16_f32 v{r+4}, -v{r}, -v{r}')
    each('v_cvt_pk_bf16_f32 v{r+2}, v{r+2}, v{r+2}')
    each('v_and_b32 v{r+2}, 0xffff0000, v{r+2}')
    each('v_rcp_f32 v{r+3}, v{r+2}')
    each('v_cndmask_b32 v{r+4}, 0, v{r+4}, vcc')
    each('v_mul_f32 v{k+2}, v{r+2}, v{r+2}')
    each('v_mul_f32 v{k}, s44, v{r+3}')
    each('v_mul_f32 v{k+1}, v{r+3}, v{r+3}')
    each('v_mul_f32 v{k+1}, v{k+1}, v{r+3}')
    each('v_mul_f32 v{k+1}, s45, v{k+1}')
    each('v_accvgpr_write_b32 a{NMB+4*tb}, v{r+4}')
    ps(3)
    def mfma(b, tb, p, c=None):
        a = acc(b, tb)
        cc = f'v[{a}:{a+3}]' if c is None else c
        return f'v_mfma_f32_16x16x32_bf16 v[{a}:{a+3}], a[{wfrag(p,b)}:{wfrag(p,b)+3}], a[{xfrag(p,tb)}:{xfrag(p,tb)+3}], {cc}'
    def reads(p, s):
        g = []
        x = lambda tb: [f'ds_read_b128 a[{xfrag(p,tb)}:{xfrag(p,tb)+3}], v{V_XRD+s} offset:{tb*2048}']
        def w(b, h):
            off = (b // 7) * WREG + 4 * h * 224 + (b % 7) * 32
            return [f'ds_read_b64_tr_b16 a[{wfrag(p,b)+2*h}:{wfrag(p,b)+2*h+1}], v{V_WRD} offset:{off}']
        g.append(x(0)); g.append(w(0, 0)); g.append(w(0, 1)); g.append(x(1)); g.append(x(2)); g.append(x(3))
        for b in range(1, 14):
            g.append(w(b, 0)); g.append(w(b, 1))
        return g
    n = q.wait_for({'X0', 'W0', 'W1'})
    e(f's_waitcnt vmcnt({n})')
    e('s_barrier')
    st(1); ps(4)
    if stamp: e('s_waitcnt lgkmcnt(0)')
    for g in reads(0, 0): e.ext(g)
    nstag = 4 if opts.get('stagger') else 1
    plan = []
    for t in range(NSTEP):
        plan.append(take(t, 4 if t < 3 else 2))
    assert not pend
    q0 = list(q.q)
    def main_loop(w):
        q.q = list(q0)
        bodies = []
        for u in range(NB):
            L = []
            for s in range(2):
                t = 2 * u + s; p = s
                ms = [mfma(b, tb, p, '0' if t == 0 else None) for b in range(14) for tb in range(4)]
                last = (t == NSTEP - 1)
                step = ['s_waitcnt lgkmcnt(0)']
                nb = opts.get('bar_after', 3)
                rd = []
                pre = []
                if not last:
                    pre = [f's_add_u32 s37, s37, {WHALF}', f's_cmp_eq_u32 s37, {WHALF*NWS}', 's_cselect_b32 s43, s49, s48',
                           's_cselect_b32 s37, 0, s37', f'v_add_u32 v{V_WRD}, s43, v{V_WRD}']
                    if s == 1:
                        pre += [f's_add_u32 s36, s36, {XSLOT}', f's_cmp_eq_u32 s36, {XSLOT*NXS}', 's_cselect_b32 s42, s51, s50',
                                's_cselect_b32 s36, 0, s36', f'v_add_u32 v{V_XRD}, s42, v{V_XRD}']
                    else:
                        pre += [f'v_add_u32 v{V_XRD+1}, s42, v{V_XRD+1}']
                    rd = reads(p ^ 1, s ^ 1)
                    if opts.get('noread'): rd = []
                dm = []
                for g in plan[t]:
                    for ins in mk[g[1]](): dm.append((ins, g[0]))
                if opts.get('nodma'): dm = []
                gaps = [[] for _ in ms]
                gi = 0
                for i, x in enumerate(pre): gaps[min(i // 4, nb - 1)].append(x)
                if t > 0 and not last:
                    bar = {f'W{t+1}'} | ({f'X{u+1}'} if s == 1 else set())
                    n = q.wait_for(bar)
                    gaps[nb - 1] += [f's_waitcnt vmcnt({n})'] + ([] if opts.get('nobar') else ['s_barrier'])
                elif t == 0:
                    pass
                rstart = nb if t > 0 else nb
                rp = opts.get('rper', 1)
                for i, g in enumerate(rd): gaps[rstart + i // rp].extend(g)
                if dm:
                    d0 = opts.get('dstart', nb + 1) + w * opts.get('stagger', 0)
                    span = len(ms) - 2 - opts.get('dstart', nb + 1) - (nstag - 1) * opts.get('stagger', 0)
                    for i, (ins, tag) in enumerate(dm):
                        gaps[d0 + (i * span) // len(dm)].extend(ins); q.issue(tag)
                for m, g in zip(ms, gaps): step.append(m); step.extend(g)
                L += step
            bodies.append(L)
        return loopify(bodies, f'{name}_L{w}', 38)
    if nstag == 1:
        e.ext(main_loop(0))
    else:
        for w in range(4):
            if w < 3:
                e(f's_cmp_lg_u32 s20, {w}'); e(f's_cbranch_scc1 {name}_W{w+1}')
            e.ext(main_loop(w))
            if w < 3:
                e(f's_branch {name}_join'); e(f'{name}_W{w+1}:')
        e(f'{name}_join:')
    e('s_waitcnt vmcnt(0)')
    for b in range(14):
        for tb in range(4):
            a = acc(b, tb)
            e(f'v_mfma_f32_16x16x32_bf16 v[{a}:{a+3}], a[{CSA+4*b}:{CSA+4*b+3}], a[{NMB+4*tb}:{NMB+4*tb+3}], v[{a}:{a+3}]')
    st(2)
    e(f's_add_u32 s24, s16, {WS_H}')
    e('s_addc_u32 s25, s17, 0')
    e(f's_mov_b32 s26, {S*F*2}')
    for tb in range(4): e(f's_mov_b32 s{44+tb}, {tb*16*LDW}')
    e(f'v_and_b32 v1, 1, v31')
    e(f'v_mul_u32_u24 v1, {16*LDW - 32}, v1')
    e(f'v_add_u32 v3, v1, v{V_ST}')
    T = 4
    def ep_pair(t1, t2, voff, soff, imm):
        items = []
        for (b, tb) in (t1, t2):
            for h in range(2):
                items.append((acc(b, tb) + 2*h, acc(b + 7, tb) + 2*h, V_K + tb * 3))
        P = lambda i: f'v[{items[i][0]}:{items[i][0]+1}]'
        U = lambda i: f'v[{items[i][1]}:{items[i][1]+1}]'
        Tm = lambda i: f'v[{T+2*i}:{T+2*i+1}]'
        def bc(r):
            return (f'v[{r}:{r+1}]', 0) if r % 2 == 0 else (f'v[{r-1}:{r}]', 1)
        for i in range(4): e(f'v_pk_mul_f32 {Tm(i)}, {P(i)}, {P(i)}')
        for i in range(4):
            k = items[i][2]; (k2, s2), (k1, s1) = bc(k + 1), bc(k)
            e(f'v_pk_fma_f32 {Tm(i)}, {Tm(i)}, {k2}, {k1} op_sel:[0,{s2},{s1}] op_sel_hi:[1,{s2},{s1}]')
        for i in range(4): e(f'v_pk_mul_f32 {Tm(i)}, {Tm(i)}, {P(i)}')
        for i in range(8): e(f'v_exp_f32 v{T+i}, v{T+i}')
        for i in range(4): e(f'v_pk_mul_f32 {U(i)}, {U(i)}, {P(i)}')
        for i in range(4):
            k3, s3 = bc(items[i][2] + 2)
            e(f'v_pk_fma_f32 {Tm(i)}, {Tm(i)}, {k3}, {k3} op_sel:[0,{s3},{s3}] op_sel_hi:[1,{s3},{s3}]')
        for i in range(8): e(f'v_rcp_f32 v{T+i}, v{T+i}')
        for i in range(4): e(f'v_pk_mul_f32 {U(i)}, {U(i)}, {Tm(i)}')
        r = acc(*t1)
        for i in range(4): e(f'v_cvt_pk_bf16_f32 v{r+i}, v{items[i][1]}, v{items[i][1]+1}')
        e(f'v_permlane16_swap_b32 v{r}, v{r+2}')
        e(f'v_permlane16_swap_b32 v{r+1}, v{r+3}')
        e(f'buffer_store_dwordx4 v[{r}:{r+3}], v{voff}, s[24:27], s{soff} offen offset:{imm}')
    for tb in range(4):
        for bp in range(3):
            ep_pair((2*bp, tb), (2*bp+1, tb), V_ST, 44 + tb, bp * 64)
        if tb % 2 == 1:
            ep_pair((6, tb - 1), (6, tb), 3, 44 + tb - 1, 192)
    if stamp:
        st(3)
        e('s_waitcnt vmcnt(0)')
        st(4)
        e('s_waitcnt lgkmcnt(0)')
        e(f's_add_u32 s24, s16, {60*MB}')
        e('s_addc_u32 s25, s17, 0')
        e('s_mov_b32 s26, 1048576')
        for i in range(10): e(f'v_mov_b32 v{4+i}, s{60+2*i}')
        e('s_lshl_b32 s18, s2, 2')
        e('s_add_u32 s18, s18, s20')
        e('s_lshl_b32 s18, s18, 6')
        e('v_mov_b32 v1, s18')
        e('s_mov_b64 exec, 1')
        e('buffer_store_dwordx4 v[4:7], v1, s[24:27], 0 offen')
        e('buffer_store_dwordx4 v[8:11], v1, s[24:27], 0 offen offset:16')
        e('buffer_store_dwordx4 v[12:15], v1, s[24:27], 0 offen offset:32')
    e(f'{name}_end:')
    e('s_endpgm')
    body = hazard_pass(e.L)
    return kernel_text(name, body, 256, 216), LDS_BYTES
```

```python
from asmlib import *
from common import *

XT = 16384
WT = 8192
STAGE = 2 * XT + 2 * WT
NS = 3
LDS_BYTES = STAGE * NS

def acc(nb, tb): return 32 + (nb * 4 + tb) * 4
def xfrag(p, tb): return 96 + p * 32 + tb * 4
def wfrag(p, nb): return 96 + p * 32 + 16 + nb * 4
V_RES = 160
V_TMP = 176
V_XOFF = 4
V_WOFF = 8
V_XRD = 12
V_WRD = 14
V_ST = 18; V_SST = 19; V_EX = 20; V_EXR = 21

def gen(name, K, a_src, w_arg, res_src, out_dst, st_off, opts=None):
    opts = opts or {}
    e = Asm()
    stamp = opts.get('stamp')
    def st(i):
        if stamp: e(f's_memtime s[{60+4*i}:{61+4*i}]'); e(f's_memrealtime s[{62+4*i}:{63+4*i}]')
    LDA = K * 2
    NBODY = K // 128
    NSTEP = 2 * NBODY
    st(0)
    e(f'''
    s_cmp_ge_u32 s2, 256
    s_cbranch_scc1 {name}_end
    s_load_dwordx2 s[12:13], s[0:1], {w_arg}
    s_load_dwordx2 s[16:17], s[0:1], 80
    ''')
    if res_src[0] == 'arg': e(f's_load_dwordx2 s[4:5], s[0:1], {res_src[1]}')
    if out_dst[0] == 'arg': e(f's_load_dwordx2 s[6:7], s[0:1], {out_dst[1]}')
    e(f'''
    v_lshrrev_b32 v1, 6, v0
    v_and_b32 v2, 63, v0
    v_readfirstlane_b32 s20, v1
    s_and_b32 s21, s2, 7
    s_lshr_b32 s22, s2, 3
    s_lshr_b32 s23, s21, 1
    s_lshl_b32 s23, s23, 2
    s_and_b32 s18, s22, 3
    s_add_u32 s23, s23, s18
    s_and_b32 s18, s21, 1
    s_lshl_b32 s18, s18, 3
    s_lshr_b32 s19, s22, 2
    s_add_u32 s22, s18, s19
    s_lshl_b32 s23, s23, 7           ; m0
    s_and_b32 s28, s20, 1
    s_lshr_b32 s29, s20, 1           ; wk
    s_lshl_b32 s18, s28, 6
    s_add_u32 s33, s23, s18
    v_and_b32 v30, 15, v2
    v_lshrrev_b32 v31, 4, v2
    v_lshrrev_b32 v3, 3, v2
    v_add_u32 v3, s33, v3
    v_mul_u32_u24 v3, {LDA}, v3
    s_lshl_b32 s18, s29, 7
    v_add_u32 v3, s18, v3
    v_and_b32 v1, 7, v2
    v_xor_b32 v1, v1, v31
    v_lshl_add_u32 v{V_XOFF}, v1, 4, v3
    v_xor_b32 v1, 4, v1
    v_lshl_add_u32 v{V_XOFF+1}, v1, 4, v3
    v_add_u32 v{V_XOFF+1}, {8*LDA - 1024}, v{V_XOFF+1}
    v_add_u32 v{V_XOFF+2}, {16*LDA - 2048}, v{V_XOFF}
    v_add_u32 v{V_XOFF+3}, {16*LDA - 2048}, v{V_XOFF+1}
    v_lshrrev_b32 v3, 3, v2
    s_lshl_b32 s18, s29, 6
    s_lshl_b32 s19, s28, 5
    s_add_u32 s18, s18, s19
    v_add_u32 v3, s18, v3
    v_lshlrev_b32 v3, 11, v3
    s_lshl_b32 s18, s22, 7
    v_add_u32 v3, s18, v3            ; + n0*2
    v_and_b32 v1, 1, v31
    v_lshlrev_b32 v1, 1, v1
    v_and_b32 v28, 7, v2
    v_xor_b32 v1, v1, v28
    v_lshl_add_u32 v{V_WOFF}, v1, 4, v3
    v_xor_b32 v1, 4, v1
    v_lshl_add_u32 v{V_WOFF+1}, v1, 4, v3
    v_add_u32 v{V_WOFF+1}, {8*2048 - 1024}, v{V_WOFF+1}
    v_add_u32 v{V_WOFF+2}, {16*2048 - 2048}, v{V_WOFF}
    v_add_u32 v{V_WOFF+3}, {16*2048 - 2048}, v{V_WOFF+1}
    s_mov_b32 s30, 0
    s_mov_b32 s31, {32*LDA}
    s_mov_b32 s32, 0
    s_mov_b32 s34, 0
    s_lshl_b32 s40, s20, 13
    s_add_u32 s52, s40, 4096
    s_lshl_b32 s41, s20, 12
    s_add_u32 s41, s41, {2*XT}
    s_mov_b32 s10, {S*LDA}
    s_mov_b32 s11, 0x00020000
    s_mov_b32 s14, {K*D*2}
    s_mov_b32 s15, 0x00020000
    s_mov_b32 s26, {S*D*2}
    s_mov_b32 s27, 0x00020000
    s_waitcnt lgkmcnt(0)
    s_add_u32 s8, s16, {a_src[1]}
    s_addc_u32 s9, s17, 0
    ''')
    if res_src[0] == 'arg': e('s_mov_b32 s24, s4\ns_mov_b32 s25, s5')
    else: e(f's_add_u32 s24, s16, {res_src[1]}\ns_addc_u32 s25, s17, 0')
    q = DmaQ()
    aux = opts.get('aux', ''); auxw = opts.get('auxw', aux)
    def dma_x(half):
        g = []
        for j in range(4):
            ins = [f'buffer_load_dwordx4 v{V_XOFF+j}, s[8:11], s{30+half} offen offset:{j*1024} {aux} lds']
            if j == 0: ins = [f's_add_u32 m0, s34, s{40 if half == 0 else 52}', 's_nop 0'] + ins
            if j == 3: ins += [f's_add_u32 s{30+half}, s{30+half}, 256']
            g.append(ins)
        return g
    def dma_w():
        g = []
        for j in range(4):
            ins = [f'buffer_load_dwordx4 v{V_WOFF+j}, s[12:15], s32 offen offset:{j*1024} {auxw} lds']
            if j == 0: ins = ['s_add_u32 m0, s34, s41', 's_nop 0'] + ins
            if j == 1: ins += [f's_add_u32 s34, s34, {STAGE}', f's_cmp_eq_u32 s34, {STAGE*NS}', 's_cselect_b32 s34, 0, s34']
            if j == 3: ins += [f's_add_u32 s32, s32, {128*2048}']
            g.append(ins)
        return g
    mk = {'ta': lambda: dma_x(0), 'tb': lambda: dma_x(1), 'tw': dma_w}
    pend = []
    for u in range(NBODY):
        for k in ('ta', 'tb', 'tw'): pend.append((f'T{u}', k, 2*u - 1, 2*(u - NS) + 1))
    pl = Planner(pend)
    for g in pl.take(-1, 3):
        for ins in mk[g[1]](): e.ext(ins); q.issue(g[0])
    e(f'''
    s_lshl_b32 s18, s29, 5
    s_add_u32 s18, s18, s33
    v_add_u32 v28, s18, v30           ; token (i=0)
    v_lshlrev_b32 v29, 11, v28
    s_lshl_b32 s18, s22, 7
    v_add_u32 v29, s18, v29           ; token*2048 + n0*2
    v_lshl_add_u32 v1, v31, 3, v29
    s_mov_b32 s19, {16*2048}
    ''')
    for i in range(2):
        for nb in range(4):
            r = V_RES + (i * 4 + nb) * 2
            e(f'buffer_load_dwordx2 v[{r}:{r+1}], v1, s[24:27], {"0" if i == 0 else "s19"} offen offset:{nb*32}')
            q.issue('res')
    for g in pl.take(-1, 3):
        for ins in mk[g[1]](): e.ext(ins); q.issue(g[0])
    e(f'''
    v_and_b32 v1, 1, v31
    v_lshl_add_u32 v{V_ST}, v1, 5, v29
    v_lshrrev_b32 v1, 1, v31
    v_lshl_add_u32 v{V_ST}, v1, 4, v{V_ST}
    v_lshlrev_b32 v{V_SST}, 7, v28
    s_lshl_b32 s18, s22, 3
    v_add_u32 v{V_SST}, s18, v{V_SST}
    v_lshrrev_b32 v1, 1, v30
    v_lshlrev_b32 v3, 7, v30
    v_add_u32 v3, s40, v3
    v_xor_b32 v{V_XRD}, v31, v1
    v_xor_b32 v{V_XRD+1}, 4, v{V_XRD}
    v_lshl_add_u32 v{V_XRD}, v{V_XRD}, 4, v3
    v_lshl_add_u32 v{V_XRD+1}, v{V_XRD+1}, 4, v3
    v_bfe_u32 v1, v2, 2, 2            ; r
    v_lshl_add_u32 v3, v31, 3, v1
    v_lshlrev_b32 v3, 7, v3
    s_lshl_b32 s18, s29, 13
    s_add_u32 s18, s18, {2*XT}
    v_add_u32 v3, s18, v3
    v_and_b32 v28, 1, v2
    v_lshl_add_u32 v3, v28, 3, v3
    v_and_b32 v1, 2, v1               ; ((r>>1)&1)*2
    v_and_b32 v28, 1, v31
    v_lshl_add_u32 v1, v28, 2, v1     ; f
    v_bfe_u32 v28, v2, 1, 1           ; c>>1
    v_or_b32 v1, v1, v28
    ''')
    for nb in range(4):
        e(f'v_xor_b32 v28, {2*nb}, v1')
        e(f'v_lshl_add_u32 v{V_WRD+nb}, v28, 4, v3')
    e(f'''
    v_lshlrev_b32 v{V_EX}, 4, v2
    s_lshl_b32 s18, s20, 13
    v_add_u32 v{V_EX}, s18, v{V_EX}
    v_xor_b32 v{V_EXR}, {2 << 13}, v{V_EX}
    s_mov_b32 s36, 0
    s_mov_b32 s42, 0
    s_mov_b32 s50, {STAGE}
    s_mov_b32 s51, {(-(NS-1)*STAGE) & 0xffffffff:#x}
    ''')
    def mfma(nb, tb, p, c=None):
        a = acc(nb, tb)
        cc = f'v[{a}:{a+3}]' if c is None else c
        return f'v_mfma_f32_16x16x32_bf16 v[{a}:{a+3}], v[{wfrag(p,nb)}:{wfrag(p,nb)+3}], v[{xfrag(p,tb)}:{xfrag(p,tb)+3}], {cc}'
    def reads(p, s):
        x = lambda tb: [f'ds_read_b128 v[{xfrag(p,tb)}:{xfrag(p,tb)+3}], v{V_XRD+s} offset:{tb*2048}']
        w = lambda nb, h: [f'ds_read_b64_tr_b16 v[{wfrag(p,nb)+2*h}:{wfrag(p,nb)+2*h+1}], v{V_WRD+nb} offset:{(32*s+4*h)*128}']
        g = [x(0), w(0, 0), w(0, 1), x(1), x(2), x(3)]
        for nb in range(1, 4): g += [w(nb, 0), w(nb, 1)]
        return g
    n = q.wait_for({'T0'})
    e(f's_waitcnt vmcnt({n})')
    e('s_barrier')
    st(1)
    if stamp: e('s_waitcnt lgkmcnt(0)')
    for g in reads(0, 0): e.ext(g)
    bodies = []
    for u in range(NBODY):
        L = []
        for s in range(2):
            t = 2 * u + s; p = s
            last = (t == NSTEP - 1)
            ms = [mfma(nb, tb, p, '0' if t == 0 else None) for nb in range(4) for tb in range(4)]
            pre = []; bar = []; rd = []
            if not last:
                if s == 1:
                    pre = [f's_add_u32 s36, s36, {STAGE}', f's_cmp_eq_u32 s36, {STAGE*NS}', 's_cselect_b32 s42, s51, s50',
                           's_cselect_b32 s36, 0, s36', f'v_add_u32 v{V_XRD}, s42, v{V_XRD}'] + \
                          [f'v_add_u32 v{V_WRD+i}, s42, v{V_WRD+i}' for i in range(4)]
                    n = q.wait_for({f'T{u+1}'})
                    bar = [f's_waitcnt vmcnt({n})', 's_barrier']
                else:
                    pre = [f'v_add_u32 v{V_XRD+1}, s42, v{V_XRD+1}']
                rd = reads(p ^ 1, s ^ 1)
            gs = pl.take(t, 3 if t == 0 else (2 if s == 1 else 1))
            dm = []
            for g in gs:
                for ins in mk[g[1]](): dm.append(ins); q.issue(g[0])
            L += build_step(ms, pre, bar, rd, dm, [], nb=(3 if s == 1 else 1), rper=opts.get('rper', 1))
        bodies.append(L)
    assert not pl.pend
    e.ext(loopify(bodies, f'{name}_L', 38))
    st(2)
    e('s_barrier')
    e('s_nop 7')
    e('s_cmp_eq_u32 s29, 0')
    e(f's_cbranch_scc1 {name}_wk0')
    def exch(wk):
        keep = [2*wk, 2*wk+1]; send = [2 - 2*wk, 3 - 2*wk]
        for i, tb in enumerate(send):
            for nb in range(4):
                a = acc(nb, tb)
                e(f'ds_write_b128 v{V_EX}, v[{a}:{a+3}] offset:{(i*4+nb)*1024}')
        e('s_waitcnt lgkmcnt(0)')
        e('s_barrier')
        for i in range(2):
            for nb in range(4):
                r = 96 + (i*4+nb)*4
                e(f'ds_read_b128 v[{r}:{r+3}], v{V_EXR} offset:{(i*4+nb)*1024}')
        e('s_waitcnt vmcnt(0)')
        for i in range(2):
            for nb in range(4):
                r = V_RES + (i*4+nb)*2; tm = V_TMP + (i*4+nb)*4
                e(f'v_lshlrev_b32 v{tm}, 16, v{r}')
                e(f'v_and_b32 v{tm+1}, 0xffff0000, v{r}')
                e(f'v_lshlrev_b32 v{tm+2}, 16, v{r+1}')
                e(f'v_and_b32 v{tm+3}, 0xffff0000, v{r+1}')
        for i, tb in enumerate(keep):
            for nb in range(4):
                a = acc(nb, tb); tm = V_TMP + (i*4+nb)*4
                e(f'v_pk_add_f32 v[{tm}:{tm+1}], v[{tm}:{tm+1}], v[{a}:{a+1}]')
                e(f'v_pk_add_f32 v[{tm+2}:{tm+3}], v[{tm+2}:{tm+3}], v[{a+2}:{a+3}]')
    exch(1)
    e(f's_branch {name}_ex')
    e(f'{name}_wk0:')
    exch(0)
    e(f'{name}_ex:')
    if out_dst[0] == 'arg': e('s_mov_b32 s24, s6\ns_mov_b32 s25, s7')
    else: e(f's_add_u32 s24, s16, {out_dst[1]}\ns_addc_u32 s25, s17, 0')
    e('s_waitcnt lgkmcnt(0)')
    for i in range(2):
        for nb in range(4):
            r = 96 + (i*4+nb)*4; tm = V_TMP + (i*4+nb)*4
            e(f'v_pk_add_f32 v[{tm}:{tm+1}], v[{tm}:{tm+1}], v[{r}:{r+1}]')
            e(f'v_pk_add_f32 v[{tm+2}:{tm+3}], v[{tm+2}:{tm+3}], v[{r+2}:{r+3}]')
    for i in range(2):
        for nb in range(4):
            tm = V_TMP + (i*4+nb)*4; o = 32 + i*8 + nb*2
            e(f'v_cvt_pk_bf16_f32 v{o}, v{tm}, v{tm+1}')
            e(f'v_cvt_pk_bf16_f32 v{o+1}, v{tm+2}, v{tm+3}')
    if st_off is not None:
        e('s_mov_b32 s18, 0x3f803f80')
        for i in range(2):
            e(f'v_mov_b32 v{48+2*i}, 0'); e(f'v_mov_b32 v{49+2*i}, 0')
        for d in range(8):
            for i in range(2):
                o = 32 + i*8 + d
                e(f'v_dot2_f32_bf16 v{48+2*i}, v{o}, s18, v{48+2*i}')
                e(f'v_dot2_f32_bf16 v{49+2*i}, v{o}, v{o}, v{49+2*i}')
    for i in range(2):
        for pr in range(2):
            o = 32 + i*8 + pr*4
            e(f'v_permlane16_swap_b32 v{o}, v{o+2}')
            e(f'v_permlane16_swap_b32 v{o+1}, v{o+3}')
            e(f'buffer_store_dwordx4 v[{o}:{o+3}], v{V_ST}, s[24:27], {"0" if i == 0 else "s19"} offen offset:{pr*64}')
    if st_off is not None:
        for sw in ('v_permlane32_swap_b32', 'v_permlane16_swap_b32'):
            for j in range(4): e(f'v_mov_b32 v{52+j}, v{48+j}')
            for j in range(4): e(f'{sw} v{48+j}, v{52+j}')
            for j in range(2): e(f'v_pk_add_f32 v[{48+2*j}:{49+2*j}], v[{48+2*j}:{49+2*j}], v[{52+2*j}:{53+2*j}]')
        e(f's_add_u32 s24, s16, {st_off}')
        e('s_addc_u32 s25, s17, 0')
        e(f's_mov_b32 s26, {S*128}')
        e('s_mov_b64 exec, 0xffff')
        e(f'buffer_store_dwordx2 v[48:49], v{V_SST}, s[24:27], 0 offen')
        e(f'buffer_store_dwordx2 v[50:51], v{V_SST}, s[24:27], 0 offen offset:{16*128}')
        e('s_mov_b64 exec, -1')
    if stamp:
        st(3); e('s_waitcnt vmcnt(0)'); st(4); stamp_out(e)
    e(f'{name}_end:')
    e('s_endpgm')
    body = hazard_pass(e.L)
    return kernel_text(name, body, 208, 0), LDS_BYTES
```

```python
import sys
import build, k0, k1, k1b, kd, k3
from common import *
def make(opts=None):
    opts = opts or {}
    o = lambda k: opts.get(k, {})
    K = []; L = []
    def add(name, kt_lds, grid):
        kt, lds = kt_lds
        K.append(kt); return (name, grid, 256, lds)
    l0 = add('k0_kernel', k0.gen('k0_kernel', o('k0')), k0.NCS + k0.NST)
    l1a = add('k1a_kernel', k1.gen('k1a_kernel', ('arg', 0), o('k1')), 256)
    l1c = add('k1c_kernel', k1.gen('k1c_kernel', ('ws', WS_X2), o('k1')), 256)
    l1b = add('k1b_kernel', k1b.gen('k1b_kernel', o('k1b')), 256)
    l2a = add('k2a_kernel', kd.gen('k2a_kernel', 1024, ('ws', WS_O), 24, ('arg', 0), ('ws', WS_X1), WS_ST1, o('k2')), 256)
    l2b = add('k2b_kernel', kd.gen('k2b_kernel', 1024, ('ws', WS_O), 24, ('ws', WS_X2), ('ws', WS_X1), WS_ST1, o('k2')), 256)
    l3 = add('k3_kernel', k3.gen('k3_kernel', o('k3')), 256)
    l4a = add('k4a_kernel', kd.gen('k4a_kernel', 3584, ('ws', WS_H), 56, ('ws', WS_X1), ('ws', WS_X2), WS_ST0, o('k4')), 256)
    l4b = add('k4b_kernel', kd.gen('k4b_kernel', 3584, ('ws', WS_H), 56, ('ws', WS_X1), ('arg', 64), None, o('k4')), 256)
    return build.assemble_file([l0, l1a, l1b, l2a, l3, l4a, l1c, l1b, l2b, l3, l4b], K)
if __name__ == '__main__':
    out = sys.argv[1] if len(sys.argv) > 1 else 'interleave_layers__linear_kernel_hedgehog__geglu_ffn__prompt.s'
    opts = eval(sys.argv[2]) if len(sys.argv) > 2 else {}
    open(out, 'w').write(make(opts))
```

```python
MB = 1 << 20
WS_X1 = 0
WS_X2 = 4 * MB
WS_O = 8 * MB
WS_H = 12 * MB
WS_ST0 = 28 * MB
WS_ST1 = 28 * MB + 256 * 1024
WS_CS = 29 * MB
CS_QKV = WS_CS
CS_G = WS_CS + 3072 * 4
CS_U = CS_G + 3584 * 4
WS_KVP = 30 * MB
WS_PHIQ = 36 * MB
WS_SIZE = 268435456
S, D, F = 2048, 1024, 3584

class DmaQ:
    def __init__(self): self.q = []
    def issue(self, tag): self.q.append(tag)
    def wait_for(self, tags):
        last = -1
        for i, t in enumerate(self.q):
            if t in tags: last = i
        n = len(self.q) - 1 - last
        if last >= 0: self.q = self.q[last + 1:]
        return min(n, 63)

def loopify(bodies, label, cnt_sreg):
    out = []
    i = 0; k = 0
    while i < len(bodies):
        j = i
        while j + 1 < len(bodies) and bodies[j + 1] == bodies[i]: j += 1
        n = j - i + 1
        if n >= 2:
            out.append(f's_mov_b32 s{cnt_sreg}, {n}')
            out.append(f'{label}_{k}:')
            out.extend(bodies[i])
            out.append(f's_sub_u32 s{cnt_sreg}, s{cnt_sreg}, 1')
            out.append(f's_cmp_lg_u32 s{cnt_sreg}, 0')
            out.append(f's_cbranch_scc1 {label}_{k}')
            k += 1
        else:
            out.extend(bodies[i])
        i = j + 1
    return out

def stats_code(e, srd, voff_tok, soff, tmp, out_negm, out_sd, hi_mask_vcc=True):
    pass

import struct
f2u = lambda f: struct.unpack('<I', struct.pack('<f', f))[0]

class Planner:
    def __init__(self, pend): self.pend = list(pend)
    def take(self, step, maxg):
        out = []
        while len(out) < maxg:
            cand = None; seen = set()
            for g in self.pend:
                cls = g[1][0]
                if cls in seen: continue
                seen.add(cls)
                if g[3] <= step and (cand is None or g[2] < cand[2]): cand = g
            if cand is None: break
            self.pend.remove(cand); out.append(cand)
        return out

def build_step(ms, pre, bar, rd, dm, extra, nb=3, rper=1, dstart=None, dshift=0, dmax_shift=0, head=True, dper=None):
    gaps = [[] for _ in ms]
    for i, x in enumerate(pre): gaps[min(i // 4, nb - 1)].append(x)
    gaps[nb - 1] += bar
    for i, g in enumerate(rd): gaps[min(nb + i // rper, len(ms) - 1)].extend(g)
    if dm:
        ds = nb + 1 if dstart is None else dstart
        span = len(ms) - 1 - ds - dmax_shift
        for i, ins in enumerate(dm):
            gi = ds + dshift + ((i * span) // len(dm) if dper is None else int(i / dper))
            gaps[min(gi, len(ms) - 1)].extend(ins)
    if extra:
        cap = 2
        while sum(max(0, cap - len(g)) for g in gaps[nb:]) < len(extra): cap += 1
        ex = list(extra)
        for g in gaps[nb:]:
            while ex and len(g) < cap: g.append(ex.pop(0))
    step = ['s_waitcnt lgkmcnt(0)'] if head else []
    for m, g in zip(ms, gaps): step.append(m); step.extend(g)
    return step

def stamp_out(e, nw_shift=2):
    e('s_waitcnt lgkmcnt(0)')
    e(f's_add_u32 s24, s16, {60*MB}')
    e('s_addc_u32 s25, s17, 0')
    e('s_mov_b32 s26, 1048576')
    for i in range(10): e(f'v_mov_b32 v{4+i}, s{60+2*i}')
    e(f's_lshl_b32 s18, s2, {nw_shift}')
    e('s_add_u32 s18, s18, s20')
    e('s_lshl_b32 s18, s18, 6')
    e('v_mov_b32 v1, s18')
    e('s_mov_b64 exec, 1')
    e('buffer_store_dwordx4 v[4:7], v1, s[24:27], 0 offen')
    e('buffer_store_dwordx4 v[8:11], v1, s[24:27], 0 offen offset:16')
    e('buffer_store_dwordx4 v[12:15], v1, s[24:27], 0 offen offset:32')

def stats_finish(rr, n=4):
    L = []
    def each(fmt):
        for tb in range(n):
            r = rr(tb)
            L.append(eval("f'''" + fmt + "'''", {'r': r}))
    each('v_pk_add_f32 v[{r}:{r+1}], v[{r}:{r+1}], v[{r+2}:{r+3}]')
    each('v_pk_add_f32 v[{r+4}:{r+5}], v[{r+4}:{r+5}], v[{r+6}:{r+7}]')
    each('v_pk_add_f32 v[{r}:{r+1}], v[{r}:{r+1}], v[{r+4}:{r+5}]')
    for sw in ('v_permlane32_swap_b32', 'v_permlane16_swap_b32'):
        each('v_mov_b32 v{r+2}, v{r}')
        each('v_mov_b32 v{r+3}, v{r+1}')
        each(sw + ' v{r}, v{r+2}')
        each(sw + ' v{r+1}, v{r+3}')
        each('v_pk_add_f32 v[{r}:{r+1}], v[{r}:{r+1}], v[{r+2}:{r+3}]')
    each('v_mul_f32 v{r}, s46, v{r}')
    each('v_mul_f32 v{r+1}, s46, v{r+1}')
    each('v_fma_f32 v{r+1}, -v{r}, v{r}, v{r+1}')
    each('v_max_f32 v{r+1}, 0, v{r+1}')
    each('v_cvt_pk_bf16_f32 v{r+2}, v{r+1}, v{r+1}')
    each('v_and_b32 v{r+2}, 0xffff0000, v{r+2}')
    each('v_add_f32 v{r+2}, s47, v{r+2}')
    each('v_cvt_pk_bf16_f32 v{r+2}, v{r+2}, v{r+2}')
    each('v_and_b32 v{r+2}, 0xffff0000, v{r+2}')
    each('v_sqrt_f32 v{r+2}, v{r+2}')
    each('v_cvt_pk_bf16_f32 v{r+4}, -v{r}, -v{r}')
    each('v_cvt_pk_bf16_f32 v{r+2}, v{r+2}, v{r+2}')
    each('v_and_b32 v{r+2}, 0xffff0000, v{r+2}')
    each('v_rcp_f32 v{r+3}, v{r+2}')
    each('v_cndmask_b32 v{r+4}, 0, v{r+4}, vcc')
    return L

KVP_HEAD = 8448
WS_EQ = WS_PHIQ
LOG2E = 1.4426950408889634

def loop_stamps(lines, label0):
    out = []
    for l in lines:
        if l == label0 + ':': out += ['s_memtime s[68:69]', 's_memrealtime s[70:71]', 's_waitcnt lgkmcnt(0)']
        out.append(l)
        if l == 's_cbranch_scc1 ' + label0: out += ['s_memtime s[72:73]', 's_memrealtime s[74:75]']
    return out
```

```python
import struct
f2u = lambda f: struct.unpack('<I', struct.pack('<f', f))[0]
MB = 1 << 20
S, D, F = 2048, 1024, 3584
WS_SIZE = 268435456
LOG2E = 1.4426950408889634
LAYER_STRIDE = 40 * MB
R_O = 0
R_X1 = 4 * MB
R_X2 = 8 * MB
R_H = 12 * MB
R_KVP = 27 * MB
R_KVR = 32 * MB
R_STA = 33 * MB
R_STF = 33 * MB + 512 * 1024
R_PX = 34 * MB
def reg(layer, r): return layer * LAYER_STRIDE + r
WS_CS = 80 * MB
CS_COLS = 10240
CS_PLANE = CS_COLS * 16
WS_FLAGS = 81 * MB
WS_STAMP = 84 * MB
KVP_HEAD = 8448
def flag_off(layer, edge, group): return WS_FLAGS + ((layer * 16 + edge) * 64 + group) * 256
E_A1, E_A2, E_B, E_C, E_D, E_E, E_X, E_CS = range(8)
FLAG_BYTES = 2 * 16 * 64 * 256

class DmaQ:
    def __init__(self): self.q = []
    def issue(self, tag): self.q.append(tag)
    def wait_for(self, tags):
        last = -1
        for i, t in enumerate(self.q):
            if t in tags: last = i
        n = len(self.q) - 1 - last
        if last >= 0: self.q = self.q[last + 1:]
        return min(n, 63)
    def clear(self): self.q = []

def loopify(bodies, label, cnt_sreg):
    out = []; i = 0; k = 0
    while i < len(bodies):
        j = i
        while j + 1 < len(bodies) and bodies[j + 1] == bodies[i]: j += 1
        n = j - i + 1
        if n >= 2:
            out.append(f's_mov_b32 s{cnt_sreg}, {n}')
            out.append(f'{label}_{k}:')
            out.extend(bodies[i])
            out.append(f's_sub_u32 s{cnt_sreg}, s{cnt_sreg}, 1')
            out.append(f's_cmp_lg_u32 s{cnt_sreg}, 0')
            out.append(f's_cbranch_scc1 {label}_{k}')
            k += 1
        else:
            out.extend(bodies[i])
        i = j + 1
    return out

def cost(ins):
    op = ins.split()[0]
    if op.startswith('s_') or op.endswith(':'): return 0.7
    if op in ('v_exp_f32', 'v_rcp_f32', 'v_sqrt_f32', 'v_rsq_f32') or 'permlane' in op: return 2
    return 1

def build_step(ms, needs, nprev, pre, bar, rd, dm, extra, nb=3, dstart=None, dper=None):
    n = len(ms)
    gaps = [[] for _ in ms]
    for i, x in enumerate(pre): gaps[min(i // 3, nb - 1)].append(x)
    if bar:
        gaps[nb - 1] += bar
    for i, g in enumerate(rd): gaps[min(nb + i, n - 1)].append(g)
    if dm:
        ds = nb + 1 if dstart is None else dstart
        span = n - 1 - ds
        for i, ins in enumerate(dm):
            gi = ds + ((i * span) // len(dm) if dper is None else int(i / dper))
            gaps[min(gi, n - 1)].extend(ins)
    if extra:
        load = lambda g: sum(cost(x) for x in g)
        cap = 2
        while sum(max(0, cap - load(g)) for g in gaps[nb:]) < sum(cost(x) for x in extra) + 2: cap += 0.5
        ex = list(extra)
        for g in gaps[nb:]:
            while ex and load(g) + cost(ex[0]) <= cap + 0.01: g.append(ex.pop(0))
        gaps[-1].extend(ex)
    step = []
    done = -1
    newi = 0
    for i, (m, g) in enumerate(zip(ms, gaps)):
        want = needs[i]
        if bar and i == nb - 1: pass
        if want > done:
            allowed = (nprev - 1 - want) + newi
            if allowed > 15: allowed = 15;
            step.append(f's_waitcnt lgkmcnt({allowed})')
            done = nprev - 1 - (allowed - newi) if allowed - newi >= 0 else nprev - 1
        step.append(m)
        for x in g:
            if x == 's_barrier' and done < nprev - 1:
                assert newi == 0
                step.append('s_waitcnt lgkmcnt(0)'); done = nprev - 1
            step.append(x)
            if x.startswith('ds_'): newi += 1
    return step

def stats_finish(rr, n=4, pk=False):
    L = []
    def each(fmt):
        for tb in range(n):
            L.append(eval("f'''" + fmt + "'''", {'r': rr(tb)}))
    def add2(d, a, b):
        if pk: each('v_pk_add_f32 v[{r+%d}:{r+%d}], v[{r+%d}:{r+%d}], v[{r+%d}:{r+%d}]' % (d, d+1, a, a+1, b, b+1))
        else:
            each('v_add_f32 v{r+%d}, v{r+%d}, v{r+%d}' % (d, a, b)); each('v_add_f32 v{r+%d}, v{r+%d}, v{r+%d}' % (d+1, a+1, b+1))
    add2(0, 0, 2); add2(4, 4, 6); add2(0, 0, 4)
    for sw in ('v_permlane32_swap_b32', 'v_permlane16_swap_b32'):
        each('v_mov_b32 v{r+2}, v{r}')
        each('v_mov_b32 v{r+3}, v{r+1}')
        each(sw + ' v{r}, v{r+2}')
        each(sw + ' v{r+1}, v{r+3}')
        add2(0, 0, 2)
    each('v_mul_f32 v{r}, s46, v{r}')
    each('v_mul_f32 v{r+1}, s46, v{r+1}')
    each('v_fma_f32 v{r+1}, -v{r}, v{r}, v{r+1}')
    each('v_max_f32 v{r+1}, 0, v{r+1}')
    each('v_cvt_pk_bf16_f32 v{r+2}, v{r+1}, v{r+1}')
    each('v_and_b32 v{r+2}, 0xffff0000, v{r+2}')
    each('v_add_f32 v{r+2}, s47, v{r+2}')
    each('v_cvt_pk_bf16_f32 v{r+2}, v{r+2}, v{r+2}')
    each('v_and_b32 v{r+2}, 0xffff0000, v{r+2}')
    each('v_sqrt_f32 v{r+2}, v{r+2}')
    each('v_cvt_pk_bf16_f32 v{r+4}, -v{r}, -v{r}')
    each('v_cvt_pk_bf16_f32 v{r+2}, v{r+2}, v{r+2}')
    each('v_and_b32 v{r+2}, 0xffff0000, v{r+2}')
    each('v_rcp_f32 v{r+3}, v{r+2}')
    return L
```

```python
from asmlib import *
from common import *
LDS_BYTES = 4096
NCS = 48; NST = 128
def gen(name, opts=None):
    opts = opts or {}
    e = Asm()
    e(f'''
    s_cmp_ge_u32 s2, {NCS + NST}
    s_cbranch_scc1 {name}_end
    s_load_dwordx4 s[4:7], s[0:1], 0
    s_load_dwordx2 s[16:17], s[0:1], 80
    v_lshrrev_b32 v1, 6, v0
    v_and_b32 v2, 63, v0
    v_readfirstlane_b32 s20, v1
    s_mov_b32 s11, 0x00020000
    s_mov_b32 s26, {WS_SIZE}
    s_mov_b32 s27, 0x00020000
    s_mov_b32 s18, 0x3f803f80
    s_cmp_ge_u32 s2, {NCS}
    s_cbranch_scc1 {name}_stats
    s_waitcnt lgkmcnt(0)
    s_mov_b32 s24, s16
    s_mov_b32 s25, s17
    s_mov_b32 s8, s6
    s_mov_b32 s9, s7
    s_mov_b32 s10, {D*3*D*2}
    v_lshrrev_b32 v3, 3, v2
    s_lshl_b32 s19, s20, 8
    v_add_u32 v3, s19, v3
    v_mul_u32_u24 v3, {3*D*2}, v3
    v_and_b32 v4, 7, v2
    v_lshl_add_u32 v3, v4, 4, v3
    s_lshl_b32 s19, s2, 7
    v_add_u32 v3, s19, v3
    s_mov_b32 s19, 0
    ''')
    for i in range(32):
        e(f'buffer_load_dwordx4 v[{32+4*i}:{35+4*i}], v3, s[8:11], s19 offen')
        if i < 31: e(f's_add_u32 s19, s19, {8*3*D*2}')
    for i in range(8): e(f'v_mov_b32 v{8+i}, 0')
    for i in range(32):
        e(f's_waitcnt vmcnt({31-i})')
        for j in range(4):
            r = 32 + 4*i + j
            e(f'v_lshlrev_b32 v{16+2*j}, 16, v{r}')
            e(f'v_and_b32 v{17+2*j}, 0xffff0000, v{r}')
        for j in range(4):
            e(f'v_pk_add_f32 v[{8+2*j}:{9+2*j}], v[{8+2*j}:{9+2*j}], v[{16+2*j}:{17+2*j}]')
    for i in range(8): e(f'v_add_f32_dpp v{8+i}, v{8+i}, v{8+i} row_ror:8 row_mask:0xf bank_mask:0xf')
    for sw in ('v_permlane16_swap_b32', 'v_permlane32_swap_b32'):
        for i in range(8): e(f'v_mov_b32 v{16+i}, v{8+i}')
        for i in range(8): e(f'{sw} v{8+i}, v{16+i}')
        for i in range(4): e(f'v_pk_add_f32 v[{8+2*i}:{9+2*i}], v[{8+2*i}:{9+2*i}], v[{16+2*i}:{17+2*i}]')
    e(f'''
    v_lshlrev_b32 v3, 5, v4
    s_lshl_b32 s19, s20, 8
    v_add_u32 v3, s19, v3
    s_mov_b64 exec, 0xff
    ds_write_b128 v3, v[8:11]
    ds_write_b128 v3, v[12:15] offset:16
    s_mov_b64 exec, -1
    s_waitcnt lgkmcnt(0)
    s_barrier
    s_cmp_lg_u32 s20, 0
    s_cbranch_scc1 {name}_end
    v_lshlrev_b32 v3, 2, v2
    ds_read_b32 v8, v3
    ds_read_b32 v9, v3 offset:256
    ds_read_b32 v10, v3 offset:512
    ds_read_b32 v11, v3 offset:768
    v_mov_b32 v13, 0
    v_mov_b32 v14, 0
    v_mov_b32 v15, 0
    s_waitcnt lgkmcnt(0)
    v_add_f32 v8, v8, v9
    v_add_f32 v10, v10, v11
    v_add_f32 v8, v8, v10
    v_cvt_pk_bf16_f32 v9, v8, v8
    v_and_b32 v10, 0xffff0000, v9
    v_sub_f32 v10, v8, v10
    v_cvt_pk_bf16_f32 v12, v8, v10
    v_lshlrev_b32 v3, 4, v2
    s_lshl_b32 s19, s2, 10
    s_add_u32 s19, s19, {WS_CS}
    buffer_store_dwordx4 v[12:15], v3, s[24:27], s19 offen
    s_endpgm
    {name}_stats:
    s_waitcnt lgkmcnt(0)
    s_mov_b32 s24, s16
    s_mov_b32 s25, s17
    s_mov_b32 s8, s4
    s_mov_b32 s9, s5
    s_mov_b32 s10, {S*D*2}
    s_sub_u32 s21, s2, {NCS}
    s_lshl_b32 s22, s21, 2
    s_add_u32 s22, s22, s20
    s_lshl_b32 s23, s22, 2
    v_lshlrev_b32 v3, 5, v2
    s_lshl_b32 s19, s23, 11
    ''')
    for r in range(4):
        for h in range(2):
            e(f'buffer_load_dwordx4 v[{32+r*8+h*4}:{35+r*8+h*4}], v3, s[8:11], s19 offen offset:{(r%2)*2048 + h*16}')
        if r == 1: e('s_add_u32 s19, s19, 4096')
    e(f'''
    v_mov_b32 v4, 0
    v_lshlrev_b32 v5, 8, v2
    s_lshl_b32 s19, s22, 10
    s_add_u32 s19, s19, {WS_FLAGS}
    s_mov_b64 exec, 0xf
    buffer_store_dword v4, v5, s[24:27], s19 offen
    s_mov_b64 exec, -1
    ''')
    for r in range(4): e(f'v_mov_b32 v{8+2*r}, 0'); e(f'v_mov_b32 v{9+2*r}, 0')
    e('s_waitcnt vmcnt(0)')
    for d in range(8):
        for r in range(4):
            x = 32 + r*8 + d
            e(f'v_dot2_f32_bf16 v{8+2*r}, v{x}, s18, v{8+2*r}')
            e(f'v_dot2_f32_bf16 v{9+2*r}, v{x}, v{x}, v{9+2*r}')
    e('s_nop 4')
    for i in range(8): e(f'v_add_f32_dpp v{8+i}, v{8+i}, v{8+i} quad_perm:[1,0,3,2] row_mask:0xf bank_mask:0xf')
    for i in range(8): e(f'v_add_f32_dpp v{8+i}, v{8+i}, v{8+i} quad_perm:[2,3,0,1] row_mask:0xf bank_mask:0xf')
    e(f'''
    v_lshrrev_b32 v3, 3, v2
    v_lshlrev_b32 v3, 8, v3
    v_bfe_u32 v4, v2, 2, 1
    v_lshl_add_u32 v3, v4, 3, v3
    s_lshl_b32 s19, s21, 11
    s_lshl_b32 s22, s20, 6
    s_add_u32 s19, s19, s22
    s_add_u32 s19, s19, {reg(0, R_STA)}
    s_mov_b32 exec_lo, 0x11111111
    s_mov_b32 exec_hi, 0x11111111
    ''')
    for r in range(4):
        e(f'buffer_store_dwordx2 v[{8+2*r}:{9+2*r}], v3, s[24:27], s19 offen offset:{r*16}')
    e(f'{name}_end:')
    e('s_endpgm')
    return kernel_text(name, hazard_pass(e.L), 160, 0), LDS_BYTES
```

```python
from asmlib import *
from common import *

P_X, P_WQKV, P_PHI, P_WO, P_GATE, P_UP, P_DOWN, P_OUT = 64, 66, 68, 70, 74, 76, 78, 80
S_MT, S_CI, S_MT2, S_NT2, S_PAR = 84, 85, 86, 87, 88
SPIN_LIMIT = 1 << 22

class M:
    def __init__(self, name, opts):
        self.e = Asm(); self.name = name; self.opts = opts; self.nl = 0; self.q = DmaQ(); self.nst = 0
        self.stamp_names = []
    def lab(self, s):
        self.nl += 1
        return f'{self.name}_{s}{self.nl}'
    def prologue(self):
        e = self.e
        e(f'''
        s_cmp_ge_u32 s2, 256
        s_cbranch_scc1 {self.name}_end
        s_load_dwordx16 s[64:79], s[0:1], 0
        s_load_dwordx2 s[80:81], s[0:1], 64
        s_load_dwordx2 s[16:17], s[0:1], 80
        v_lshrrev_b32 v1, 6, v0
        v_and_b32 v2, 63, v0
        v_readfirstlane_b32 s20, v1
        v_and_b32 v30, 15, v2
        v_lshrrev_b32 v31, 4, v2
        s_and_b32 s21, s2, 7
        s_lshr_b32 s22, s2, 3             ; idx
        s_lshr_b32 s23, s21, 1            ; rg
        s_and_b32 s{S_PAR}, s21, 1
        s_lshl_b32 s18, s23, 2
        s_and_b32 s19, s22, 3
        s_add_u32 s{S_MT}, s18, s19
        s_lshl_b32 s18, s{S_PAR}, 3
        s_lshr_b32 s19, s22, 2
        s_add_u32 s{S_CI}, s18, s19
        s_lshl_b32 s18, s23, 1
        s_and_b32 s19, s22, 1
        s_add_u32 s{S_MT2}, s18, s19
        s_lshl_b32 s18, s{S_PAR}, 4
        s_lshr_b32 s19, s22, 1
        s_add_u32 s{S_NT2}, s18, s19
        s_mov_b32 s11, 0x00020000
        s_mov_b32 s15, 0x00020000
        s_mov_b32 s26, {WS_SIZE}
        s_mov_b32 s27, 0x00020000
        s_mov_b32 s59, 0x00020000
        s_mov_b32 s46, {f2u(1.0/1024):#x}
        s_mov_b32 s47, {f2u(1e-5):#x}
        s_lshl_b32 s89, s2, 2
        s_add_u32 s89, s89, s20
        s_lshl_b32 s89, s89, 8
        s_add_u32 s89, s89, {WS_STAMP}
        s_waitcnt lgkmcnt(0)
        s_mov_b32 s24, s16
        s_mov_b32 s25, s17
        ''')
    def stamp(self, nm):
        if not self.opts.get('stamp'): return
        e = self.e
        i = self.nst; self.nst += 1; self.stamp_names.append(nm)
        e('s_memrealtime s[90:91]')
        e('s_waitcnt lgkmcnt(0)')
        e('v_mov_b32 v3, s90')
        e('v_mov_b32 v1, 0')
        e('s_mov_b64 exec, 1')
        e(f'buffer_store_dword v3, v1, s[24:27], s89 offen offset:{4*i}')
        e('s_mov_b64 exec, -1')
        self.q.issue('stamp')
    def publish(self, layer, edge, group_expr, drained=False):
        e = self.e
        if self.opts.get('nosync'): return
        skip = self.lab('pub')
        e('s_waitcnt vmcnt(0)'); self.q.clear()
        e('s_barrier')
        e(f's_cmp_lg_u32 s20, 0\ns_cbranch_scc1 {skip}')
        e(group_expr)
        e(f'''
        s_lshl_b32 s18, s18, 8
        s_add_u32 s18, s18, {flag_off(layer, edge, 0)}
        v_mov_b32 v1, 0
        v_mov_b32 v3, 1
        s_mov_b64 exec, 1
        buffer_atomic_add v3, v1, s[24:27], s18 offen sc1
        s_mov_b64 exec, -1
        {skip}:
        ''')
    def wait(self, layer, edge, group_expr, target, nshard=1, stride=1, barrier=True):
        e = self.e
        if self.opts.get('nosync'):
            return
        bar = self.lab('wbar'); poll = self.lab('poll'); got = self.lab('got')
        e(f's_cmp_lg_u32 s20, 0\ns_cbranch_scc1 {bar}')
        e(group_expr)
        e(f'''
        s_lshl_b32 s18, s18, 8
        s_add_u32 s18, s18, {flag_off(layer, edge, 0)}
        v_mul_u32_u24 v1, {256*stride}, v2
        s_mov_b64 exec, {(1 << nshard) - 1}
        s_mov_b32 s39, {SPIN_LIMIT}
        {poll}:
        buffer_load_dword v3, v1, s[24:27], s18 offen sc1
        s_waitcnt vmcnt(0)
        v_cmp_gt_u32 vcc, {target}, v3
        s_nop 1
        s_cmp_eq_u64 vcc, 0
        s_cbranch_scc1 {got}
        s_sleep 1
        s_sub_u32 s39, s39, 1
        s_cmp_lg_u32 s39, 0
        s_cbranch_scc1 {poll}
        {got}:
        s_mov_b64 exec, -1
        {bar}:
        ''')
        if barrier: e('s_barrier')
    def finish(self, vg=256, ag=256):
        e = self.e
        e(f'{self.name}_end:')
        e('s_endpgm')
        return kernel_text(self.name, hazard_pass(e.L), vg, ag, sgpr=96)

def srd(e, base, ptr=None, ws_off=None, size=None):
    if ptr is not None: e(f's_mov_b32 s{base}, s{ptr}\ns_mov_b32 s{base+1}, s{ptr+1}')
    else: e(f's_add_u32 s{base}, s16, {ws_off}\ns_addc_u32 s{base+1}, s17, 0')
    e(f's_mov_b32 s{base+2}, {size}')

def x_dma_offsets(e, v, row_sreg, ld, extra_sreg=None):
    e(f'''
    v_lshrrev_b32 v3, 3, v2
    v_add_u32 v3, s{row_sreg}, v3
    v_mul_u32_u24 v3, {ld}, v3
    ''')
    if extra_sreg is not None: e(f'v_add_u32 v3, s{extra_sreg}, v3')
    e(f'''
    v_and_b32 v1, 7, v2
    v_xor_b32 v1, v1, v31
    v_lshl_add_u32 v{v}, v1, 4, v3
    v_xor_b32 v1, 4, v1
    v_lshl_add_u32 v{v+1}, v1, 4, v3
    v_add_u32 v{v+1}, {8*ld - 1024}, v{v+1}
    v_add_u32 v{v+2}, {16*ld - 2048}, v{v}
    v_add_u32 v{v+3}, {16*ld - 2048}, v{v+1}
    ''')

def w_dma_offsets(e, v, n, krow_sreg, ld, col_sreg):
    e(f'''
    v_lshrrev_b32 v3, 3, v2
    v_add_u32 v3, s{krow_sreg}, v3
    v_mul_u32_u24 v3, {ld}, v3
    v_add_u32 v3, s{col_sreg}, v3
    v_and_b32 v1, 1, v31
    v_lshlrev_b32 v1, 1, v1
    v_and_b32 v0, 7, v2
    v_xor_b32 v1, v1, v0
    v_lshl_add_u32 v{v}, v1, 4, v3
    v_xor_b32 v1, 4, v1
    v_lshl_add_u32 v{v+1}, v1, 4, v3
    v_add_u32 v{v+1}, {8*ld - 1024}, v{v+1}
    ''')
    if n == 4:
        e(f'v_add_u32 v{v+2}, {16*ld - 2048}, v{v}\nv_add_u32 v{v+3}, {16*ld - 2048}, v{v+1}')

def x_read_addr(e, v, base_sreg):
    e(f'''
    v_lshrrev_b32 v1, 1, v30
    v_lshlrev_b32 v3, 7, v30
    v_add_u32 v3, s{base_sreg}, v3
    v_xor_b32 v{v}, v31, v1
    v_xor_b32 v{v+1}, 4, v{v}
    v_lshl_add_u32 v{v}, v{v}, 4, v3
    v_lshl_add_u32 v{v+1}, v{v+1}, 4, v3
    ''')

def w_read_addr(e, v, nbs, base_sreg, nb_xor_sreg=None):
    e(f'''
    v_bfe_u32 v1, v2, 2, 2
    v_lshl_add_u32 v3, v31, 3, v1
    v_lshlrev_b32 v3, 7, v3
    v_add_u32 v3, s{base_sreg}, v3
    v_and_b32 v0, 1, v2
    v_lshl_add_u32 v3, v0, 3, v3
    v_and_b32 v1, 2, v1
    v_and_b32 v0, 1, v31
    v_lshl_add_u32 v1, v0, 2, v1
    v_bfe_u32 v0, v2, 1, 1
    v_or_b32 v1, v1, v0
    ''')
    if nb_xor_sreg is not None: e(f'v_xor_b32 v1, s{nb_xor_sreg}, v1')
    for i, nb in enumerate(nbs):
        e(f'v_xor_b32 v0, {2*nb}, v1')
        e(f'v_lshl_add_u32 v{v+i}, v0, 4, v3')

def stats_loads(dst_fmt, voff, soffs):
    L = []
    for tb in range(4):
        for i in range(2):
            L.append([f'buffer_load_dwordx4 {dst_fmt(tb*8 + i*4)}, v{voff}, s[24:27], s{soffs[tb//2]} offen offset:{(tb%2)*2048 + i*256} sc1'])
    return L
```

```python
from asmlib import *
from common import *
from mega import *

XT = 16384; WG_ = 8192; STAGE = XT + 3 * WG_; NS = 4
LDW = 3 * D * 2
NBODY = 16; NSTEP = 32
ROWB = 352; HREG = 128 * ROWB

def acc(blk, tb): return 32 + (blk * 4 + tb) * 4
def xfrag(p, tb): return 128 + p * 40 + tb * 4
def wfrag(p, b): return 128 + p * 40 + 16 + b * 4
V_RAW = 208; V_PHI = 240; V_A = 248
CSA = 0; NMB = 24; PHH = 40; CSL = 64
V_XOFF = 4; V_WOFF = 8; V_XRD = 12; V_WRD = 14
V_LW = 18; V_LR = 19; V_KV = 20; V_OS = 21; V_KZ = 22

def dma_x(aux=''):
    g = []
    for j in range(4):
        ins = [f'buffer_load_dwordx4 v{V_XOFF+j}, s[8:11], s30 offen offset:{j*1024} {aux} lds']
        if j == 0: ins = ['s_add_u32 m0, s34, s40', 's_nop 0'] + ins
        if j == 1: ins += [f's_add_u32 s34, s34, {STAGE}', f's_cmp_eq_u32 s34, {STAGE*NS}', 's_cselect_b32 s34, 0, s34']
        if j == 3: ins += ['s_add_u32 s30, s30, 128']
        g.append(ins)
    return g
def dma_w():
    g = []
    so = [32, 33, 31]; mb = [41, 43, 53]
    for grp in range(3):
        for j in range(2):
            ins = [f'buffer_load_dwordx4 v{V_WOFF+j}, s[12:15], s{so[grp]} offen offset:{j*1024} lds']
            if j == 0: ins = [f's_add_u32 m0, s35, s{mb[grp]}', 's_nop 0'] + ins
            if j == 1: ins += [f's_add_u32 s{so[grp]}, s{so[grp]}, {64*LDW}']
            if j == 1 and grp == 2: ins += [f's_add_u32 s35, s35, {STAGE}', f's_cmp_eq_u32 s35, {STAGE*NS}', 's_cselect_b32 s35, 0, s35']
            g.append(ins)
    return g

def pre_w(m, layer, ntiles=2):
    e = m.e
    srd(e, 12, ptr=P_WQKV, size=D*LDW)
    e(f'''
    s_lshl_b32 s18, s20, 4
    s_lshl_b32 s19, s{S_CI}, 7
    ''')
    w_dma_offsets(e, V_WOFF, 2, 18, LDW, 19)
    e(f'''
    s_mov_b32 s32, 0
    s_mov_b32 s33, 2048
    s_mov_b32 s31, 4096
    s_mov_b32 s35, 0
    s_lshl_b32 s41, s20, 11
    s_add_u32 s41, s41, {XT}
    s_add_u32 s43, s41, {WG_}
    s_add_u32 s53, s41, {2*WG_}
    ''')
    for u in range(ntiles):
        for ins in dma_w(): e.ext(ins); m.q.issue(f'P1T{u}')
    m.p1_w = ntiles

def run(m, layer, next_pre):
    e = m.e; q = m.q; opts = m.opts.get('p1', {})
    L = layer
    xaux = '' if L == 0 else 'sc1'
    if L == 0: srd(e, 8, ptr=P_X, size=S*D*2)
    else: srd(e, 8, ws_off=reg(0, R_X2), size=S*D*2)
    e(f'''
    s_lshl_b32 s23, s{S_MT}, 7        ; m0
    s_lshr_b32 s28, s20, 1            ; wm
    s_and_b32 s29, s20, 1             ; wh
    s_lshl_b32 s18, s20, 5
    s_add_u32 s18, s18, s23
    ''')
    x_dma_offsets(e, V_XOFF, 18, 2048)
    e('s_mov_b32 s30, 0\ns_mov_b32 s34, 0\ns_lshl_b32 s40, s20, 12')
    def rest_setup():
        e('s_lshl_b32 s18, s28, 13')
        x_read_addr(e, V_XRD, 18)
        e(f's_mov_b32 s18, {XT}\ns_lshl_b32 s19, s29, 2')
        w_read_addr(e, V_WRD, [0, 1], 18, 19)
        e(f'''
        s_lshl_b32 s18, s{S_CI}, 1
        s_add_u32 s54, s18, s29            ; head
        s_lshl_b32 s18, s{S_MT}, 3
        s_lshl_b32 s19, s28, 2
        s_add_u32 s18, s18, s19
        s_lshl_b32 s18, s18, 11
        s_add_u32 s60, s18, {reg(L, R_STA)}
        s_add_u32 s61, s60, 4096
        v_lshlrev_b32 v23, 9, v31
        v_lshl_add_u32 v23, v30, 4, v23
        s_lshl_b32 s18, s54, 5
        v_add_u32 v1, s18, v30
        v_lshlrev_b32 v24, 4, v1
        s_mov_b32 s62, {WS_CS}
        s_mov_b32 s63, {WS_CS + 1024*16}
        s_mov_b32 s55, {WS_CS + 2048*16}
        v_lshlrev_b32 v25, 8, v31
        v_lshl_add_u32 v25, v30, 1, v25
        s_lshl_b32 s45, s54, 11
        s_lshl_b32 s18, s28, 6
        v_add_u32 v1, s18, v30
        v_mul_u32_u24 v1, {ROWB}, v1
        v_lshrrev_b32 v3, 2, v30
        v_xor_b32 v3, v3, v31
        v_lshl_add_u32 v1, v3, 3, v1
        s_mul_i32 s18, s29, {HREG}
        v_add_u32 v{V_LW}, s18, v1
        v_bfe_u32 v1, v2, 2, 2
        v_lshl_add_u32 v1, v31, 2, v1
        v_mul_u32_u24 v1, {ROWB}, v1
        v_and_b32 v3, 3, v2
        v_xor_b32 v3, v3, v31
        v_lshl_add_u32 v1, v3, 3, v1
        v_add_u32 v{V_LR}, s18, v1
        s_lshl_b32 s18, s{S_MT}, 5
        s_add_u32 s18, s18, s54
        s_mul_i32 s18, s18, {KVP_HEAD}
        s_add_u32 s18, s18, {reg(L, R_KVP)}
        s_lshl_b32 s19, s28, 7
        s_add_u32 s19, s19, s18
        s_add_u32 s19, s19, 8192
        v_lshlrev_b32 v1, 4, v31
        v_add_u32 v{V_KZ}, s19, v1
        s_lshl_b32 s19, s28, 12
        s_add_u32 s18, s18, s19
        v_lshlrev_b32 v1, 4, v2
        v_add_u32 v{V_KV}, s18, v1
        s_lshl_b32 s18, s28, 6
        s_add_u32 s18, s18, s23
        v_add_u32 v{V_OS}, s18, v30
        v_lshlrev_b32 v{V_OS}, 11, v{V_OS}
        v_and_b32 v1, 1, v31
        v_lshl_add_u32 v{V_OS}, v1, 5, v{V_OS}
        v_lshrrev_b32 v1, 1, v31
        v_lshl_add_u32 v{V_OS}, v1, 4, v{V_OS}
        s_lshl_b32 s18, s54, 6
        s_add_u32 s18, s18, {reg(L, R_O)}
        v_add_u32 v{V_OS}, s18, v{V_OS}
        s_mov_b32 s36, 0
        s_mov_b32 s42, 0
        s_mov_b32 s50, {STAGE}
        s_mov_b32 s51, {(-(NS-1)*STAGE) & 0xffffffff:#x}
        ''')
        srd(e, 56, ptr=P_PHI, size=65536)
    if L > 0:
        rest_setup()
        m.stamp('p1 wait')
        m.wait(L - 1, E_E, f's_mov_b32 s18, s{S_MT}', 16)
    m.stamp('p1 go')
    nw = m.p1_w
    flat = []
    for u in range(NBODY):
        xs = [(ins, f'P1T{u}', 2*(u - NS) + 1) for ins in dma_x(xaux)]
        ws = [(ins, f'P1T{u}', 2*(u - NS) + 1) for ins in dma_w()] if u >= nw else []
        flat += xs + ws
    def take(step, n):
        out = []
        while flat and len(out) < n and flat[0][2] <= step: out.append(flat.pop(0))
        return out
    n0 = sum(1 for f in flat if f[1] in ('P1T0', 'P1T1'))
    for ins, tag, _ in take(-1, n0): e.ext(ins); q.issue(tag)
    if L == 0: rest_setup()
    small = stats_loads(lambda o: f'v[{V_RAW+o}:{V_RAW+o+3}]', 23, [60, 61])
    for b in range(6):
        small.append([f'buffer_load_dwordx4 a[{CSA+4*b}:{CSA+4*b+3}], v24, s[24:27], s{[62,63,55][b//2]} offen offset:{(b%2)*256}'])
    for fb in range(2):
        for i in range(8):
            d = (i & 3) + 16 * (i >> 2)
            dst = f'v{V_PHI + fb*4 + i//2}' if i % 2 == 0 else f'a{PHH + fb*4 + i//2}'
            small.append([f'buffer_load_ushort {dst}, v25, s[56:59], s45 offen offset:{d*64 + fb*32}'])
    def mfma(b, tb, p, c=None):
        a = acc(b, tb)
        cc = f'v[{a}:{a+3}]' if c is None else c
        return f'v_mfma_f32_16x16x32_bf16 v[{a}:{a+3}], v[{wfrag(p,b)}:{wfrag(p,b)+3}], v[{xfrag(p,tb)}:{xfrag(p,tb)+3}], {cc}'
    def reads(p, s):
        x = lambda tb: f'ds_read_b128 v[{xfrag(p,tb)}:{xfrag(p,tb)+3}], v{V_XRD+s} offset:{tb*2048}'
        w = lambda b, h: f'ds_read_b64_tr_b16 v[{wfrag(p,b)+2*h}:{wfrag(p,b)+2*h+1}], v{V_WRD+(b&1)} offset:{(b>>1)*WG_ + (32*s+4*h)*128}'
        g = [x(0), w(0, 0), w(0, 1), x(1), x(2), x(3)]
        for b in range(1, 6): g += [w(b, 0), w(b, 1)]
        return g
    needs = [max(2 if tb == 0 else 2 + tb, 5 + 2*b if b else 0) for b in range(6) for tb in range(4)]
    n = q.wait_for({'P1T0'})
    e(f's_waitcnt vmcnt({n})')
    e('s_barrier')
    m.stamp('p1 main')
    e('v_cmp_gt_u32 vcc, 16, v2')
    e.ext(reads(0, 0))
    extra = []
    for i in range(8):
        extra.append(f'v_accvgpr_read_b32 v26, a{PHH+i}')
        extra.append(f'v_lshl_or_b32 v{V_PHI+i}, v26, 16, v{V_PHI+i}')
    extra += stats_finish(lambda tb: V_RAW + tb*8)
    for tb in range(4):
        extra.append(f'v_mov_b32 v{V_A+tb}, v{V_RAW+tb*8+3}')
        extra.append(f'v_cndmask_b32 v{V_RAW+tb*8+4}, 0, v{V_RAW+tb*8+4}, vcc')
        for i in range(4): extra.append(f'v_accvgpr_write_b32 a{NMB+4*tb+i}, v{V_RAW+tb*8+4}')
    TW = 27
    touch = (L == 0 and not opts.get('notouch'))
    if touch:
        srd(e, 4, ptr=P_WO, size=D*D*2)
        e('s_mov_b32 s7, 0x00020000')
        e('s_lshl_b32 s18, s2, 2\ns_add_u32 s18, s18, s20\ns_lshl_b32 s37, s18, 11\nv_lshlrev_b32 v27, 7, v31')
    bodies = []
    for u in range(NBODY):
        B = []
        for s in range(2):
            t = 2 * u + s; p = s
            last = (t == NSTEP - 1)
            ms = [mfma(b, tb, p, '0' if t == 0 else None) for b in range(6) for tb in range(4)]
            pre = []; bar = []; rd = []
            if not last:
                if s == 1:
                    pre = [f's_add_u32 s36, s36, {STAGE}', f's_cmp_eq_u32 s36, {STAGE*NS}', 's_cselect_b32 s42, s51, s50',
                           's_cselect_b32 s36, 0, s36', f'v_add_u32 v{V_XRD}, s42, v{V_XRD}'] + \
                          [f'v_add_u32 v{V_WRD+i}, s42, v{V_WRD+i}' for i in range(2)]
                    n = q.wait_for({f'P1T{u+1}'} | ({'small'} if t == TW else set()))
                    bar = [f's_waitcnt vmcnt({n})', 's_barrier']
                else:
                    pre = [f'v_add_u32 v{V_XRD+1}, s42, v{V_XRD+1}']
                rd = reads(p ^ 1, s ^ 1)
            dm = []
            for ins, tag, _ in take(t, opts.get('q', 8) if t < 8 else 6): dm.append(ins); q.issue(tag)
            if touch and s == 0 and u < 4:
                dm.append([f'buffer_load_dword a{CSL}, v27, s[4:7], s37 offen', 's_add_u32 s37, s37, 512']); q.issue('touch')
            if small and t >= 21:
                k = max(0, 9 - len(dm))
                for ins in small[:k]: dm.append(ins); q.issue('small')
                small = small[k:]
            ex = []
            if t >= TW and extra:
                k = (len(extra) + NSTEP - 1 - t) // (NSTEP - t)
                ex = extra[:k]; extra = extra[k:]
            B += build_step(ms, needs, 16, pre, bar, rd, dm, ex, nb=(3 if s == 1 else 1))
        bodies.append(B)
    assert not flat and not extra and not small, (len(flat), len(extra), len(small))
    e.ext(loopify(bodies, m.lab('p1L'), 38))
    for b in range(6):
        for tb in range(4):
            a = acc(b, tb)
            e(f'v_mfma_f32_16x16x32_bf16 v[{a}:{a+3}], a[{CSA+4*b}:{CSA+4*b+3}], a[{NMB+4*tb}:{NMB+4*tb+3}], v[{a}:{a+3}]')
    e('s_barrier')
    m.stamp('p1 epi')
    e(f's_mov_b32 s44, {f2u(LOG2E):#x}')
    e(f's_mov_b32 s45, {f2u(LOG2E):#x}')
    def bc(r): return (f'v[{r}:{r+1}]', 0) if r % 2 == 0 else (f'v[{r-1}:{r}]', 1)
    for i in range(4): e(f'v_mov_b32 v{24+i}, 0x3f803f80')
    PB = 128; PP = 144; MX = 176; EP = 192; PK = 208
    def feat(mi):
        for tb in range(4):
            ar, sl = bc(V_A + tb)
            for db in range(2):
                a = acc(2*mi + db, tb)
                for h in range(2):
                    e(f'v_pk_mul_f32 v[{a+2*h}:{a+2*h+1}], v[{a+2*h}:{a+2*h+1}], {ar} op_sel:[0,{sl}] op_sel_hi:[1,{sl}]')
        for tb in range(4):
            for db in range(2):
                a = acc(2*mi + db, tb)
                for h in range(2):
                    e(f'v_cvt_pk_bf16_f32 v{PB+tb*4+db*2+h}, v{a+2*h}, v{a+2*h+1}')
        for tb in range(4):
            for fb in range(2):
                p = PP + tb*8 + fb*4
                e(f'v_mfma_f32_16x16x32_bf16 v[{p}:{p+3}], v[{V_PHI+fb*4}:{V_PHI+fb*4+3}], v[{PB+tb*4}:{PB+tb*4+3}], 0')
        for tb in range(4):
            p = PP + tb*8; mx = MX + 2*tb
            e(f'v_max3_f32 v{mx}, v{p}, v{p+1}, v{p+2}')
            e(f'v_max3_f32 v{mx+1}, -v{p}, -v{p+1}, -v{p+2}')
        for k in (3, 5):
            for tb in range(4):
                p = PP + tb*8; mx = MX + 2*tb
                e(f'v_max3_f32 v{mx}, v{mx}, v{p+k}, v{p+k+1}')
                e(f'v_max3_f32 v{mx+1}, v{mx+1}, -v{p+k}, -v{p+k+1}')
        for tb in range(4):
            p = PP + tb*8; mx = MX + 2*tb
            e(f'v_max_f32 v{mx}, v{mx}, v{p+7}')
            e(f'v_max_f32_e64 v{mx+1}, v{mx+1}, -v{p+7}')
        for tb in range(4): e(f'v_permlane32_swap_b32 v{MX+2*tb}, v{MX+2*tb+1}')
        for tb in range(4): e(f'v_max_f32 v{MX+2*tb}, v{MX+2*tb}, v{MX+2*tb+1}')
        for pr in range(2): e(f'v_permlane16_swap_b32 v{MX+4*pr}, v{MX+4*pr+2}')
        for pr in range(2): e(f'v_max_f32 v{MX+4*pr}, v{MX+4*pr}, v{MX+4*pr+2}')
        for pr in range(2): e(f'v_mul_f32 v{MX+4*pr}, s44, v{MX+4*pr}')
        for pr in range(2): e(f'v_mov_b32 v{MX+4*pr+2}, v{MX+4*pr}')
        for pr in range(2): e(f'v_permlane16_swap_b32 v{MX+4*pr}, v{MX+4*pr+2}')
        for tb in range(4): e(f'v_mov_b32 v{MX+2*tb+1}, v{MX+2*tb}')
        for tb in range(4): e(f'v_permlane32_swap_b32 v{MX+2*tb}, v{MX+2*tb+1}')
        for tb in range(4):
            p = PP + tb*8; mx = MX + 2*tb
            for i in range(4):
                e(f'v_pk_fma_f32 v[{EP+2*i}:{EP+2*i+1}], v[{p+2*i}:{p+2*i+1}], s[44:45], v[{mx}:{mx+1}] op_sel:[0,0,0] op_sel_hi:[1,1,0] neg_lo:[0,0,1] neg_hi:[0,0,1]')
            for i in range(4):
                e(f'v_pk_fma_f32 v[{EP+8+2*i}:{EP+8+2*i+1}], v[{p+2*i}:{p+2*i+1}], s[44:45], v[{mx}:{mx+1}] op_sel:[0,0,1] op_sel_hi:[1,1,1] neg_lo:[1,0,1] neg_hi:[1,0,1]')
            for i in range(16): e(f'v_exp_f32 v{EP+i}, v{EP+i}')
            for i in range(8): e(f'v_cvt_pk_bf16_f32 v{PK+tb*8+i}, v{EP+2*i}, v{EP+2*i+1}')
    feat(1)
    SS = 144
    for tb in range(4):
        for sg in range(2):
            r = SS + (tb*2+sg)*4
            e(f'v_mfma_f32_16x16x32_bf16 v[{r}:{r+3}], v[24:27], v[{PK+tb*8+sg*4}:{PK+tb*8+sg*4+3}], 0')
    for tb in range(4):
        for sg in range(2):
            for fb in range(2):
                r = PK + tb*8 + sg*4 + fb*2
                e(f'ds_write_b64 v{V_LW}, v[{r}:{r+1}] offset:{tb*16*ROWB + sg*64 + fb*32}')
    for tb in range(4):
        for sg in range(2):
            r = SS + (tb*2+sg)*4
            e(f'v_rcp_f32 v{r}, v{r}')
    for tb in range(4):
        for sg in range(2):
            r = SS + (tb*2+sg)*4
            e(f'v_mul_f32 v{r+2}, v{r}, v{V_A+tb}')
            e(f'v_cvt_pk_bf16_f32 v{r}, v{r}, 0')
            e(f'v_mov_b32 v{r+1}, 0')
    for tb in range(4):
        for sg in range(2):
            r = SS + (tb*2+sg)*4
            t = 176 + sg*8
            for db in range(2):
                a = acc(4 + db, tb)
                for h in range(2):
                    e(f'v_pk_mul_f32 v[{t+db*4+2*h}:{t+db*4+2*h+1}], v[{a+2*h}:{a+2*h+1}], v[{r+2}:{r+3}] op_sel:[0,0] op_sel_hi:[1,0]')
            o = 192 + (tb % 2) * 8 + sg * 4
            for i in range(4): e(f'v_cvt_pk_bf16_f32 v{o+i}, v{t+2*i}, v{t+2*i+1}')
            for db in range(2):
                e(f'ds_write_b64 v{V_LW}, v[{o+2*db}:{o+2*db+1}] offset:{tb*16*ROWB + 128 + sg*64 + db*32}')
            e(f'ds_write_b64 v{V_LW}, v[{r}:{r+1}] offset:{tb*16*ROWB + 256 + sg*32}')
    e('s_waitcnt lgkmcnt(0)')
    e('s_barrier')
    e(f's_lshl_b32 s18, s28, 6')
    e(f'v_add_u32 v28, s18, v{V_LR}')
    e(f's_lshl_b32 s18, s28, 5')
    e(f'v_add_u32 v29, s18, v{V_LR}')
    FA = 128
    for ks in range(4):
        f = FA + ks * 20
        for h in range(2):
            ro = (ks*32 + h*16) * ROWB
            for fb in range(2): e(f'ds_read_b64_tr_b16 v[{f+fb*4+2*h}:{f+fb*4+2*h+1}], v28 offset:{ro + fb*32}')
            for db in range(2): e(f'ds_read_b64_tr_b16 v[{f+8+db*4+2*h}:{f+8+db*4+2*h+1}], v28 offset:{ro + 128 + db*32}')
            e(f'ds_read_b64_tr_b16 v[{f+16+2*h}:{f+16+2*h+1}], v29 offset:{ro + 256}')
    KV = acc(2, 0)
    for ks in range(4):
        f = FA + ks * 20
        e(f's_waitcnt lgkmcnt({min(15, (3-ks)*10)})')
        for fb in range(2):
            for bk in range(3):
                d = KV + (fb*3+bk)*4
                e(f'v_mfma_f32_16x16x32_bf16 v[{d}:{d+3}], v[{f+fb*4}:{f+fb*4+3}], v[{f+8+bk*4}:{f+8+bk*4+3}], ' + ('0' if ks == 0 else f'v[{d}:{d+3}]'))
    for fb in range(2):
        for db in range(2):
            d = KV + (fb*3+db)*4
            e(f'buffer_store_dwordx4 v[{d}:{d+3}], v{V_KV}, s[24:27], 0 offen offset:{(fb*2+db)*1024} sc1')
    e('s_mov_b32 exec_lo, 0x00010001')
    e('s_mov_b32 exec_hi, 0x00010001')
    for fb in range(2):
        d = KV + (fb*3+2)*4
        e(f'buffer_store_dwordx4 v[{d}:{d+3}], v{V_KZ}, s[24:27], 0 offen offset:{fb*64} sc1')
    e('s_mov_b64 exec, -1')
    feat_first = opts.get('feat_first', 0)
    if feat_first: feat(0)
    m.publish(L, E_A1, f's_mov_b32 s18, s{S_CI}')
    m.stamp('p1 pubA1')
    next_pre()
    if not feat_first: feat(0)
    m.stamp('p1 featq')
    m.wait(L, E_A1, f's_mov_b32 s18, s{S_CI}', 16)
    m.stamp('p1 gotA1')
    skip = m.lab('hop'); w1 = m.lab('hopz')
    R0 = 64
    e(f'''
    s_cmp_gt_u32 s20, 1
    s_cbranch_scc1 {skip}
    s_cmp_eq_u32 s20, 1
    s_cbranch_scc1 {w1}
    s_lshr_b32 s18, s{S_MT}, 3
    s_lshl_b32 s19, s{S_CI}, 1
    s_add_u32 s18, s18, s19            ; head
    s_mul_i32 s19, s18, {KVP_HEAD}
    s_add_u32 s19, s19, {reg(L, R_KVP)}
    s_and_b32 s60, s{S_MT}, 7
    s_lshl_b32 s61, s60, 10
    s_add_u32 s19, s19, s61
    v_lshlrev_b32 v1, 4, v2
    ''')
    for i in range(16):
        e(f'buffer_load_dwordx4 v[{R0+4*i}:{R0+4*i+3}], v1, s[24:27], s19 offen sc1')
        if i < 15: e(f's_add_u32 s19, s19, {32*KVP_HEAD}')
    e(f'''
    s_mul_i32 s18, s18, 6144
    s_add_u32 s18, s18, {reg(L, R_KVR)}
    s_lshr_b32 s61, s60, 2
    s_mul_i32 s61, s61, 3072
    s_add_u32 s18, s18, s61
    s_and_b32 s61, s60, 1
    s_lshl_b32 s61, s61, 10
    s_add_u32 s18, s18, s61
    s_and_b32 s61, s60, 2
    s_lshl_b32 s61, s61, 2
    s_add_u32 s18, s18, s61
    ''')
    def tree():
        for i in range(1, 16):
            e(f's_waitcnt vmcnt({15-i})')
            e(f'v_pk_add_f32 v[{R0}:{R0+1}], v[{R0}:{R0+1}], v[{R0+4*i}:{R0+4*i+1}]')
            e(f'v_pk_add_f32 v[{R0+2}:{R0+3}], v[{R0+2}:{R0+3}], v[{R0+4*i+2}:{R0+4*i+3}]')
        e(f'v_cvt_pk_bf16_f32 v{R0+4}, v{R0}, v{R0+1}')
        e(f'v_cvt_pk_bf16_f32 v{R0+5}, v{R0+2}, v{R0+3}')
    tree()
    e(f'buffer_store_dwordx2 v[{R0+4}:{R0+5}], v1, s[24:27], s18 offen sc1')
    e(f'''
    s_branch {skip}
    {w1}:
    s_cmp_gt_u32 s{S_MT}, 7
    s_cbranch_scc1 {skip}
    s_lshr_b32 s18, s{S_MT}, 2
    s_lshl_b32 s19, s{S_CI}, 1
    s_add_u32 s18, s18, s19            ; head
    s_mul_i32 s19, s18, {KVP_HEAD}
    s_add_u32 s19, s19, {reg(L, R_KVP) + 8192}
    s_and_b32 s60, s{S_MT}, 3
    s_lshl_b32 s61, s60, 6
    s_add_u32 s19, s19, s61
    v_lshlrev_b32 v1, 4, v31
    ''')
    for i in range(16):
        e(f'buffer_load_dwordx4 v[{R0+4*i}:{R0+4*i+3}], v1, s[24:27], s19 offen sc1')
        if i < 15: e(f's_add_u32 s19, s19, {32*KVP_HEAD}')
    e(f'''
    s_mul_i32 s18, s18, 6144
    s_add_u32 s18, s18, {reg(L, R_KVR) + 2048}
    s_lshr_b32 s61, s60, 1
    s_mul_i32 s61, s61, 3072
    s_add_u32 s18, s18, s61
    s_and_b32 s61, s60, 1
    s_lshl_b32 s61, s61, 3
    s_add_u32 s18, s18, s61
    v_and_b32 v3, 3, v2
    v_cmp_eq_u32 vcc, 0, v3
    v_cmp_eq_u32 s[60:61], 1, v3
    v_cndmask_b32 v3, 0, v24, s[60:61]
    v_lshlrev_b32 v1, 4, v2
    ''')
    tree()
    e(f'v_cndmask_b32 v{R0+4}, v3, v{R0+4}, vcc')
    e(f'v_cndmask_b32 v{R0+5}, v3, v{R0+5}, vcc')
    e(f'buffer_store_dwordx2 v[{R0+4}:{R0+5}], v1, s[24:27], s18 offen sc1')
    e(f'{skip}:')
    m.publish(L, E_A2, f's_mov_b32 s18, s{S_CI}')
    m.stamp('p1 pubA2')
    m.wait(L, E_A2, f's_mov_b32 s18, s{S_CI}', 16)
    m.stamp('p1 gotA2')
    KA = 32
    e(f'''
    s_mul_i32 s18, s54, 6144
    s_add_u32 s18, s18, {reg(L, R_KVR)}
    s_add_u32 s19, s18, 4096
    v_lshlrev_b32 v1, 4, v2
    s_mov_b32 s44, {f2u(1e-6):#x}
    ''')
    for i in range(6):
        e(f'buffer_load_dwordx4 v[{KA+4*i}:{KA+4*i+3}], v1, s[24:27], s{18 + i//4} offen offset:{(i%4)*1024} sc1')
    for tb in range(4): e(f's_mov_b32 s{60+tb}, {tb*16*2048}')
    e('s_waitcnt vmcnt(0)'); q.clear()
    o_compute(e, range(4), KA, lambda tb: PK + tb*8, lambda tb: 64 + tb*24, lambda tb: 160 + tb*4)
    for tb in range(4):
        e(f'buffer_store_dwordx4 v[{160+tb*4}:{163+tb*4}], v{V_OS}, s[24:27], s{60+tb} offen sc1')
    m.publish(L, E_B, f's_mov_b32 s18, s{S_MT}')
    m.stamp('p1 pubB')

def o_compute(e, tbs, KA, EB, NN, OUT):
    for tb in tbs:
        for sg in range(2):
            for bk in range(3):
                d = NN(tb) + (sg*3+bk)*4; a = KA + (sg*3+bk)*4; b = EB(tb) + sg*4
                e(f'v_mfma_f32_16x16x32_bf16 v[{d}:{d+3}], v[{a}:{a+3}], v[{b}:{b+3}], 0')
    for tb in tbs:
        for sg in range(2):
            z = NN(tb) + (sg*3+2)*4
            e(f'v_rcp_f32 v{z+1}, v{z+1}')
    for tb in tbs:
        zp = NN(tb) + 8; zm = NN(tb) + 20
        e(f'v_fma_f32 v{zp+2}, v{zp}, v{zp+1}, s44')
        e(f'v_fma_f32 v{zp+2}, v{zm}, v{zm+1}, v{zp+2}')
    for tb in tbs:
        zp = NN(tb) + 8
        e(f'v_rcp_f32 v{zp+2}, v{zp+2}')
    for tb in tbs:
        zp = NN(tb) + 8; zm = NN(tb) + 20
        e(f'v_mul_f32 v{zp}, v{zp+1}, v{zp+2}')
        e(f'v_mul_f32 v{zm}, v{zm+1}, v{zp+2}')
    for tb in tbs:
        n = NN(tb); zp = n + 8; zm = n + 20
        for i in range(4):
            e(f'v_pk_mul_f32 v[{n+2*i}:{n+2*i+1}], v[{n+2*i}:{n+2*i+1}], v[{zp}:{zp+1}] op_sel:[0,0] op_sel_hi:[1,0]')
        for i in range(4):
            e(f'v_pk_fma_f32 v[{n+2*i}:{n+2*i+1}], v[{n+12+2*i}:{n+12+2*i+1}], v[{zm}:{zm+1}], v[{n+2*i}:{n+2*i+1}] op_sel:[0,0,0] op_sel_hi:[1,0,1]')
    for tb in tbs:
        n = NN(tb); o = OUT(tb)
        for i in range(4): e(f'v_cvt_pk_bf16_f32 v{o+i}, v{n+2*i}, v{n+2*i+1}')
    for tb in tbs:
        o = OUT(tb)
        e(f'v_permlane16_swap_b32 v{o}, v{o+2}')
        e(f'v_permlane16_swap_b32 v{o+1}, v{o+3}')
```

```python
from asmlib import *
from common import *
from mega import *

XSLOT = 32768; NXS = 3
WREG = 7680; WHALF = 2 * WREG; NWS = 4; WBASE = XSLOT * NXS
LDW = F * 2; NB = 16; NSTEP = 32
WL = [0, 896, 1920, 2816]
def acc(b, tb): return 32 + (b * 4 + tb) * 4
def xfrag(p, tb): return p * 72 + tb * 4
def wfrag(p, b): return p * 72 + 16 + b * 4
CSA = 144; NMB = 200; RAW = 216; ONES = 248; CSP = 216
V_XOFF = 4; V_WOFF = 8; V_XRD = 12; V_WRD = 14; V_ST = 15; V_K = 16

def dma_x(half):
    g = []
    for j in range(4):
        ins = [f'buffer_load_dwordx4 v{V_XOFF+j}, s[8:11], s{30+half} offen offset:{j*1024} sc1 lds']
        if j == 0: ins = [f's_add_u32 m0, s34, s{40 if half == 0 else 52}', 's_nop 0'] + ins
        if half == 1 and j == 1: ins += ['s_add_u32 s30, s30, 128', 's_and_b32 s30, s30, 0x7ff']
        if half == 1 and j == 2: ins += [f's_add_u32 s34, s34, {XSLOT}', f's_cmp_eq_u32 s34, {XSLOT*NXS}', 's_cselect_b32 s34, 0, s34']
        if half == 1 and j == 3: ins += ['s_add_u32 s31, s30, 65536']
        g.append(ins)
    return g
def dma_w(aux=''):
    g = []
    for j in range(4):
        ins = [f'buffer_load_dwordx4 v{V_WOFF+j}, s[12:15], s32 offen offset:{WL[j]} {aux} lds']
        if j == 0: ins = ['s_add_u32 m0, s35, s41', 's_nop 0'] + ins
        if j == 1: ins += [f's_add_u32 s35, s35, {WHALF}', f's_cmp_eq_u32 s35, {WHALF*NWS}', 's_cselect_b32 s35, 0, s35']
        if j == 3: ins += [f's_add_u32 s32, s32, {32*LDW}', f's_cmp_eq_u32 s32, {D*LDW}', 's_cselect_b32 s32, 0, s32']
        g.append(ins)
    return g

def pre_w(m, layer, nh=4):
    e = m.e; opts = m.opts.get('p3', {})
    e(f'''
    s_cmp_lt_u32 s20, 2
    s_cselect_b32 s12, s{P_GATE}, s{P_UP}
    s_cselect_b32 s13, s{P_GATE+1}, s{P_UP+1}
    s_mov_b32 s14, {D*F*2}
    v_mul_u32_u24 v1, 4682, v2
    v_lshrrev_b32 v1, 16, v1
    v_mul_u32_u24 v3, 14, v1
    v_sub_u32 v3, v2, v3
    v_lshlrev_b32 v3, 4, v3
    s_and_b32 s18, s20, 1
    s_lshl_b32 s18, s18, 4
    v_add_u32 v1, s18, v1
    v_mul_u32_u24 v1, {LDW}, v1
    v_add_u32 v1, v1, v3
    s_mul_i32 s19, s{S_NT2}, 224
    v_add_u32 v{V_WOFF}, s19, v1
    ''')
    for j in range(1, 4): e(f'v_add_u32 v{V_WOFF+j}, {j*4*LDW - WL[j]}, v{V_WOFF}')
    rot = 1 if (layer == 0 or opts.get('rot_all')) else 0
    e(f'''
    s_mul_i32 s32, s{S_MT2}, {128*LDW*rot}       ; k rotation
    s_mov_b32 s35, 0
    s_lshr_b32 s18, s20, 1
    s_mul_i32 s41, s18, {WREG}
    s_and_b32 s18, s20, 1
    s_mul_i32 s18, s18, 3840
    s_add_u32 s41, s41, s18
    s_add_u32 s41, s41, {WBASE}
    ''')
    for h in range(nh):
        for ins in dma_w(opts.get('auxw', '')): e.ext(ins); m.q.issue(f'W{h}')
    m.p3_w = nh

def run(m, layer, next_pre):
    e = m.e; q = m.q; opts = m.opts.get('p3', {}); L = layer
    rot = 1 if (layer == 0 or opts.get('rot_all')) else 0
    srd(e, 8, ws_off=reg(L, R_X1), size=S*D*2)
    e(f'''
    s_lshl_b32 s23, s{S_MT2}, 8
    s_lshl_b32 s18, s20, 6
    s_add_u32 s23, s23, s18
    s_mul_i32 s22, s{S_NT2}, 112
    ''')
    x_dma_offsets(e, V_XOFF, 23, 2048)
    e(f'''
    s_mul_i32 s30, s{S_MT2}, {256*rot}
    s_add_u32 s31, s30, 65536
    s_mov_b32 s34, 0
    s_lshl_b32 s40, s20, 13
    s_add_u32 s52, s40, 4096
    v_add_u32 v28, s23, v30
    v_mul_u32_u24 v{V_ST}, {LDW}, v28
    v_and_b32 v1, 1, v31
    v_lshl_add_u32 v{V_ST}, v1, 5, v{V_ST}
    v_lshrrev_b32 v1, 1, v31
    v_lshl_add_u32 v{V_ST}, v1, 4, v{V_ST}
    s_lshl_b32 s19, s22, 1
    v_add_u32 v{V_ST}, s19, v{V_ST}
    s_lshl_b32 s18, s23, 7
    s_add_u32 s60, s18, {reg(L, R_STF)}
    s_add_u32 s61, s60, 4096
    v_lshlrev_b32 v29, 9, v31
    v_lshl_add_u32 v29, v30, 4, v29
    v_add_u32 v1, s22, v30
    v_lshlrev_b32 v28, 4, v1
    v_and_b32 v1, 1, v31
    v_mul_u32_u24 v1, {CS_PLANE}, v1
    v_add_u32 v28, v28, v1
    s_mov_b32 s62, {WS_CS + 3072*16}
    s_mov_b32 s63, {WS_CS + (3072+F)*16}
    ''')
    x_read_addr(e, V_XRD, 40)
    e(f'''
    v_mul_u32_u24 v1, 1920, v31
    v_bfe_u32 v3, v2, 2, 2
    v_mul_u32_u24 v3, 224, v3
    v_add_u32 v1, v1, v3
    v_and_b32 v3, 3, v2
    v_lshl_add_u32 v1, v3, 3, v1
    v_add_u32 v{V_WRD}, {WBASE}, v1
    s_mov_b32 s36, 0
    s_mov_b32 s37, 0
    s_mov_b32 s42, 0
    s_mov_b32 s48, {WHALF}
    s_mov_b32 s49, {(-(NWS-1)*WHALF) & 0xffffffff:#x}
    s_mov_b32 s50, {XSLOT}
    s_mov_b32 s51, {(-(NXS-1)*XSLOT) & 0xffffffff:#x}
    ''')
    C1 = -2.0 * 0.7978845608028654 * 1.4426950408889634
    C2 = C1 * 0.044715
    e(f's_mov_b32 s44, {f2u(C1):#x}\ns_mov_b32 s45, {f2u(C2):#x}')
    docs = (L == 0)
    touch = (L == 0 and not opts.get('notouch'))
    if docs:
        e('v_mov_b32 v1, 0x3f803f80')
        for i in range(4): e(f'v_accvgpr_write_b32 a{ONES+i}, v1')
        e(f'''
        s_lshr_b32 s18, s{S_MT2}, 2
        s_mul_i32 s18, s18, {CS_PLANE}
        s_and_b32 s19, s{S_MT2}, 3
        s_lshl_b32 s19, s19, 2
        s_add_u32 s18, s18, s19
        s_add_u32 s54, s18, s62
        s_add_u32 s55, s18, s63
        v_add_u32 v1, s22, v30
        v_lshlrev_b32 v27, 4, v1
        ''')
    if touch:
        srd(e, 4, ptr=P_DOWN, size=F*D*2)
        e('s_mov_b32 s7, 0x00020000')
        e(f's_lshl_b32 s18, s2, 2\ns_add_u32 s18, s18, s20\ns_mul_i32 s33, s18, {56*128}\nv_lshlrev_b32 v26, 7, v31')
    m.stamp('p3 wait')
    m.wait(L, E_C, f's_lshl_b32 s18, s{S_MT2}, 1', 16, nshard=2)
    m.stamp('p3 go')
    pend = []
    for u in range(NB):
        pend.append(('X%d' % u, 'xa', 2*u - 1, 2*(u-3) + 1))
        pend.append(('X%d' % u, 'xb', 2*u - 1, 2*(u-3) + 1))
        for h in (2*u, 2*u + 1):
            if h >= m.p3_w: pend.append(('W%d' % h, 'w', h - 1, h - 4))
    mk = {'xa': lambda: dma_x(0), 'xb': lambda: dma_x(1), 'w': lambda: dma_w(opts.get('auxw', ''))}
    def take(step, maxg):
        out = []
        while len(out) < maxg:
            cand = None; seen = set()
            for g in pend:
                cls = g[1][0]
                if cls in seen: continue
                seen.add(cls)
                if g[3] <= step and (cand is None or g[2] < cand[2]): cand = g
            if cand is None: break
            pend.remove(cand); out.append(cand)
        return out
    ninit = sum(1 for g in pend if g[2] <= 0)
    for g in take(-1, ninit + 2):
        for ins in mk[g[1]](): e.ext(ins); q.issue(g[0])
    small = stats_loads(lambda o: f'a[{RAW+o}:{RAW+o+3}]', 29, [60, 61])
    csl = [[f'buffer_load_dwordx4 a[{CSA+4*b}:{CSA+4*b+3}], v28, s[24:27], s{62 + b//7} offen offset:{(b%7)*256} sc1'] for b in range(14)]
    def fin(tb):
        Lx = [f'v_accvgpr_read_b32 v{4+i}, a{RAW+tb*8+i}' for i in range(8)]
        Lx += stats_finish(lambda _: 4, 1)
        k = V_K + tb*3
        Lx += [f'v_mul_f32 v{k+2}, v6, v6', f'v_mul_f32 v{k}, s44, v7', f'v_mul_f32 v{k+1}, v7, v7', f'v_mul_f32 v{k+1}, v{k+1}, v7',
               f'v_mul_f32 v{k+1}, s45, v{k+1}', 'v_cndmask_b32 v8, 0, v8, vcc'] + [f'v_accvgpr_write_b32 a{NMB+4*tb+i}, v8' for i in range(4)]
        return Lx
    def mfma(b, tb, p, c=None):
        a = acc(b, tb)
        cc = f'v[{a}:{a+3}]' if c is None else c
        return f'v_mfma_f32_16x16x32_bf16 v[{a}:{a+3}], a[{wfrag(p,b)}:{wfrag(p,b)+3}], a[{xfrag(p,tb)}:{xfrag(p,tb)+3}], {cc}'
    def reads(p, s):
        x = lambda tb: f'ds_read_b128 a[{xfrag(p,tb)}:{xfrag(p,tb)+3}], v{V_XRD+s} offset:{tb*2048}'
        def w(b, h):
            off = (b // 7) * WREG + 4 * h * 224 + (b % 7) * 32
            return f'ds_read_b64_tr_b16 a[{wfrag(p,b)+2*h}:{wfrag(p,b)+2*h+1}], v{V_WRD} offset:{off}'
        g = [x(0), w(0, 0), w(0, 1), x(1), x(2), x(3)]
        for b in range(1, 14): g += [w(b, 0), w(b, 1)]
        return g
    needs = [max(2 if tb == 0 else 2 + tb, 5 + 2*b if b else 0) for b in range(14) for tb in range(4)]
    n = q.wait_for({'X0', 'W0', 'W1'})
    e(f's_waitcnt vmcnt({n})')
    e('s_barrier')
    m.stamp('p3 main')
    e('v_cmp_gt_u32 vcc, 32, v2')
    e.ext(reads(0, 0))
    bodies = []
    for u in range(NB):
        B = []
        for s in range(2):
            t = 2 * u + s; p = s
            ms = [mfma(b, tb, p, '0' if t == 0 else None) for b in range(14) for tb in range(4)]
            last = (t == NSTEP - 1)
            rd = []; pre = []; bar = []
            if not last:
                pre = [f's_add_u32 s37, s37, {WHALF}', f's_cmp_eq_u32 s37, {WHALF*NWS}', 's_cselect_b32 s43, s49, s48',
                       's_cselect_b32 s37, 0, s37', f'v_add_u32 v{V_WRD}, s43, v{V_WRD}']
                if s == 1:
                    pre += [f's_add_u32 s36, s36, {XSLOT}', f's_cmp_eq_u32 s36, {XSLOT*NXS}', 's_cselect_b32 s42, s51, s50',
                            's_cselect_b32 s36, 0, s36', f'v_add_u32 v{V_XRD}, s42, v{V_XRD}']
                else:
                    pre += [f'v_add_u32 v{V_XRD+1}, s42, v{V_XRD+1}']
                rd = reads(p ^ 1, s ^ 1)
            if t > 0 and not last:
                tags = {f'W{t+1}'} | ({f'X{u+1}'} if s == 1 else set())
                if t == NSTEP - 2: tags |= {'small', 'csl'}
                if t == 29: tags |= {'flg'}
                n = q.wait_for(tags)
                bar = [f's_waitcnt vmcnt({n})', 's_barrier']
            dm = []
            for g in take(t, 3 if t < 3 else 2):
                for ins in mk[g[1]](): dm.append(ins); q.issue(g[0])
            if touch and s == 0 and 2 <= u < 16:
                dm.append([f'buffer_load_dword a{ONES+4}, v26, s[4:7], s33 offen', 's_add_u32 s33, s33, 512']); q.issue('touch')
            if t == 28:
                for ins in small: dm.append(ins); q.issue('small')
            chk = docs and not m.opts.get('nosync')
            if chk and t == 27:
                dm.append([f's_lshl_b32 s19, s{S_NT2}, 8', f's_add_u32 s19, s19, {flag_off(0, E_CS, 0)}', 'v_mov_b32 v24, 0',
                           'buffer_load_dword v25, v24, s[24:27], s19 offen sc1']); q.issue('flg')
            if t == 29:
                if chk:
                    ok = m.lab('cok'); pl = m.lab('cpl')
                    bar += [f's_mov_b32 s39, {SPIN_LIMIT}', f'{pl}:', 'v_readfirstlane_b32 s18, v25', 's_nop 0', 's_cmp_ge_u32 s18, 8', f's_cbranch_scc1 {ok}',
                            's_sleep 1', 'buffer_load_dword v25, v24, s[24:27], s19 offen sc1', 's_waitcnt vmcnt(0)',
                            's_sub_u32 s39, s39, 1', 's_cmp_lg_u32 s39, 0', f's_cbranch_scc1 {pl}', f'{ok}:']
                for ins in csl: dm.append(ins); q.issue('csl')
            ex = []
            if t == NSTEP - 2: ex = fin(0) + fin(1)
            if t == NSTEP - 1: ex = fin(2) + fin(3)
            if docs and t == 4:
                ex = []
                for i in range(4):
                    ex += [f'v_accvgpr_read_b32 v{16+i}, a{CSP+4*i}']
                for i in range(4):
                    ex += [f'v_cvt_pk_bf16_f32 v{20+i}, v{16+i}, v{16+i}']
                for i in range(4):
                    ex += [f'v_and_b32 v{20+i}, 0xffff0000, v{20+i}']
                for i in range(4):
                    ex += [f'v_sub_f32 v{20+i}, v{16+i}, v{20+i}']
                for i in range(4):
                    ex += [f'v_cvt_pk_bf16_f32 v{20+i}, v{16+i}, v{20+i}']
            step = build_step(ms, needs, 32, pre, bar, rd, dm, ex, nb=4)
            if docs and t < 4:
                ls = [m.lab('cs') for _ in range(4)]; le = m.lab('cse')
                for w in range(4):
                    if w < 3: step += [f's_cmp_lg_u32 s20, {w}', f's_cbranch_scc1 {ls[w+1]}']
                    for i in range(4):
                        b = w + 4*i
                        if b < 14:
                            d = CSP + 4*i
                            step.append(f'v_mfma_f32_16x16x32_bf16 a[{d}:{d+3}], a[{ONES}:{ONES+3}], a[{wfrag(p,b)}:{wfrag(p,b)+3}], ' + ('0' if t == 0 else f'a[{d}:{d+3}]'))
                    if w < 3: step += [f's_branch {le}', f'{ls[w+1]}:']
                step += [f'{le}:']
                if t == 3: step += ['s_nop 7']
            if docs and t == 4:
                ls = [m.lab('cw') for _ in range(4)]; le = m.lab('cwe')
                step += ['s_mov_b64 exec, 0xffff']
                for w in range(4):
                    if w < 3: step += [f's_cmp_lg_u32 s20, {w}', f's_cbranch_scc1 {ls[w+1]}']
                    for i in range(4):
                        b = min(w + 4*i, 13) if w + 4*i >= 14 else w + 4*i
                        src = 20 + i if w + 4*i < 14 else None
                        if src is None:
                            b = w + 4*(i-1); src = 20 + i - 1
                        step.append(f'buffer_store_dword v{src}, v27, s[24:27], s{54 + b//7} offen offset:{(b%7)*256} sc1')
                    if w < 3: step += [f's_branch {le}', f'{ls[w+1]}:']
                step += [f'{le}:', 's_mov_b64 exec, -1']
                for i in range(4): q.issue('csw')
            if docs and t == 9:
                assert 'csw' not in q.q
                sk = m.lab('csp')
                if not m.opts.get('nosync'):
                    step += [f's_cmp_lg_u32 s20, 0', f's_cbranch_scc1 {sk}', f's_lshl_b32 s18, s{S_NT2}, 8', f's_add_u32 s18, s18, {flag_off(0, E_CS, 0)}',
                             'v_mov_b32 v1, 0', 'v_mov_b32 v3, 1', 's_mov_b64 exec, 1', 'buffer_atomic_add v3, v1, s[24:27], s18 offen sc1', 's_mov_b64 exec, -1', f'{sk}:']
            B += step
        bodies.append(B)
    assert not pend
    e.ext(loopify(bodies, m.lab('p3L'), 38))
    e('s_barrier')
    next_pre()
    for b in range(14):
        for tb in range(4):
            a = acc(b, tb)
            e(f'v_mfma_f32_16x16x32_bf16 v[{a}:{a+3}], a[{CSA+4*b}:{CSA+4*b+3}], a[{NMB+4*tb}:{NMB+4*tb+3}], v[{a}:{a+3}]')
    m.stamp('p3 epi')
    srd(e, 56, ws_off=reg(L, R_H), size=S*F*2)
    for tb in range(4): e(f's_mov_b32 s{60+tb}, {tb*16*LDW}')
    e(f'v_and_b32 v1, 1, v31')
    e(f'v_mul_u32_u24 v1, {16*LDW - 32}, v1')
    e(f'v_add_u32 v14, v1, v{V_ST}')
    TP = [4, 6, 12, 28]
    def ep_pair(t1, t2, voff, soff, imm):
        items = []
        for (b, tb) in (t1, t2):
            for h in range(2):
                items.append((acc(b, tb) + 2*h, acc(b + 7, tb) + 2*h, V_K + tb * 3))
        P = lambda i: f'v[{items[i][0]}:{items[i][0]+1}]'
        U = lambda i: f'v[{items[i][1]}:{items[i][1]+1}]'
        Tm = lambda i: f'v[{TP[i]}:{TP[i]+1}]'
        def bc(r): return (f'v[{r}:{r+1}]', 0) if r % 2 == 0 else (f'v[{r-1}:{r}]', 1)
        for i in range(4): e(f'v_pk_mul_f32 {Tm(i)}, {P(i)}, {P(i)}')
        for i in range(4):
            k = items[i][2]; (k2, s2), (k1, s1) = bc(k + 1), bc(k)
            e(f'v_pk_fma_f32 {Tm(i)}, {Tm(i)}, {k2}, {k1} op_sel:[0,{s2},{s1}] op_sel_hi:[1,{s2},{s1}]')
        for i in range(4): e(f'v_pk_mul_f32 {Tm(i)}, {Tm(i)}, {P(i)}')
        for i in range(8): e(f'v_exp_f32 v{TP[i//2]+i%2}, v{TP[i//2]+i%2}')
        for i in range(4): e(f'v_pk_mul_f32 {U(i)}, {U(i)}, {P(i)}')
        for i in range(4):
            k3, s3 = bc(items[i][2] + 2)
            e(f'v_pk_fma_f32 {Tm(i)}, {Tm(i)}, {k3}, {k3} op_sel:[0,{s3},{s3}] op_sel_hi:[1,{s3},{s3}]')
        for i in range(8): e(f'v_rcp_f32 v{TP[i//2]+i%2}, v{TP[i//2]+i%2}')
        for i in range(4): e(f'v_pk_mul_f32 {U(i)}, {U(i)}, {Tm(i)}')
        r = acc(*t1)
        for i in range(4): e(f'v_cvt_pk_bf16_f32 v{r+i}, v{items[i][1]}, v{items[i][1]+1}')
        e(f'v_permlane16_swap_b32 v{r}, v{r+2}')
        e(f'v_permlane16_swap_b32 v{r+1}, v{r+3}')
        e(f'buffer_store_dwordx4 v[{r}:{r+3}], v{voff}, s[56:59], s{soff} offen offset:{imm} sc1')
    for tb in range(4):
        for bp in range(3):
            ep_pair((2*bp, tb), (2*bp+1, tb), V_ST, 60 + tb, bp * 64)
        if tb % 2 == 1:
            ep_pair((6, tb - 1), (6, tb), 14, 60 + tb - 1, 192)
    m.stamp('p3 st')
    m.publish(L, E_D, f's_lshl_b32 s18, s{S_MT2}, 1\ns_add_u32 s18, s18, s{S_PAR}')
    m.stamp('p3 pub')
```

```python
from asmlib import *
from common import *
from mega import *

XT = 16384; WT = 8192; STAGE = 2 * XT + 2 * WT; NS = 3
def acc(nb, tb): return 32 + (nb * 4 + tb) * 4
def xfrag(p, tb): return 96 + p * 32 + tb * 4
def wfrag(p, nb): return 96 + p * 32 + 16 + nb * 4
V_RES = 160; V_TMP = 176
V_XOFF = 4; V_WOFF = 8; V_XRD = 12; V_WRD = 14
V_ST = 18; V_SST = 19; V_EX = 20; V_EXR = 21; V_RO = 22

def dma_x(half):
    g = []
    for j in range(4):
        ins = [f'buffer_load_dwordx4 v{V_XOFF+j}, s[8:11], s{30+half} offen offset:{j*1024} sc1 lds']
        if j == 0: ins = [f's_add_u32 m0, s34, s{40 if half == 0 else 52}', 's_nop 0'] + ins
        if j == 1 and half == 1: ins += [f's_add_u32 s34, s34, {STAGE}', f's_cmp_eq_u32 s34, {STAGE*NS}', 's_cselect_b32 s34, 0, s34']
        if j == 3: ins += [f's_add_u32 s{30+half}, s{30+half}, 256']
        g.append(ins)
    return g
def dma_w():
    g = []
    for j in range(4):
        ins = [f'buffer_load_dwordx4 v{V_WOFF+j}, s[12:15], s32 offen offset:{j*1024} lds']
        if j == 0: ins = ['s_add_u32 m0, s35, s41', 's_nop 0'] + ins
        if j == 1: ins += [f's_add_u32 s35, s35, {STAGE}', f's_cmp_eq_u32 s35, {STAGE*NS}', 's_cselect_b32 s35, 0, s35']
        if j == 3: ins += [f's_add_u32 s32, s32, {128*2048}']
        g.append(ins)
    return g

def pre_w(m, tag, K, wptr, ntiles=3):
    e = m.e
    srd(e, 12, ptr=wptr, size=K*D*2)
    e(f's_lshl_b32 s18, s20, 5\ns_lshl_b32 s19, s{S_CI}, 7')
    w_dma_offsets(e, V_WOFF, 4, 18, 2048, 19)
    e(f'''
    s_mov_b32 s32, 0
    s_mov_b32 s35, 0
    s_lshl_b32 s41, s20, 12
    s_add_u32 s41, s41, {2*XT}
    ''')
    for u in range(ntiles):
        for ins in dma_w(): e.ext(ins); m.q.issue(f'{tag}T{u}')
    m.pd_w = ntiles

def run(m, tag, K, a_off, res, out, st_off, wait_fn, pub_fn, next_pre, opts):
    e = m.e; q = m.q
    LDA = K * 2; NBODY = K // 128; NSTEP = 2 * NBODY
    srd(e, 8, ws_off=a_off, size=S*LDA)
    if res[0] == 'ptr': srd(e, 56, ptr=res[1], size=S*D*2)
    else: srd(e, 56, ws_off=res[1], size=S*D*2)
    e(f'''
    s_lshl_b32 s23, s{S_MT}, 7
    s_and_b32 s28, s20, 1            ; wm
    s_lshr_b32 s29, s20, 1           ; wk
    s_lshl_b32 s18, s28, 6
    s_add_u32 s33, s23, s18
    s_lshl_b32 s19, s29, 7
    ''')
    x_dma_offsets(e, V_XOFF, 33, LDA, 19)
    e(f'''
    s_mov_b32 s30, 0
    s_mov_b32 s31, {32*LDA}
    s_mov_b32 s34, 0
    s_lshl_b32 s40, s20, 13
    s_add_u32 s52, s40, 4096
    s_lshl_b32 s18, s29, 5
    s_add_u32 s18, s18, s33
    v_add_u32 v28, s18, v30
    v_lshlrev_b32 v29, 11, v28
    s_lshl_b32 s19, s{S_CI}, 7
    v_add_u32 v29, s19, v29
    v_lshl_add_u32 v{V_RO}, v31, 3, v29
    s_mov_b32 s60, {16*2048}
    v_and_b32 v1, 1, v31
    v_lshl_add_u32 v{V_ST}, v1, 5, v29
    v_lshrrev_b32 v1, 1, v31
    v_lshl_add_u32 v{V_ST}, v1, 4, v{V_ST}
    s_lshl_b32 s18, s18, 7
    s_lshr_b32 s19, s{S_CI}, 1
    s_lshl_b32 s19, s19, 8
    s_add_u32 s18, s18, s19
    s_and_b32 s19, s{S_CI}, 1
    s_lshl_b32 s19, s19, 3
    s_add_u32 s18, s18, s19
    v_lshlrev_b32 v{V_SST}, 4, v30
    v_add_u32 v{V_SST}, s18, v{V_SST}
    ''')
    x_read_addr(e, V_XRD, 40)
    e(f's_lshl_b32 s18, s29, 13\ns_add_u32 s18, s18, {2*XT}')
    w_read_addr(e, V_WRD, [0, 1, 2, 3], 18)
    e(f'''
    v_lshlrev_b32 v{V_EX}, 4, v2
    v_add_u32 v{V_EX}, s40, v{V_EX}
    v_xor_b32 v{V_EXR}, {2 << 13}, v{V_EX}
    s_mov_b32 s36, 0
    s_mov_b32 s42, 0
    s_mov_b32 s50, {STAGE}
    s_mov_b32 s51, {(-(NS-1)*STAGE) & 0xffffffff:#x}
    ''')
    m.stamp(tag + ' wait')
    wait_fn()
    m.stamp(tag + ' go')
    flat = []
    for u in range(NBODY):
        al = 2*(u - NS) + 1
        flat += [(ins, f'{tag}T{u}', al) for ins in dma_x(0) + dma_x(1)]
        if u >= m.pd_w: flat += [(ins, f'{tag}T{u}', al) for ins in dma_w()]
    def take(step, n):
        o = []
        while flat and len(o) < n and flat[0][2] <= step: o.append(flat.pop(0))
        return o
    n0 = sum(1 for f in flat if f[1] in (f'{tag}T0', f'{tag}T1'))
    for ins, tg, _ in take(-1, n0): e.ext(ins); q.issue(tg)
    small = []
    for i in range(2):
        for nb in range(4):
            r = V_RES + (i * 4 + nb) * 2
            small.append([f'buffer_load_dwordx2 v[{r}:{r+1}], v{V_RO}, s[56:59], {"0" if i == 0 else "s60"} offen offset:{nb*32}' + (' sc1' if res[0] == 'ws' else '')])
    def mfma(nb, tb, p, c=None):
        a = acc(nb, tb)
        cc = f'v[{a}:{a+3}]' if c is None else c
        return f'v_mfma_f32_16x16x32_bf16 v[{a}:{a+3}], v[{wfrag(p,nb)}:{wfrag(p,nb)+3}], v[{xfrag(p,tb)}:{xfrag(p,tb)+3}], {cc}'
    def reads(p, s):
        x = lambda tb: f'ds_read_b128 v[{xfrag(p,tb)}:{xfrag(p,tb)+3}], v{V_XRD+s} offset:{tb*2048}'
        w = lambda nb, h: f'ds_read_b64_tr_b16 v[{wfrag(p,nb)+2*h}:{wfrag(p,nb)+2*h+1}], v{V_WRD+nb} offset:{(32*s+4*h)*128}'
        g = [x(0), w(0, 0), w(0, 1), x(1), x(2), x(3)]
        for nb in range(1, 4): g += [w(nb, 0), w(nb, 1)]
        return g
    needs = [max(2 if tb == 0 else 2 + tb, 5 + 2*b if b else 0) for b in range(4) for tb in range(4)]
    n = q.wait_for({f'{tag}T0'})
    e(f's_waitcnt vmcnt({n})')
    e('s_barrier')
    m.stamp(tag + ' main')
    e.ext(reads(0, 0))
    bodies = []
    for u in range(NBODY):
        B = []
        for s in range(2):
            t = 2 * u + s; p = s
            last = (t == NSTEP - 1)
            ms = [mfma(nb, tb, p, '0' if t == 0 else None) for nb in range(4) for tb in range(4)]
            pre = []; bar = []; rd = []
            if not last:
                if s == 1:
                    pre = [f's_add_u32 s36, s36, {STAGE}', f's_cmp_eq_u32 s36, {STAGE*NS}', 's_cselect_b32 s42, s51, s50',
                           's_cselect_b32 s36, 0, s36', f'v_add_u32 v{V_XRD}, s42, v{V_XRD}'] + \
                          [f'v_add_u32 v{V_WRD+i}, s42, v{V_WRD+i}' for i in range(4)]
                    n = q.wait_for({f'{tag}T{u+1}'})
                    bar = [f's_waitcnt vmcnt({n})', 's_barrier']
                else:
                    pre = [f'v_add_u32 v{V_XRD+1}, s42, v{V_XRD+1}']
                rd = reads(p ^ 1, s ^ 1)
            dm = []
            for ins, tg, _ in take(t, 8 if (s == 1 or t == 0) else 4): dm.append(ins); q.issue(tg)
            if not flat and not dm and small:
                for ins in small[:4]: dm.append(ins); q.issue('res')
                small = small[4:]
            B += build_step(ms, needs, 12, pre, bar, rd, dm, [], nb=(3 if s == 1 else 1))
        bodies.append(B)
    assert not flat and not small
    e.ext(loopify(bodies, m.lab(tag + 'L'), 38))
    e('s_barrier')
    m.stamp(tag + ' epi')
    e('s_nop 7')
    l0 = m.lab('wk0'); lx = m.lab('ex')
    e(f's_cmp_eq_u32 s29, 0\ns_cbranch_scc1 {l0}')
    nres = q.wait_for({'res'})
    def exch(wk):
        keep = [2*wk, 2*wk+1]; send = [2 - 2*wk, 3 - 2*wk]
        for i, tb in enumerate(send):
            for nb in range(4):
                a = acc(nb, tb)
                e(f'ds_write_b128 v{V_EX}, v[{a}:{a+3}] offset:{(i*4+nb)*1024}')
        e(f's_waitcnt vmcnt({nres})')
        for i in range(2):
            for nb in range(4):
                r = V_RES + (i*4+nb)*2; tm = V_TMP + (i*4+nb)*4
                e(f'v_lshlrev_b32 v{tm}, 16, v{r}')
                e(f'v_and_b32 v{tm+1}, 0xffff0000, v{r}')
                e(f'v_lshlrev_b32 v{tm+2}, 16, v{r+1}')
                e(f'v_and_b32 v{tm+3}, 0xffff0000, v{r+1}')
        e('s_waitcnt lgkmcnt(0)')
        e('s_barrier')
        for i in range(2):
            for nb in range(4):
                r = 96 + (i*4+nb)*4
                e(f'ds_read_b128 v[{r}:{r+3}], v{V_EXR} offset:{(i*4+nb)*1024}')
        for i, tb in enumerate(keep):
            for nb in range(4):
                a = acc(nb, tb); tm = V_TMP + (i*4+nb)*4
                e(f'v_pk_add_f32 v[{tm}:{tm+1}], v[{tm}:{tm+1}], v[{a}:{a+1}]')
                e(f'v_pk_add_f32 v[{tm+2}:{tm+3}], v[{tm+2}:{tm+3}], v[{a+2}:{a+3}]')
    exch(1)
    e(f's_branch {lx}\n{l0}:')
    exch(0)
    e(f'{lx}:')
    if out[0] == 'ptr': srd(e, 56, ptr=out[1], size=S*D*2)
    else: srd(e, 56, ws_off=out[1], size=S*D*2)
    e('s_waitcnt lgkmcnt(0)')
    for i in range(2):
        for nb in range(4):
            r = 96 + (i*4+nb)*4; tm = V_TMP + (i*4+nb)*4
            e(f'v_pk_add_f32 v[{tm}:{tm+1}], v[{tm}:{tm+1}], v[{r}:{r+1}]')
            e(f'v_pk_add_f32 v[{tm+2}:{tm+3}], v[{tm+2}:{tm+3}], v[{r+2}:{r+3}]')
    for i in range(2):
        for nb in range(4):
            tm = V_TMP + (i*4+nb)*4; o = 32 + i*8 + nb*2
            e(f'v_cvt_pk_bf16_f32 v{o}, v{tm}, v{tm+1}')
            e(f'v_cvt_pk_bf16_f32 v{o+1}, v{tm+2}, v{tm+3}')
    if st_off is not None:
        e('s_mov_b32 s18, 0x3f803f80')
        for i in range(2):
            e(f'v_mov_b32 v{48+2*i}, 0'); e(f'v_mov_b32 v{49+2*i}, 0')
        for d in range(8):
            for i in range(2):
                o = 32 + i*8 + d
                e(f'v_dot2_f32_bf16 v{48+2*i}, v{o}, s18, v{48+2*i}')
                e(f'v_dot2_f32_bf16 v{49+2*i}, v{o}, v{o}, v{49+2*i}')
        e('s_nop 2')
    sa = ' sc1' if out[0] == 'ws' else ''
    for i in range(2):
        for pr in range(2):
            o = 32 + i*8 + pr*4
            e(f'v_permlane16_swap_b32 v{o}, v{o+2}')
            e(f'v_permlane16_swap_b32 v{o+1}, v{o+3}')
            e(f'buffer_store_dwordx4 v[{o}:{o+3}], v{V_ST}, s[56:59], {"0" if i == 0 else "s60"} offen offset:{pr*64}{sa}')
    if st_off is not None:
        for sw in ('v_permlane32_swap_b32', 'v_permlane16_swap_b32'):
            for j in range(4): e(f'v_mov_b32 v{52+j}, v{48+j}')
            for j in range(4): e(f'{sw} v{48+j}, v{52+j}')
            for j in range(2): e(f'v_pk_add_f32 v[{48+2*j}:{49+2*j}], v[{48+2*j}:{49+2*j}], v[{52+2*j}:{53+2*j}]')
        e(f's_mov_b32 s18, {st_off}')
        e('s_mov_b64 exec, 0xffff')
        e(f'buffer_store_dwordx2 v[48:49], v{V_SST}, s[24:27], s18 offen sc1')
        e(f'buffer_store_dwordx2 v[50:51], v{V_SST}, s[24:27], s18 offen offset:2048 sc1')
        e('s_mov_b64 exec, -1')
    m.stamp(tag + ' st')
    pub_fn()
    m.stamp(tag + ' pub')
    next_pre()
```

```python
import sys
import build, k0, p1, pd, p3
from mega import *
from common import *
LDS = 163840
def make(opts=None, info=None):
    opts = opts or {}
    m = M('mega_kernel', opts)
    m.prologue()
    m.stamp('start')
    p1.pre_w(m, 0)
    for L in range(2):
        xin = ('ptr', P_X) if L == 0 else ('ws', reg(0, R_X2))
        p1.run(m, L, lambda: pd.pre_w(m, 'p2', 1024, P_WO))
        pd.run(m, 'p2', 1024, reg(L, R_O), xin, ('ws', reg(L, R_X1)), reg(L, R_STF),
               lambda: m.wait(L, E_B, f's_mov_b32 s18, s{S_MT}', 16),
               lambda: m.publish(L, E_C, f's_lshr_b32 s18, s{S_MT}, 1\ns_lshl_b32 s18, s18, 1\ns_add_u32 s18, s18, s{S_PAR}'),
               lambda: p3.pre_w(m, L), opts.get('p2', {}))
        p3.run(m, L, lambda: pd.pre_w(m, 'p4', 3584, P_DOWN))
        last = (L == 1)
        pd.run(m, 'p4', 3584, reg(L, R_H), ('ws', reg(L, R_X1)), ('ptr', P_OUT) if last else ('ws', reg(0, R_X2)), None if last else reg(1, R_STA),
               lambda: m.wait(L, E_D, f's_lshr_b32 s18, s{S_MT}, 1\ns_lshl_b32 s18, s18, 1', 16, nshard=2),
               (lambda: None) if last else (lambda: m.publish(L, E_E, f's_mov_b32 s18, s{S_MT}')),
               (lambda: None) if last else (lambda: p1.pre_w(m, 1)), opts.get('p4', {}))
    if info is not None: info['stamps'] = m.stamp_names
    kt = m.finish()
    kt0, lds0 = k0.gen('k0_kernel', opts.get('k0'))
    return build.assemble_file([('k0_kernel', k0.NCS + k0.NST, 256, lds0), ('mega_kernel', 256, 256, LDS)], [kt0, kt])
if __name__ == '__main__':
    out = sys.argv[1] if len(sys.argv) > 1 else 'interleave_layers__linear_kernel_hedgehog__geglu_ffn__prompt.s'
    opts = eval(sys.argv[2]) if len(sys.argv) > 2 else {}
    open(out, 'w').write(make(opts))
```

```python
import struct
f2u = lambda f: struct.unpack('<I', struct.pack('<f', f))[0]
MB = 1 << 20
S, D, F = 2048, 1024, 3584
WS_SIZE = 268435456
LOG2E = 1.4426950408889634
LAYER_STRIDE = 44 * MB
R_O = 0
R_X1 = 4 * MB
R_X2 = 8 * MB
R_H = 12 * MB
R_KVP = 27 * MB
R_KVR = 32 * MB
R_STA = 33 * MB
R_STF = 33 * MB + 512 * 1024
R_PX = 34 * MB
def reg(layer, r): return 65536 + layer * LAYER_STRIDE + r
WS_CS = 90 * MB
CS_COLS = 10240
CS_PLANE = CS_COLS * 16
WS_FLAGS = 91 * MB
WS_XCC = 93 * MB
WS_STAMP = 94 * MB
KVP_HEAD = 8448
def flag_off(layer, edge, group): return WS_FLAGS + ((layer * 16 + edge) * 64 + group) * 256
E_A1, E_A2, E_B, E_C, E_D, E_E, E_CS, E_S, E_CSQ = range(9)
WS_XFLAGS = WS_FLAGS + 2 * 16 * 64 * 256
FLAG_BYTES = 2 * 16 * 64 * 256

class DmaQ:
    def __init__(self): self.q = []
    def issue(self, tag): self.q.append(tag)
    def wait_for(self, tags):
        last = -1
        for i, t in enumerate(self.q):
            if t in tags: last = i
        n = len(self.q) - 1 - last
        if last >= 0: self.q = self.q[last + 1:]
        return min(n, 63)
    def clear(self): self.q = []

def loopify(bodies, label, cnt_sreg):
    out = []; i = 0; k = 0
    while i < len(bodies):
        j = i
        while j + 1 < len(bodies) and bodies[j + 1] == bodies[i]: j += 1
        n = j - i + 1
        if n >= 2:
            out.append(f's_mov_b32 s{cnt_sreg}, {n}')
            out.append(f'{label}_{k}:')
            out.extend(bodies[i])
            out.append(f's_sub_u32 s{cnt_sreg}, s{cnt_sreg}, 1')
            out.append(f's_cmp_lg_u32 s{cnt_sreg}, 0')
            out.append(f's_cbranch_scc1 {label}_{k}')
            k += 1
        else:
            out.extend(bodies[i])
        i = j + 1
    return out

RPACE = 1.6; RMARGIN = 3; COARSE = 4
def cost(ins):
    if '\n' in ins: return sum(cost(x) for x in ins.split('\n'))
    op = ins.split()[0]
    if op.startswith('s_') or op.endswith(':'): return 0.67
    if op in ('v_exp_f32', 'v_rcp_f32', 'v_sqrt_f32', 'v_rsq_f32') or 'permlane' in op: return 2
    return 1
def atomize(L):
    out = []
    for x in L:
        if out and (x.startswith('s_cselect') or x.startswith('s_cbranch_scc')) and (out[-1].split('\n')[-1].startswith(('s_cmp', 's_cselect'))):
            out[-1] += '\n' + x
        else: out.append(x)
    return out
def is_vmem(ins): return ins.startswith('buffer_') or ins.startswith('global_')

def build_step(ms, needs, nprev, pre, bar, rd, dm, extra, nb=3, dstart=None, dspan=None, cap=2.01):
    n = len(ms)
    gaps = [[] for _ in ms]
    load = lambda g: sum(cost(x) for x in g)
    gi = 0
    pre = atomize(pre); extra = atomize(extra)
    for x in pre:
        while gi < nb - 1 and load(gaps[gi]) + cost(x) > cap: gi += 1
        gaps[gi].append(x)
    gaps[nb - 1] += bar
    r0 = nb - 1 if (bar or load(gaps[nb - 1]) + 1 <= cap) else nb
    ws_ = [1.0 if 'b128' in g else 0.5 for g in rd]
    tot = sum(ws_)
    span_r = max(tot, min(n - r0 - RMARGIN, RPACE * tot))
    pos = 0.0
    for g, w in zip(rd, ws_):
        gaps[min(r0 + int(pos * span_r / tot), n - 1)].append(g)
        pos += w
    rend = nb + 1
    def place(stream, first, targets=None, c=cap):
        cur = first; k = 0
        for idx, x in enumerate(stream):
            want = cur
            if targets is not None:
                if is_vmem(x): want = max(cur, targets[k]); k += 1
            g = want
            while g < n - 1 and load(gaps[g]) + cost(x) > c: g += 1
            gaps[min(g, n - 1)].append(x); cur = min(g, n - 1)
    if dm:
        flat = atomize([x for g in dm for x in g if x != 's_nop 0'])
        nv = sum(1 for x in flat if is_vmem(x))
        ds = min(max(nb + 1, rend if rd else 0), n - 2) if dstart is None else dstart
        span = (n - 1 - ds) if dspan is None else dspan
        place(flat, nb, [ds + (i * span) // nv for i in range(nv)])
    if extra:
        c = cap
        while sum(max(0, c - load(g)) for g in gaps[nb:]) < sum(cost(x) for x in extra) + 3: c += 0.5
        place(extra, nb, None, c)
    step = []
    done = -1; newi = 0
    for i, (m, g) in enumerate(zip(ms, gaps)):
        want = needs[i] if i % COARSE == 0 else -1
        if i % COARSE == 0: want = max(needs[i:i + COARSE])
        if want > done:
            allowed = min(15, (nprev - 1 - want) + newi)
            step.append(f's_waitcnt lgkmcnt({allowed})')
            done = nprev - 1 - (allowed - newi) if allowed - newi >= 0 else nprev - 1
        step.append(m)
        for x in [y for it in g for y in it.split('\n')]:
            if x == 's_barrier' and done < nprev - 1:
                assert newi == 0
                step.append('s_waitcnt lgkmcnt(0)'); done = nprev - 1
            step.append(x)
            if x.startswith('ds_'): newi += 1
    return step

def stats_t(raw, out_a, out_nm, tmp):
    L = []
    r = raw
    for w in (16, 8, 4, 2):
        for i in range(w): L.append(f'v_add_f32 v{r+i}, v{r+i}, v{r+w+i}')
    L += [f'v_mul_f32 v{r}, s46, v{r}', f'v_mul_f32 v{r+1}, s46, v{r+1}', f'v_fma_f32 v{r+1}, -v{r}, v{r}, v{r+1}', f'v_max_f32 v{r+1}, 0, v{r+1}',
          f'v_cvt_pk_bf16_f32 v{r+2}, v{r+1}, v{r+1}', f'v_cvt_pk_bf16_f32 v{out_nm}, -v{r}, -v{r}', f'v_and_b32 v{r+2}, 0xffff0000, v{r+2}', f'v_add_f32 v{r+2}, s47, v{r+2}',
          f'v_cvt_pk_bf16_f32 v{r+2}, v{r+2}, v{r+2}', f'v_mov_b32 v{out_nm+1}, v{out_nm}', f'v_and_b32 v{r+2}, 0xffff0000, v{r+2}', f'v_sqrt_f32 v{r+2}, v{r+2}',
          f'v_permlane16_swap_b32 v{out_nm}, v{out_nm+1}',
          f'v_cvt_pk_bf16_f32 v{r+2}, v{r+2}, v{r+2}', f'v_and_b32 v{out_a}, 0xffff0000, v{r+2}',
          f'v_mov_b32 v{out_nm+2}, v{out_nm}', f'v_mov_b32 v{out_nm+3}, v{out_nm+1}', f'v_mov_b32 v{out_a+1}, v{out_a}',
          f'v_permlane32_swap_b32 v{out_nm}, v{out_nm+2}', f'v_permlane32_swap_b32 v{out_nm+1}, v{out_nm+3}',
          f'v_permlane16_swap_b32 v{out_a}, v{out_a+1}',
          f'v_mov_b32 v{out_a+2}, v{out_a}', f'v_mov_b32 v{out_a+3}, v{out_a+1}', 's_nop 0',
          f'v_permlane32_swap_b32 v{out_a}, v{out_a+2}', f'v_permlane32_swap_b32 v{out_a+1}, v{out_a+3}']
    return L

def stats_finish(rr, n=4, pk=False):
    L = []
    def each(fmt):
        for tb in range(n):
            L.append(eval("f'''" + fmt + "'''", {'r': rr(tb)}))
    def add2(d, a, b):
        if pk: each('v_pk_add_f32 v[{r+%d}:{r+%d}], v[{r+%d}:{r+%d}], v[{r+%d}:{r+%d}]' % (d, d+1, a, a+1, b, b+1))
        else:
            each('v_add_f32 v{r+%d}, v{r+%d}, v{r+%d}' % (d, a, b)); each('v_add_f32 v{r+%d}, v{r+%d}, v{r+%d}' % (d+1, a+1, b+1))
    add2(0, 0, 2); add2(4, 4, 6); add2(0, 0, 4)
    for sw in ('v_permlane32_swap_b32', 'v_permlane16_swap_b32'):
        each('v_mov_b32 v{r+2}, v{r}')
        each('v_mov_b32 v{r+3}, v{r+1}')
        each(sw + ' v{r}, v{r+2}')
        each(sw + ' v{r+1}, v{r+3}')
        add2(0, 0, 2)
    each('v_mul_f32 v{r}, s46, v{r}')
    each('v_mul_f32 v{r+1}, s46, v{r+1}')
    each('v_fma_f32 v{r+1}, -v{r}, v{r}, v{r+1}')
    each('v_max_f32 v{r+1}, 0, v{r+1}')
    each('v_cvt_pk_bf16_f32 v{r+2}, v{r+1}, v{r+1}')
    each('v_and_b32 v{r+2}, 0xffff0000, v{r+2}')
    each('v_add_f32 v{r+2}, s47, v{r+2}')
    each('v_cvt_pk_bf16_f32 v{r+2}, v{r+2}, v{r+2}')
    each('v_and_b32 v{r+2}, 0xffff0000, v{r+2}')
    each('v_sqrt_f32 v{r+2}, v{r+2}')
    each('v_cvt_pk_bf16_f32 v{r+4}, -v{r}, -v{r}')
    each('v_cvt_pk_bf16_f32 v{r+2}, v{r+2}, v{r+2}')
    each('v_and_b32 v{r+2}, 0xffff0000, v{r+2}')
    each('v_rcp_f32 v{r+3}, v{r+2}')
    return L
```

```python
from asmlib import *
from common import *
LDS_BYTES = 4096
NCS = 48; NST = 128
def gen(name, opts=None):
    opts = opts or {}
    ws0 = opts.get('ws0', 0)
    e = Asm()
    e(f'''
    s_cmp_ge_u32 s2, {NCS + NST}
    s_cbranch_scc1 {name}_end
    s_load_dwordx4 s[4:7], s[0:1], 0
    s_load_dwordx2 s[16:17], s[0:1], 80
    v_lshrrev_b32 v1, 6, v0
    v_and_b32 v2, 63, v0
    v_readfirstlane_b32 s20, v1
    s_mov_b32 s11, 0x00020000
    s_mov_b32 s26, {WS_SIZE - ws0*MB}
    s_mov_b32 s27, 0x00020000
    s_mov_b32 s18, 0x3f803f80
    s_cmp_ge_u32 s2, {NCS}
    s_cbranch_scc1 {name}_stats
    s_waitcnt lgkmcnt(0)
    s_add_u32 s24, s16, {ws0*MB}
    s_addc_u32 s25, s17, 0
    s_mov_b32 s8, s6
    s_mov_b32 s9, s7
    s_mov_b32 s10, {D*3*D*2}
    v_lshrrev_b32 v3, 3, v2
    s_lshl_b32 s19, s20, 8
    v_add_u32 v3, s19, v3
    v_mul_u32_u24 v3, {3*D*2}, v3
    v_and_b32 v4, 7, v2
    v_lshl_add_u32 v3, v4, 4, v3
    s_lshl_b32 s19, s2, 7
    v_add_u32 v3, s19, v3
    s_mov_b32 s19, 0
    ''')
    for i in range(32):
        e(f'buffer_load_dwordx4 v[{32+4*i}:{35+4*i}], v3, s[8:11], s19 offen')
        if i < 31: e(f's_add_u32 s19, s19, {8*3*D*2}')
    for i in range(8): e(f'v_mov_b32 v{8+i}, 0')
    for i in range(32):
        e(f's_waitcnt vmcnt({31-i})')
        for j in range(4):
            r = 32 + 4*i + j
            e(f'v_lshlrev_b32 v{16+2*j}, 16, v{r}')
            e(f'v_and_b32 v{17+2*j}, 0xffff0000, v{r}')
        for j in range(4):
            e(f'v_pk_add_f32 v[{8+2*j}:{9+2*j}], v[{8+2*j}:{9+2*j}], v[{16+2*j}:{17+2*j}]')
    for i in range(8): e(f'v_add_f32_dpp v{8+i}, v{8+i}, v{8+i} row_ror:8 row_mask:0xf bank_mask:0xf')
    for sw in ('v_permlane16_swap_b32', 'v_permlane32_swap_b32'):
        for i in range(8): e(f'v_mov_b32 v{16+i}, v{8+i}')
        for i in range(8): e(f'{sw} v{8+i}, v{16+i}')
        for i in range(4): e(f'v_pk_add_f32 v[{8+2*i}:{9+2*i}], v[{8+2*i}:{9+2*i}], v[{16+2*i}:{17+2*i}]')
    e(f'''
    v_lshlrev_b32 v3, 5, v4
    s_lshl_b32 s19, s20, 8
    v_add_u32 v3, s19, v3
    s_mov_b64 exec, 0xff
    ds_write_b128 v3, v[8:11]
    ds_write_b128 v3, v[12:15] offset:16
    s_mov_b64 exec, -1
    s_waitcnt lgkmcnt(0)
    s_barrier
    s_cmp_lg_u32 s20, 0
    s_cbranch_scc1 {name}_end
    v_lshlrev_b32 v3, 2, v2
    ds_read_b32 v8, v3
    ds_read_b32 v9, v3 offset:256
    ds_read_b32 v10, v3 offset:512
    ds_read_b32 v11, v3 offset:768
    v_mov_b32 v13, 0
    v_mov_b32 v14, 0
    v_mov_b32 v15, 0
    s_waitcnt lgkmcnt(0)
    v_add_f32 v8, v8, v9
    v_add_f32 v10, v10, v11
    v_add_f32 v8, v8, v10
    v_cvt_pk_bf16_f32 v9, v8, v8
    v_and_b32 v10, 0xffff0000, v9
    v_sub_f32 v10, v8, v10
    v_cvt_pk_bf16_f32 v12, v8, v10
    v_lshlrev_b32 v3, 4, v2
    s_lshl_b32 s19, s2, 10
    s_add_u32 s19, s19, {WS_CS}
    buffer_store_dwordx4 v[12:15], v3, s[24:27], s19 offen
    s_endpgm
    {name}_stats:
    s_waitcnt lgkmcnt(0)
    s_add_u32 s24, s16, {ws0*MB}
    s_addc_u32 s25, s17, 0
    s_mov_b32 s8, s4
    s_mov_b32 s9, s5
    s_mov_b32 s10, {S*D*2}
    s_sub_u32 s21, s2, {NCS}
    s_lshl_b32 s22, s21, 2
    s_add_u32 s22, s22, s20
    s_lshl_b32 s23, s22, 2
    v_lshlrev_b32 v3, 5, v2
    s_lshl_b32 s19, s23, 11
    ''')
    for r in range(4):
        for h in range(2):
            e(f'buffer_load_dwordx4 v[{32+r*8+h*4}:{35+r*8+h*4}], v3, s[8:11], s19 offen offset:{(r%2)*2048 + h*16}')
        if r == 1: e('s_add_u32 s19, s19, 4096')
    e(f'''
    v_mov_b32 v4, 0
    v_lshlrev_b32 v5, 8, v2
    s_lshl_b32 s19, s22, 10
    s_add_u32 s19, s19, {WS_FLAGS}
    s_mov_b64 exec, 0xf
    buffer_store_dword v4, v5, s[24:27], s19 offen
    v_lshlrev_b32 v5, 7, v2
    s_lshl_b32 s19, s22, 9
    s_add_u32 s19, s19, {WS_XFLAGS}
    buffer_store_dword v4, v5, s[24:27], s19 offen
    s_mov_b64 exec, -1
    ''')
    for r in range(4): e(f'v_mov_b32 v{8+2*r}, 0'); e(f'v_mov_b32 v{9+2*r}, 0')
    e('s_waitcnt vmcnt(0)')
    for d in range(8):
        for r in range(4):
            x = 32 + r*8 + d
            e(f'v_dot2_f32_bf16 v{8+2*r}, v{x}, s18, v{8+2*r}')
            e(f'v_dot2_f32_bf16 v{9+2*r}, v{x}, v{x}, v{9+2*r}')
    e('s_nop 4')
    for i in range(8): e(f'v_add_f32_dpp v{8+i}, v{8+i}, v{8+i} quad_perm:[1,0,3,2] row_mask:0xf bank_mask:0xf')
    for i in range(8): e(f'v_add_f32_dpp v{8+i}, v{8+i}, v{8+i} quad_perm:[2,3,0,1] row_mask:0xf bank_mask:0xf')
    e(f'''
    v_lshrrev_b32 v3, 3, v2
    v_lshlrev_b32 v3, 8, v3
    v_bfe_u32 v4, v2, 2, 1
    v_lshl_add_u32 v3, v4, 3, v3
    s_lshl_b32 s19, s21, 11
    s_lshl_b32 s22, s20, 6
    s_add_u32 s19, s19, s22
    s_add_u32 s19, s19, {reg(0, R_STA)}
    s_mov_b32 exec_lo, 0x11111111
    s_mov_b32 exec_hi, 0x11111111
    ''')
    for r in range(4):
        e(f'buffer_store_dwordx2 v[{8+2*r}:{9+2*r}], v3, s[24:27], s19 offen offset:{r*16}')
    e(f'{name}_end:')
    e('s_endpgm')
    return kernel_text(name, hazard_pass(e.L), 160, 0), LDS_BYTES
```

```python
from asmlib import *
from common import *

P_X, P_WQKV, P_PHI, P_WO, P_GATE, P_UP, P_DOWN, P_OUT = 64, 66, 68, 70, 74, 76, 78, 80
S_MT, S_CI, S_MT2, S_NT2, S_PAR = 84, 85, 86, 87, 88
SPIN_LIMIT = 1 << 22

class M:
    def __init__(self, name, opts):
        self.e = Asm(); self.name = name; self.opts = opts; self.nl = 0; self.q = DmaQ(); self.nst = 0
        self.stamp_names = []
    def lab(self, s):
        self.nl += 1
        return f'{self.name}_{s}{self.nl}'
    def prologue(self):
        e = self.e
        e(f'''
        s_cmp_ge_u32 s2, 256
        s_cbranch_scc1 {self.name}_end
        s_load_dwordx16 s[64:79], s[0:1], 0
        s_load_dwordx2 s[80:81], s[0:1], 64
        s_load_dwordx2 s[16:17], s[0:1], 80
        v_lshrrev_b32 v1, 6, v0
        v_and_b32 v2, 63, v0
        v_readfirstlane_b32 s20, v1
        v_and_b32 v30, 15, v2
        v_lshrrev_b32 v31, 4, v2
        s_and_b32 s21, s2, 7
        s_lshr_b32 s22, s2, 3             ; idx
        s_lshr_b32 s23, s21, 1            ; rg
        s_and_b32 s{S_PAR}, s21, 1
        s_lshl_b32 s18, s23, 2
        s_and_b32 s19, s22, 3
        s_add_u32 s{S_MT}, s18, s19
        s_lshl_b32 s18, s{S_PAR}, 3
        s_lshr_b32 s19, s22, 2
        s_add_u32 s{S_CI}, s18, s19
        s_lshl_b32 s18, s23, 1
        s_and_b32 s19, s22, 1
        s_add_u32 s{S_MT2}, s18, s19
        s_lshl_b32 s18, s{S_PAR}, 4
        s_lshr_b32 s19, s22, 1
        s_add_u32 s{S_NT2}, s18, s19
        s_mov_b32 s11, 0x00020000
        s_mov_b32 s15, 0x00020000
        s_mov_b32 s26, {WS_SIZE - self.opts.get('ws0', 0)*MB}
        s_mov_b32 s27, 0x00020000
        s_mov_b32 s59, 0x00020000
        s_mov_b32 s46, {f2u(1.0/1024):#x}
        s_mov_b32 s47, {f2u(1e-5):#x}
        s_lshl_b32 s89, s2, 2
        s_add_u32 s89, s89, s20
        s_lshl_b32 s89, s89, 10
        s_add_u32 s89, s89, {WS_STAMP}
        s_waitcnt lgkmcnt(0)
        s_add_u32 s16, s16, {self.opts.get('ws0', 0)*MB}
        s_addc_u32 s17, s17, 0
        s_mov_b32 s24, s16
        s_mov_b32 s25, s17
        ''')
    def xcc_publish(self):
        e = self.e
        e(f'''
        s_getreg_b32 s94, hwreg(HW_REG_XCC_ID)
        s_and_b32 s94, s94, 15
        s_add_u32 s94, s94, 1
        s_and_b32 s18, s2, 7
        s_lshl_b32 s18, s18, 7
        s_add_u32 s95, s18, {WS_XCC}
        s_lshr_b32 s19, s2, 3
        s_lshl_b32 s19, s19, 2
        s_add_u32 s18, s95, s19
        v_mov_b32 v1, 0
        v_mov_b32 v3, s94
        s_mov_b64 exec, 1
        buffer_store_dword v3, v1, s[24:27], s18 offen sc1
        s_mov_b64 exec, -1
        ''')
        self.q.issue('xcc')
    def xcc_check_issue(self, v):
        e = self.e
        e(f'v_and_b32 v1, 31, v2\nv_lshlrev_b32 v1, 2, v1\nbuffer_load_dword v{v}, v1, s[24:27], s95 offen sc1')
        self.q.issue('xcl')
    def xcc_check_finish(self, v):
        e = self.e
        e(f'v_cmp_ne_u32 vcc, s94, v{v}\ns_nop 1\ns_cmp_eq_u64 vcc, 0\ns_cselect_b32 s94, 1, 0')
        if self.opts.get('nolocal'): e('s_mov_b32 s94, 0')
    def stamp(self, nm):
        if not self.opts.get('stamp'): return
        e = self.e
        i = self.nst; self.nst += 1; self.stamp_names.append(nm)
        e('s_memrealtime s[90:91]')
        e('s_memtime s[92:93]')
        e('s_waitcnt lgkmcnt(0)')
        e('v_mov_b32 v0, s90')
        e('v_mov_b32 v1, s92')
        e('v_mov_b32 v3, 0')
        e('s_mov_b64 exec, 1')
        e(f'buffer_store_dwordx2 v[0:1], v3, s[24:27], s89 offen offset:{8*i}')
        e('s_mov_b64 exec, -1')
        self.q.issue('stamp')
    def publish(self, layer, edge, group_expr, drained=False):
        e = self.e
        if self.opts.get('nosync'): return
        skip = self.lab('pub')
        e('s_waitcnt vmcnt(0)'); self.q.clear()
        e('s_barrier')
        e(f's_cmp_lg_u32 s20, 0\ns_cbranch_scc1 {skip}')
        e(group_expr)
        e(f'''
        s_lshl_b32 s18, s18, 8
        s_add_u32 s18, s18, {flag_off(layer, edge, 0)}
        v_mov_b32 v1, 0
        v_mov_b32 v3, 1
        s_mov_b64 exec, 1
        buffer_atomic_add v3, v1, s[24:27], s18 offen sc1
        s_mov_b64 exec, -1
        {skip}:
        ''')
    def wait(self, layer, edge, group_expr, target, nshard=1, stride=1, barrier=True):
        e = self.e
        if self.opts.get('nosync'):
            return
        bar = self.lab('wbar'); poll = self.lab('poll'); got = self.lab('got')
        e(f's_cmp_lg_u32 s20, 0\ns_cbranch_scc1 {bar}')
        e(group_expr)
        e(f'''
        s_lshl_b32 s18, s18, 8
        s_add_u32 s18, s18, {flag_off(layer, edge, 0)}
        v_mul_u32_u24 v1, {256*stride}, v2
        s_mov_b64 exec, {(1 << nshard) - 1}
        s_mov_b32 s39, {SPIN_LIMIT}
        {poll}:
        buffer_load_dword v3, v1, s[24:27], s18 offen sc1
        s_waitcnt vmcnt(0)
        v_cmp_gt_u32 vcc, {target}, v3
        s_nop 1
        s_cmp_eq_u64 vcc, 0
        s_cbranch_scc1 {got}
        s_sleep 1
        s_sub_u32 s39, s39, 1
        s_cmp_lg_u32 s39, 0
        s_cbranch_scc1 {poll}
        {got}:
        s_mov_b64 exec, -1
        {bar}:
        ''')
        if barrier: e('s_barrier')
    def finish(self, vg=256, ag=256):
        e = self.e
        e(f'{self.name}_end:')
        e('s_endpgm')
        return kernel_text(self.name, hazard_pass(e.L), vg, ag, sgpr=96)

def srd(e, base, ptr=None, ws_off=None, size=None):
    if ptr is not None: e(f's_mov_b32 s{base}, s{ptr}\ns_mov_b32 s{base+1}, s{ptr+1}')
    else: e(f's_add_u32 s{base}, s16, {ws_off}\ns_addc_u32 s{base+1}, s17, 0')
    e(f's_mov_b32 s{base+2}, {size}')

def x_dma_offsets(e, v, row_sreg, ld, extra_sreg=None, blocked=False):
    if not blocked:
        e(f'''
        v_lshrrev_b32 v3, 3, v2
        v_add_u32 v3, s{row_sreg}, v3
        v_mul_u32_u24 v3, {ld}, v3
        ''')
        if extra_sreg is not None: e(f'v_add_u32 v3, s{extra_sreg}, v3')
        e(f'''
        v_and_b32 v1, 7, v2
        v_xor_b32 v1, v1, v31
        v_lshl_add_u32 v{v}, v1, 4, v3
        v_xor_b32 v1, 4, v1
        v_lshl_add_u32 v{v+1}, v1, 4, v3
        v_add_u32 v{v+1}, {8*ld - 1024}, v{v+1}
        v_add_u32 v{v+2}, {16*ld - 2048}, v{v}
        v_add_u32 v{v+3}, {16*ld - 2048}, v{v+1}
        ''')
    else:
        e(f'''
        s_mul_i32 s19, s{row_sreg}, {ld}
        v_lshlrev_b32 v{v}, 4, v2
        v_add_u32 v{v}, s19, v{v}
        ''')
        if extra_sreg is not None: e(f'v_add_u32 v{v}, s{extra_sreg}, v{v}')
        e(f'v_add_u32 v{v+1}, {16*ld - 2048}, v{v}')
BLK_BIAS = 0


def w_dma_offsets(e, v, n, krow_sreg, ld, col_sreg):
    e(f'''
    v_lshrrev_b32 v3, 3, v2
    v_add_u32 v3, s{krow_sreg}, v3
    v_mul_u32_u24 v3, {ld}, v3
    v_add_u32 v3, s{col_sreg}, v3
    v_and_b32 v1, 1, v31
    v_lshlrev_b32 v1, 1, v1
    v_and_b32 v0, 7, v2
    v_xor_b32 v1, v1, v0
    v_lshl_add_u32 v{v}, v1, 4, v3
    v_xor_b32 v1, 4, v1
    v_lshl_add_u32 v{v+1}, v1, 4, v3
    v_add_u32 v{v+1}, {8*ld - 1024}, v{v+1}
    ''')
    if n == 4:
        e(f'v_add_u32 v{v+2}, {16*ld - 2048}, v{v}\nv_add_u32 v{v+3}, {16*ld - 2048}, v{v+1}')

def x_read_addr_f(e, v, base_sreg):
    e(f'v_lshlrev_b32 v{v}, 4, v2\nv_add_u32 v{v}, s{base_sreg}, v{v}\nv_add_u32 v{v+1}, 1024, v{v}')

def frag_store_addr(e, v, base_sreg):
    e(f'''
    v_lshlrev_b32 v{v}, 4, v30
    v_and_b32 v1, 1, v31
    v_lshl_add_u32 v{v}, v1, 9, v{v}
    v_lshrrev_b32 v1, 1, v31
    v_lshl_add_u32 v{v}, v1, 8, v{v}
    v_add_u32 v{v}, s{base_sreg}, v{v}
    ''')

def x_read_addr(e, v, base_sreg):
    e(f'''
    v_lshrrev_b32 v1, 1, v30
    v_lshlrev_b32 v3, 7, v30
    v_add_u32 v3, s{base_sreg}, v3
    v_xor_b32 v{v}, v31, v1
    v_xor_b32 v{v+1}, 4, v{v}
    v_lshl_add_u32 v{v}, v{v}, 4, v3
    v_lshl_add_u32 v{v+1}, v{v+1}, 4, v3
    ''')

def w_read_addr(e, v, nbs, base_sreg, nb_xor_sreg=None):
    e(f'''
    v_bfe_u32 v1, v2, 2, 2
    v_lshl_add_u32 v3, v31, 3, v1
    v_lshlrev_b32 v3, 7, v3
    v_add_u32 v3, s{base_sreg}, v3
    v_and_b32 v0, 1, v2
    v_lshl_add_u32 v3, v0, 3, v3
    v_and_b32 v1, 2, v1
    v_and_b32 v0, 1, v31
    v_lshl_add_u32 v1, v0, 2, v1
    v_bfe_u32 v0, v2, 1, 1
    v_or_b32 v1, v1, v0
    ''')
    if nb_xor_sreg is not None: e(f'v_xor_b32 v1, s{nb_xor_sreg}, v1')
    for i, nb in enumerate(nbs):
        e(f'v_xor_b32 v0, {2*nb}, v1')
        e(f'v_lshl_add_u32 v{v+i}, v0, 4, v3')

def stats_loads(dst_fmt, voff, soff):
    return [[f'buffer_load_dwordx4 {dst_fmt(i*4)}, v{voff}, s[24:27], s{soff} offen offset:{i*256} sc1'] for i in range(8)]

class Pre:
    def __init__(self, m, fn):
        self.m = m; self.setup = []; self.dmas = []
        if fn is None: return
        keep_e, keep_q = m.e, m.q
        cap = Asm(); m.e = cap
        class Q:
            def __init__(s): s.marks = []
            def issue(s, tag): s.marks.append((len(cap.L), tag))
        m.q = Q()
        fn()
        marks = m.q.marks
        m.e, m.q = keep_e, keep_q
        first = next(i for i, l in enumerate(cap.L) if 'm0' in l)
        self.setup = cap.L[:first]
        prev = first
        for pos, tag in marks:
            self.dmas.append((cap.L[prev:pos], tag)); prev = pos
    def emit_setup(self): self.m.e.ext(self.setup)
    def emit_all(self):
        self.emit_setup()
        while self.dmas: self.one()
    def one(self):
        if self.dmas:
            ins, tag = self.dmas.pop(0)
            self.m.e.ext(ins); self.m.q.issue(tag)
    def weave(self, lines, every):
        for i, l in enumerate(lines):
            self.m.e(l)
            if i % every == every - 1: self.one()
        while self.dmas: self.one()
```

```python
from asmlib import *
from common import *
from mega import *

XT = 16384; WG_ = 8192; STAGE = XT + 3 * WG_; NS = 4
LDW = 3 * D * 2
NBODY = 16; NSTEP = 32
ROWB = 352; HREG = 128 * ROWB

def acc(blk, tb): return 32 + (blk * 4 + tb) * 4
def xfrag(p, tb): return 128 + p * 40 + tb * 4
def wfrag(p, b): return 128 + p * 40 + 16 + b * 4
V_RAW = 208; V_PHI = 240; V_A = 248
CSA = 0; NMB = 24; PHH = 40; CSL = 64
V_XOFF = 4; V_WOFF = 8; V_XRD = 12; V_WRD = 14
V_LW = 18; V_LR = 19; V_KV = 20; V_OS = 21; V_KZ = 22

def dma_x(aux='', kadv=128, frag=False):
    g = []
    for j in range(4):
        ins = [f'buffer_load_dwordx4 v{V_XOFF+(j//2 if frag else j)}, s[8:11], s30 offen offset:{j*1024} {aux} lds']
        if j == 0: ins = ['s_add_u32 m0, s34, s40', 's_nop 0'] + ins
        if j == 3: ins += [f's_add_u32 s34, s34, {STAGE}', f's_cmp_eq_u32 s34, {STAGE*NS}', 's_cselect_b32 s34, 0, s34']
        if j == 3: ins += [f's_add_u32 s30, s30, {kadv}']
        g.append(ins)
    return g
def dma_w():
    g = []
    so = [32, 33, 31]; mb = [41, 43, 53]
    for grp in range(3):
        for j in range(2):
            ins = [f'buffer_load_dwordx4 v{V_WOFF+j}, s[12:15], s{so[grp]} offen offset:{j*1024} lds']
            if j == 0: ins = [f's_add_u32 m0, s35, s{mb[grp]}', 's_nop 0'] + ins
            if j == 1: ins += [f's_add_u32 s{so[grp]}, s{so[grp]}, {64*LDW}']
            if j == 1 and grp == 2: ins += [f's_add_u32 s35, s35, {STAGE}', f's_cmp_eq_u32 s35, {STAGE*NS}', 's_cselect_b32 s35, 0, s35']
            g.append(ins)
    return g

def pre_w(m, layer, ntiles=2):
    e = m.e
    srd(e, 12, ptr=P_WQKV, size=D*LDW)
    e(f'''
    s_lshl_b32 s18, s20, 4
    s_lshl_b32 s19, s{S_CI}, 7
    ''')
    w_dma_offsets(e, V_WOFF, 2, 18, LDW, 19)
    e(f'''
    s_mov_b32 s32, 0
    s_mov_b32 s33, 2048
    s_mov_b32 s31, 4096
    s_mov_b32 s35, 0
    s_lshl_b32 s41, s20, 11
    s_add_u32 s41, s41, {XT}
    s_add_u32 s43, s41, {WG_}
    s_add_u32 s53, s41, {2*WG_}
    ''')
    for u in range(ntiles):
        for ins in dma_w(): e.ext(ins); m.q.issue(f'P1T{u}')
    m.p1_w = ntiles

def run(m, layer, next_pre):
    e = m.e; q = m.q; opts = m.opts.get('p1', {})
    L = layer
    xaux = '' if L == 0 else 'sc1'
    if L == 0: srd(e, 8, ptr=P_X, size=S*D*2)
    else: srd(e, 8, ws_off=reg(0, R_X2) - BLK_BIAS, size=S*D*2 + BLK_BIAS)
    e(f'''
    s_lshl_b32 s23, s{S_MT}, 7        ; m0
    s_lshr_b32 s28, s20, 1            ; wm
    s_and_b32 s29, s20, 1             ; wh
    s_lshl_b32 s18, s20, 5
    s_add_u32 s18, s18, s23
    ''')
    x_dma_offsets(e, V_XOFF, 18, 2048, blocked=(L > 0))
    e('s_mov_b32 s30, 0\ns_mov_b32 s34, 0\ns_lshl_b32 s40, s20, 12')
    def rest_setup():
        e('s_lshl_b32 s18, s28, 13')
        (x_read_addr if L == 0 else x_read_addr_f)(e, V_XRD, 18)
        e(f's_mov_b32 s18, {XT}\ns_lshl_b32 s19, s29, 2')
        w_read_addr(e, V_WRD, [0, 1], 18, 19)
        e(f'''
        s_lshl_b32 s18, s{S_CI}, 1
        s_add_u32 s54, s18, s29            ; head
        s_lshl_b32 s18, s{S_MT}, 3
        s_lshl_b32 s19, s28, 2
        s_add_u32 s18, s18, s19
        s_lshl_b32 s18, s18, 11
        s_add_u32 s60, s18, {reg(L, R_STA)}
        v_lshlrev_b32 v23, 11, v31
        v_lshl_add_u32 v23, v30, 4, v23
        s_lshl_b32 s18, s54, 5
        v_add_u32 v1, s18, v30
        v_lshlrev_b32 v24, 4, v1
        s_mov_b32 s62, {WS_CS}
        s_mov_b32 s63, {WS_CS + 1024*16}
        s_mov_b32 s55, {WS_CS + 2048*16}
        v_lshlrev_b32 v25, 8, v31
        v_lshl_add_u32 v25, v30, 1, v25
        s_lshl_b32 s45, s54, 11
        s_lshl_b32 s18, s28, 6
        v_add_u32 v1, s18, v30
        v_mul_u32_u24 v1, {ROWB}, v1
        v_lshrrev_b32 v3, 2, v30
        v_xor_b32 v3, v3, v31
        v_lshl_add_u32 v1, v3, 3, v1
        s_mul_i32 s18, s29, {HREG}
        v_add_u32 v{V_LW}, s18, v1
        v_bfe_u32 v1, v2, 2, 2
        v_lshl_add_u32 v1, v31, 2, v1
        v_mul_u32_u24 v1, {ROWB}, v1
        v_and_b32 v3, 3, v2
        v_xor_b32 v3, v3, v31
        v_lshl_add_u32 v1, v3, 3, v1
        v_add_u32 v{V_LR}, s18, v1
        s_lshl_b32 s18, s{S_MT}, 5
        s_add_u32 s18, s18, s54
        s_mul_i32 s18, s18, {KVP_HEAD}
        s_add_u32 s18, s18, {reg(L, R_KVP)}
        s_lshl_b32 s19, s28, 7
        s_add_u32 s19, s19, s18
        s_add_u32 s19, s19, 8192
        v_lshlrev_b32 v1, 4, v31
        v_add_u32 v{V_KZ}, s19, v1
        s_lshl_b32 s19, s28, 12
        s_add_u32 s18, s18, s19
        v_lshlrev_b32 v1, 4, v2
        v_add_u32 v{V_KV}, s18, v1
        s_lshl_b32 s18, s28, 6
        s_add_u32 s18, s18, s23
        s_lshl_b32 s18, s18, 11
        s_lshl_b32 s19, s54, 10
        s_add_u32 s18, s18, s19
        s_add_u32 s18, s18, {reg(L, R_O)}
        ''')
        frag_store_addr(e, V_OS, 18)
        e(f'''
        s_mov_b32 s36, 0
        s_mov_b32 s42, 0
        s_mov_b32 s50, {STAGE}
        s_mov_b32 s51, {(-(NS-1)*STAGE) & 0xffffffff:#x}
        ''')
        srd(e, 56, ptr=P_PHI, size=65536)
    const = []
    for b in range(6):
        const.append([f'buffer_load_dwordx4 a[{CSA+4*b}:{CSA+4*b+3}], v24, s[24:27], s{[62,63,55][b//2]} offen offset:{(b%2)*256}'])
    for fb in range(2):
        for i in range(8):
            d = (i & 3) + 16 * (i >> 2)
            dst = f'v{V_PHI + fb*4 + i//2}' if i % 2 == 0 else f'a{PHH + fb*4 + i//2}'
            const.append([f'buffer_load_ushort {dst}, v25, s[56:59], s45 offen offset:{d*64 + fb*32}'])
    small = stats_loads(lambda o: f'v[{V_RAW+o}:{V_RAW+o+3}]', 23, 60)
    if L > 0:
        rest_setup()
        for ins in const: e.ext(ins); q.issue('const')
        m.stamp('p1 wait')
        m.wait(L - 1, E_E, f's_mov_b32 s18, s{S_MT}', 16)
    else:
        small = const + small
    m.stamp('p1 go')
    nw = m.p1_w
    flat = []
    for u in range(NBODY):
        xs = [(ins, f'P1T{u}', 2*(u - NS) + 1) for ins in dma_x(xaux, 128 if L == 0 else 2048, L > 0)]
        ws = [(ins, f'P1T{u}', 2*(u - NS) + 1) for ins in dma_w()] if u >= nw else []
        flat += xs + ws
    def take(step, n):
        out = []
        while flat and len(out) < n and flat[0][2] <= step: out.append(flat.pop(0))
        return out
    n0 = sum(1 for f in flat if int(f[1][3:]) < max(2, nw))
    for ins, tag, _ in take(-1, n0): e.ext(ins); q.issue(tag)
    if L == 0: rest_setup()
    def mfma(b, tb, p, c=None):
        a = acc(b, tb)
        cc = f'v[{a}:{a+3}]' if c is None else c
        return f'v_mfma_f32_16x16x32_bf16 v[{a}:{a+3}], v[{wfrag(p,b)}:{wfrag(p,b)+3}], v[{xfrag(p,tb)}:{xfrag(p,tb)+3}], {cc}'
    def reads(p, s):
        x = lambda tb: f'ds_read_b128 v[{xfrag(p,tb)}:{xfrag(p,tb)+3}], v{V_XRD+s} offset:{tb*2048}'
        w = lambda b, h: f'ds_read_b64_tr_b16 v[{wfrag(p,b)+2*h}:{wfrag(p,b)+2*h+1}], v{V_WRD+(b&1)} offset:{(b>>1)*WG_ + (32*s+4*h)*128}'
        g = [x(0), w(0, 0), w(0, 1), x(1), x(2), x(3)]
        for b in range(1, 6): g += [w(b, 0), w(b, 1)]
        return g
    needs = [max(2 if tb == 0 else 2 + tb, 5 + 2*b if b else 0) for b in range(6) for tb in range(4)]
    n = q.wait_for({'P1T0'})
    e(f's_waitcnt vmcnt({n})')
    e('s_barrier')
    m.stamp('p1 main')
    e('v_cmp_gt_u32 vcc, 16, v2')
    e.ext(reads(0, 0))
    extra = []
    for i in range(8):
        extra.append(f'v_accvgpr_read_b32 v26, a{PHH+i}')
        extra.append(f'v_lshl_or_b32 v{V_PHI+i}, v26, 16, v{V_PHI+i}')
    extra += stats_t(V_RAW, V_A, V_RAW + 8, None)
    for tb in range(4): extra.append(f'v_rcp_f32 v{V_A+tb}, v{V_A+tb}')
    for tb in range(4): extra.append(f'v_cndmask_b32 v{V_RAW+8+tb}, 0, v{V_RAW+8+tb}, vcc')
    for tb in range(4):
        for i in range(4): extra.append(f'v_accvgpr_write_b32 a{NMB+4*tb+i}, v{V_RAW+8+tb}')
    TW = 27
    touch = (L == 0 and not opts.get('notouch'))
    if touch:
        e(f'''
        s_cmp_lt_u32 s20, 2
        s_cselect_b32 s4, s{P_GATE}, s{P_UP}
        s_cselect_b32 s5, s{P_GATE+1}, s{P_UP+1}
        s_mov_b32 s6, {D*F*2}
        s_mov_b32 s7, 0x00020000
        s_lshl_b32 s18, s2, 1
        s_and_b32 s19, s20, 1
        s_add_u32 s18, s18, s19
        s_mul_i32 s37, s18, {112*128}
        v_min_u32 v27, 55, v2
        v_lshlrev_b32 v27, 7, v27
        s_lshl_b32 s18, s2, 2
        s_add_u32 s18, s18, s20
        s_lshl_b32 s61, s18, 11
        ''')
    bodies = []
    for u in range(NBODY):
        B = []
        for s in range(2):
            t = 2 * u + s; p = s
            last = (t == NSTEP - 1)
            ms = [mfma(b, tb, p, '0' if t == 0 else None) for b in range(6) for tb in range(4)]
            pre = []; bar = []; rd = []
            if not last:
                if s == 1:
                    pre = [f's_add_u32 s36, s36, {STAGE}', f's_cmp_eq_u32 s36, {STAGE*NS}', 's_cselect_b32 s42, s51, s50',
                           's_cselect_b32 s36, 0, s36', f'v_add_u32 v{V_XRD}, s42, v{V_XRD}'] + \
                          [f'v_add_u32 v{V_WRD+i}, s42, v{V_WRD+i}' for i in range(2)]
                    n = q.wait_for({f'P1T{u+1}'} | ({'small'} if t == TW else set()))
                    bar = [f's_waitcnt vmcnt({n})', 's_barrier']
                else:
                    pre = [f'v_add_u32 v{V_XRD+1}, s42, v{V_XRD+1}']
                rd = reads(p ^ 1, s ^ 1)
            dm = []
            for ins, tag, _ in take(t, opts.get('q', 8) if t < 8 else 6): dm.append(ins); q.issue(tag)
            if small and t >= (21 if L == 0 else 25):
                k = max(0, (9 if L == 0 else 4) - len(dm))
                for ins in small[:k]: dm.append(ins); q.issue('small')
                small = small[k:]
            if t == TW: assert not small
            if touch and t in (27, 28):
                dm.append([f'buffer_load_dword a{CSL}, v27, s[4:7], s37 offen', f's_add_u32 s37, s37, {56*128}']); q.issue('touch')
            if touch and t == 29:
                dm.append([f's_mov_b32 s4, s{P_WO}', f's_mov_b32 s5, s{P_WO+1}', f's_mov_b32 s6, {D*D*2}', 'v_lshlrev_b32 v27, 7, v30',
                           f'buffer_load_dword a{CSL}, v27, s[4:7], s61 offen']); q.issue('touch')
            ex = []
            if t >= TW and extra:
                k = (len(extra) + NSTEP - 1 - t) // (NSTEP - t)
                ex = extra[:k]; extra = extra[k:]
            if opts.get('nodma') and 8 <= t < 21: dm = []
            if opts.get('noread'): rd = []
            if opts.get('nobar'): bar = bar[:1]
            B += build_step(ms, needs, 16, pre, bar, rd, dm, ex, nb=(3 if s == 1 else 1))
        bodies.append(B)
    assert not flat and not extra and not small, (len(flat), len(extra), len(small))
    if opts.get('lst'):
        cuts = opts['lst']
        prev = 0
        for c in cuts + [NBODY]:
            e.ext(loopify(bodies[prev:c], m.lab('p1L'), 38)); prev = c
            if c < NBODY:
                sv = list(q.q); e('s_waitcnt lgkmcnt(0)'); m.stamp(f'p1 b{c}'); q.q = sv
    else:
        e.ext(loopify(bodies, m.lab('p1L'), 38))
    for b in range(6):
        for tb in range(4):
            a = acc(b, tb)
            e(f'v_mfma_f32_16x16x32_bf16 v[{a}:{a+3}], a[{CSA+4*b}:{CSA+4*b+3}], a[{NMB+4*tb}:{NMB+4*tb+3}], v[{a}:{a+3}]')
    e('s_barrier')
    m.stamp('p1 epi')
    e(f's_mov_b32 s44, {f2u(LOG2E):#x}')
    e(f's_mov_b32 s45, {f2u(LOG2E):#x}')
    def bc(r): return (f'v[{r}:{r+1}]', 0) if r % 2 == 0 else (f'v[{r-1}:{r}]', 1)
    for i in range(4): e(f'v_mov_b32 v{24+i}, 0x3f803f80')
    PB = 128; PP = 144; MX = 176; EP = 192; PK = 208
    def feat(mi, part=3):
      e = m.e
      if part & 1:
        for tb in range(4):
            ar, sl = bc(V_A + tb)
            for db in range(2):
                a = acc(2*mi + db, tb)
                for h in range(2):
                    e(f'v_pk_mul_f32 v[{a+2*h}:{a+2*h+1}], v[{a+2*h}:{a+2*h+1}], {ar} op_sel:[0,{sl}] op_sel_hi:[1,{sl}]')
        for tb in range(4):
            for db in range(2):
                a = acc(2*mi + db, tb)
                for h in range(2):
                    e(f'v_cvt_pk_bf16_f32 v{PB+tb*4+db*2+h}, v{a+2*h}, v{a+2*h+1}')
        for tb in range(4):
            for fb in range(2):
                p = PP + tb*8 + fb*4
                e(f'v_mfma_f32_16x16x32_bf16 v[{p}:{p+3}], v[{V_PHI+fb*4}:{V_PHI+fb*4+3}], v[{PB+tb*4}:{PB+tb*4+3}], 0')
        for tb in range(4):
            p = PP + tb*8; mx = MX + 2*tb
            e(f'v_max3_f32 v{mx}, v{p}, v{p+1}, v{p+2}')
            e(f'v_max3_f32 v{mx+1}, -v{p}, -v{p+1}, -v{p+2}')
        for k in (3, 5):
            for tb in range(4):
                p = PP + tb*8; mx = MX + 2*tb
                e(f'v_max3_f32 v{mx}, v{mx}, v{p+k}, v{p+k+1}')
                e(f'v_max3_f32 v{mx+1}, v{mx+1}, -v{p+k}, -v{p+k+1}')
        for tb in range(4):
            p = PP + tb*8; mx = MX + 2*tb
            e(f'v_max_f32 v{mx}, v{mx}, v{p+7}')
            e(f'v_max_f32_e64 v{mx+1}, v{mx+1}, -v{p+7}')
        for tb in range(4): e(f'v_permlane32_swap_b32 v{MX+2*tb}, v{MX+2*tb+1}')
        for tb in range(4): e(f'v_max_f32 v{MX+2*tb}, v{MX+2*tb}, v{MX+2*tb+1}')
        for pr in range(2): e(f'v_permlane16_swap_b32 v{MX+4*pr}, v{MX+4*pr+2}')
        for pr in range(2): e(f'v_max_f32 v{MX+4*pr}, v{MX+4*pr}, v{MX+4*pr+2}')
        for pr in range(2): e(f'v_mul_f32 v{MX+4*pr}, s44, v{MX+4*pr}')
        for pr in range(2): e(f'v_mov_b32 v{MX+4*pr+2}, v{MX+4*pr}')
        for pr in range(2): e(f'v_permlane16_swap_b32 v{MX+4*pr}, v{MX+4*pr+2}')
        for tb in range(4): e(f'v_mov_b32 v{MX+2*tb+1}, v{MX+2*tb}')
        for tb in range(4): e(f'v_permlane32_swap_b32 v{MX+2*tb}, v{MX+2*tb+1}')
      if part & 2:
        for tb in range(4):
            p = PP + tb*8; mx = MX + 2*tb
            for i in range(4):
                e(f'v_pk_fma_f32 v[{EP+2*i}:{EP+2*i+1}], v[{p+2*i}:{p+2*i+1}], s[44:45], v[{mx}:{mx+1}] op_sel:[0,0,0] op_sel_hi:[1,1,0] neg_lo:[0,0,1] neg_hi:[0,0,1]')
            for i in range(4):
                e(f'v_pk_fma_f32 v[{EP+8+2*i}:{EP+8+2*i+1}], v[{p+2*i}:{p+2*i+1}], s[44:45], v[{mx}:{mx+1}] op_sel:[0,0,1] op_sel_hi:[1,1,1] neg_lo:[1,0,1] neg_hi:[1,0,1]')
            for i in range(16): e(f'v_exp_f32 v{EP+i}, v{EP+i}')
            for i in range(8): e(f'v_cvt_pk_bf16_f32 v{PK+tb*8+i}, v{EP+2*i}, v{EP+2*i+1}')
    feat(1)
    SS = 144
    for tb in range(4):
        for sg in range(2):
            r = SS + (tb*2+sg)*4
            e(f'v_mfma_f32_16x16x32_bf16 v[{r}:{r+3}], v[24:27], v[{PK+tb*8+sg*4}:{PK+tb*8+sg*4+3}], 0')
    for tb in range(4):
        for sg in range(2):
            for fb in range(2):
                r = PK + tb*8 + sg*4 + fb*2
                e(f'ds_write_b64 v{V_LW}, v[{r}:{r+1}] offset:{tb*16*ROWB + sg*64 + fb*32}')
    for tb in range(4):
        for sg in range(2):
            r = SS + (tb*2+sg)*4
            e(f'v_rcp_f32 v{r}, v{r}')
    for tb in range(4):
        for sg in range(2):
            r = SS + (tb*2+sg)*4
            e(f'v_mul_f32 v{r+2}, v{r}, v{V_A+tb}')
            e(f'v_cvt_pk_bf16_f32 v{r}, v{r}, 0')
            e(f'v_mov_b32 v{r+1}, 0')
    for tb in range(4):
        for sg in range(2):
            r = SS + (tb*2+sg)*4
            t = 176 + sg*8
            for db in range(2):
                a = acc(4 + db, tb)
                for h in range(2):
                    e(f'v_pk_mul_f32 v[{t+db*4+2*h}:{t+db*4+2*h+1}], v[{a+2*h}:{a+2*h+1}], v[{r+2}:{r+3}] op_sel:[0,0] op_sel_hi:[1,0]')
            o = 192 + (tb % 2) * 8 + sg * 4
            for i in range(4): e(f'v_cvt_pk_bf16_f32 v{o+i}, v{t+2*i}, v{t+2*i+1}')
            for db in range(2):
                e(f'ds_write_b64 v{V_LW}, v[{o+2*db}:{o+2*db+1}] offset:{tb*16*ROWB + 128 + sg*64 + db*32}')
            e(f'ds_write_b64 v{V_LW}, v[{r}:{r+1}] offset:{tb*16*ROWB + 256 + sg*32}')
    e('s_waitcnt lgkmcnt(0)')
    e('s_barrier')
    e(f's_lshl_b32 s18, s28, 6')
    e(f'v_add_u32 v28, s18, v{V_LR}')
    e(f's_lshl_b32 s18, s28, 5')
    e(f'v_add_u32 v29, s18, v{V_LR}')
    FA = 128
    for ks in range(4):
        f = FA + ks * 20
        for h in range(2):
            ro = (ks*32 + h*16) * ROWB
            for fb in range(2): e(f'ds_read_b64_tr_b16 v[{f+fb*4+2*h}:{f+fb*4+2*h+1}], v28 offset:{ro + fb*32}')
            for db in range(2): e(f'ds_read_b64_tr_b16 v[{f+8+db*4+2*h}:{f+8+db*4+2*h+1}], v28 offset:{ro + 128 + db*32}')
            e(f'ds_read_b64_tr_b16 v[{f+16+2*h}:{f+16+2*h+1}], v29 offset:{ro + 256}')
    KV = acc(2, 0)
    for ks in range(4):
        f = FA + ks * 20
        e(f's_waitcnt lgkmcnt({min(15, (3-ks)*10)})')
        for fb in range(2):
            for bk in range(3):
                d = KV + (fb*3+bk)*4
                e(f'v_mfma_f32_16x16x32_bf16 v[{d}:{d+3}], v[{f+fb*4}:{f+fb*4+3}], v[{f+8+bk*4}:{f+8+bk*4+3}], ' + ('0' if ks == 0 else f'v[{d}:{d+3}]'))
    for fb in range(2):
        for db in range(2):
            d = KV + (fb*3+db)*4
            e(f'buffer_store_dwordx4 v[{d}:{d+3}], v{V_KV}, s[24:27], 0 offen offset:{(fb*2+db)*1024} sc1')
    e('s_mov_b32 exec_lo, 0x00010001')
    e('s_mov_b32 exec_hi, 0x00010001')
    for fb in range(2):
        d = KV + (fb*3+2)*4
        e(f'buffer_store_dwordx4 v[{d}:{d+3}], v{V_KZ}, s[24:27], 0 offen offset:{fb*64} sc1')
    e('s_mov_b64 exec, -1')
    feat(0, 1)
    m.publish(L, E_A1, f's_mov_b32 s18, s{S_CI}')
    m.stamp('p1 pubA1')
    pre = Pre(m, next_pre)
    pre.emit_setup()
    keep = m.e; cap = Asm(); m.e = cap; e = cap
    feat(0, 2)
    m.e = keep; e = keep
    pre.weave(cap.L, 8)
    m.stamp('p1 featq')
    m.wait(L, E_A1, f's_mov_b32 s18, s{S_CI}', 16)
    m.stamp('p1 gotA1')
    skip = m.lab('hop'); w1 = m.lab('hopz')
    R0 = 64
    e(f'''
    s_cmp_gt_u32 s20, 1
    s_cbranch_scc1 {skip}
    s_cmp_eq_u32 s20, 1
    s_cbranch_scc1 {w1}
    s_lshr_b32 s18, s{S_MT}, 3
    s_lshl_b32 s19, s{S_CI}, 1
    s_add_u32 s18, s18, s19            ; head
    s_mul_i32 s19, s18, {KVP_HEAD}
    s_add_u32 s19, s19, {reg(L, R_KVP)}
    s_and_b32 s60, s{S_MT}, 7
    s_lshl_b32 s61, s60, 10
    s_add_u32 s19, s19, s61
    v_lshlrev_b32 v1, 4, v2
    ''')
    for i in range(16):
        e(f'buffer_load_dwordx4 v[{R0+4*i}:{R0+4*i+3}], v1, s[24:27], s19 offen sc1')
        if i < 15: e(f's_add_u32 s19, s19, {32*KVP_HEAD}')
    e(f'''
    s_mul_i32 s18, s18, 6144
    s_add_u32 s18, s18, {reg(L, R_KVR)}
    s_lshr_b32 s61, s60, 2
    s_mul_i32 s61, s61, 3072
    s_add_u32 s18, s18, s61
    s_and_b32 s61, s60, 1
    s_lshl_b32 s61, s61, 10
    s_add_u32 s18, s18, s61
    s_and_b32 s61, s60, 2
    s_lshl_b32 s61, s61, 2
    s_add_u32 s18, s18, s61
    ''')
    def tree():
        for i in range(1, 16):
            e(f's_waitcnt vmcnt({15-i})')
            e(f'v_pk_add_f32 v[{R0}:{R0+1}], v[{R0}:{R0+1}], v[{R0+4*i}:{R0+4*i+1}]')
            e(f'v_pk_add_f32 v[{R0+2}:{R0+3}], v[{R0+2}:{R0+3}], v[{R0+4*i+2}:{R0+4*i+3}]')
        e(f'v_cvt_pk_bf16_f32 v{R0+4}, v{R0}, v{R0+1}')
        e(f'v_cvt_pk_bf16_f32 v{R0+5}, v{R0+2}, v{R0+3}')
    tree()
    e(f'buffer_store_dwordx2 v[{R0+4}:{R0+5}], v1, s[24:27], s18 offen sc1')
    e(f'''
    s_branch {skip}
    {w1}:
    s_cmp_gt_u32 s{S_MT}, 7
    s_cbranch_scc1 {skip}
    s_lshr_b32 s18, s{S_MT}, 2
    s_lshl_b32 s19, s{S_CI}, 1
    s_add_u32 s18, s18, s19            ; head
    s_mul_i32 s19, s18, {KVP_HEAD}
    s_add_u32 s19, s19, {reg(L, R_KVP) + 8192}
    s_and_b32 s60, s{S_MT}, 3
    s_lshl_b32 s61, s60, 6
    s_add_u32 s19, s19, s61
    v_lshlrev_b32 v1, 4, v31
    ''')
    for i in range(16):
        e(f'buffer_load_dwordx4 v[{R0+4*i}:{R0+4*i+3}], v1, s[24:27], s19 offen sc1')
        if i < 15: e(f's_add_u32 s19, s19, {32*KVP_HEAD}')
    e(f'''
    s_mul_i32 s18, s18, 6144
    s_add_u32 s18, s18, {reg(L, R_KVR) + 2048}
    s_lshr_b32 s61, s60, 1
    s_mul_i32 s61, s61, 3072
    s_add_u32 s18, s18, s61
    s_and_b32 s61, s60, 1
    s_lshl_b32 s61, s61, 3
    s_add_u32 s18, s18, s61
    v_and_b32 v3, 3, v2
    v_cmp_eq_u32 vcc, 0, v3
    v_cmp_eq_u32 s[60:61], 1, v3
    v_cndmask_b32 v3, 0, v24, s[60:61]
    v_lshlrev_b32 v1, 4, v2
    ''')
    tree()
    e(f'v_cndmask_b32 v{R0+4}, v3, v{R0+4}, vcc')
    e(f'v_cndmask_b32 v{R0+5}, v3, v{R0+5}, vcc')
    e(f'buffer_store_dwordx2 v[{R0+4}:{R0+5}], v1, s[24:27], s18 offen sc1')
    e(f'{skip}:')
    m.publish(L, E_A2, f's_mov_b32 s18, s{S_CI}')
    m.stamp('p1 pubA2')
    m.wait(L, E_A2, f's_mov_b32 s18, s{S_CI}', 16)
    m.stamp('p1 gotA2')
    KA = 32
    e(f'''
    s_mul_i32 s18, s54, 6144
    s_add_u32 s18, s18, {reg(L, R_KVR)}
    s_add_u32 s19, s18, 4096
    v_lshlrev_b32 v1, 4, v2
    s_mov_b32 s44, {f2u(1e-6):#x}
    ''')
    for i in range(6):
        e(f'buffer_load_dwordx4 v[{KA+4*i}:{KA+4*i+3}], v1, s[24:27], s{18 + i//4} offen offset:{(i%4)*1024} sc1')
    for tb in range(4): e(f's_mov_b32 s{60+tb}, {tb*16*2048}')
    e('s_waitcnt vmcnt(0)'); q.clear()
    o_compute(e, range(4), KA, lambda tb: PK + tb*8, lambda tb: 64 + tb*24, lambda tb: 160 + tb*4)
    for tb in range(4):
        e(f'buffer_store_dwordx4 v[{160+tb*4}:{163+tb*4}], v{V_OS}, s[24:27], s{60+tb} offen sc1')
    m.publish(L, E_B, f's_mov_b32 s18, s{S_MT}')
    m.stamp('p1 pubB')

def o_compute(e, tbs, KA, EB, NN, OUT):
    for tb in tbs:
        for sg in range(2):
            for bk in range(3):
                d = NN(tb) + (sg*3+bk)*4; a = KA + (sg*3+bk)*4; b = EB(tb) + sg*4
                e(f'v_mfma_f32_16x16x32_bf16 v[{d}:{d+3}], v[{a}:{a+3}], v[{b}:{b+3}], 0')
    for tb in tbs:
        for sg in range(2):
            z = NN(tb) + (sg*3+2)*4
            e(f'v_rcp_f32 v{z+1}, v{z+1}')
    for tb in tbs:
        zp = NN(tb) + 8; zm = NN(tb) + 20
        e(f'v_fma_f32 v{zp+2}, v{zp}, v{zp+1}, s44')
        e(f'v_fma_f32 v{zp+2}, v{zm}, v{zm+1}, v{zp+2}')
    for tb in tbs:
        zp = NN(tb) + 8
        e(f'v_rcp_f32 v{zp+2}, v{zp+2}')
    for tb in tbs:
        zp = NN(tb) + 8; zm = NN(tb) + 20
        e(f'v_mul_f32 v{zp}, v{zp+1}, v{zp+2}')
        e(f'v_mul_f32 v{zm}, v{zm+1}, v{zp+2}')
    for tb in tbs:
        n = NN(tb); zp = n + 8; zm = n + 20
        for i in range(4):
            e(f'v_pk_mul_f32 v[{n+2*i}:{n+2*i+1}], v[{n+2*i}:{n+2*i+1}], v[{zp}:{zp+1}] op_sel:[0,0] op_sel_hi:[1,0]')
        for i in range(4):
            e(f'v_pk_fma_f32 v[{n+2*i}:{n+2*i+1}], v[{n+12+2*i}:{n+12+2*i+1}], v[{zm}:{zm+1}], v[{n+2*i}:{n+2*i+1}] op_sel:[0,0,0] op_sel_hi:[1,0,1]')
    for tb in tbs:
        n = NN(tb); o = OUT(tb)
        for i in range(4): e(f'v_cvt_pk_bf16_f32 v{o+i}, v{n+2*i}, v{n+2*i+1}')
    for tb in tbs:
        o = OUT(tb)
        e(f'v_permlane16_swap_b32 v{o}, v{o+2}')
        e(f'v_permlane16_swap_b32 v{o+1}, v{o+3}')
```

```python
from asmlib import *
from common import *
from mega import *

XSLOT = 32768; NXS = 3
WREG = 7680; WHALF = 2 * WREG; NWS = 4; WBASE = XSLOT * NXS
LDW = F * 2; NB = 16; NSTEP = 32
WL = [0, 896, 1920, 2816]
def acc(b, tb): return 32 + (b * 4 + tb) * 4
def xfrag(p, tb): return p * 72 + tb * 4
def wfrag(p, b): return p * 72 + 16 + b * 4
CSA = 144; NMB = 200; RAW = 216; ONES = 248; CSP = 216
V_XOFF = 4; V_WOFF = 8; V_XRD = 12; V_WRD = 14; V_ST = 15; V_K = 16

def dma_x(half):
    g = []
    for j in range(4):
        ins = [f'buffer_load_dwordx4 v{V_XOFF+j//2}, s[8:11], s{30+half} offen offset:{j*1024} sc1 lds']
        if j == 0: ins = [f's_add_u32 m0, s34, s{40 if half == 0 else 52}', 's_nop 0'] + ins
        if half == 1 and j == 3: ins += ['s_add_u32 s30, s30, 2048', 's_and_b32 s30, s30, 0x7fff']
        if half == 1 and j == 3: ins += [f's_add_u32 s34, s34, {XSLOT}', f's_cmp_eq_u32 s34, {XSLOT*NXS}', 's_cselect_b32 s34, 0, s34']
        if half == 1 and j == 3: ins += ['s_add_u32 s31, s30, 65536']
        g.append(ins)
    return g
def dma_w(aux=''):
    g = []
    for j in range(4):
        ins = [f'buffer_load_dwordx4 v{V_WOFF+j}, s[12:15], s32 offen offset:{WL[j]} {aux} lds']
        if j == 0: ins = ['s_add_u32 m0, s35, s41', 's_nop 0'] + ins
        if j == 3: ins += [f's_add_u32 s35, s35, {WHALF}', f's_cmp_eq_u32 s35, {WHALF*NWS}', 's_cselect_b32 s35, 0, s35']
        if j == 3: ins += [f's_add_u32 s32, s32, {32*LDW}', f's_cmp_eq_u32 s32, {D*LDW}', 's_cselect_b32 s32, 0, s32']
        g.append(ins)
    return g

def pre_w(m, layer, nh=4):
    e = m.e; opts = m.opts.get('p3', {})
    e(f'''
    s_cmp_lt_u32 s20, 2
    s_cselect_b32 s12, s{P_GATE}, s{P_UP}
    s_cselect_b32 s13, s{P_GATE+1}, s{P_UP+1}
    s_mov_b32 s14, {D*F*2}
    v_mul_u32_u24 v1, 4682, v2
    v_lshrrev_b32 v1, 16, v1
    v_mul_u32_u24 v3, 14, v1
    v_sub_u32 v3, v2, v3
    v_lshlrev_b32 v3, 4, v3
    s_and_b32 s18, s20, 1
    s_lshl_b32 s18, s18, 4
    v_add_u32 v1, s18, v1
    v_mul_u32_u24 v1, {LDW}, v1
    v_add_u32 v1, v1, v3
    s_mul_i32 s19, s{S_NT2}, 224
    v_add_u32 v{V_WOFF}, s19, v1
    ''')
    for j in range(1, 4): e(f'v_add_u32 v{V_WOFF+j}, {j*4*LDW - WL[j]}, v{V_WOFF}')
    rot = 1 if (layer == 0 or opts.get('rot_all')) else 0
    e(f'''
    s_mul_i32 s32, s{S_MT2}, {128*LDW*rot}       ; k rotation
    s_mov_b32 s35, 0
    s_lshr_b32 s18, s20, 1
    s_mul_i32 s41, s18, {WREG}
    s_and_b32 s18, s20, 1
    s_mul_i32 s18, s18, 3840
    s_add_u32 s41, s41, s18
    s_add_u32 s41, s41, {WBASE}
    ''')
    for h in range(nh):
        for ins in dma_w(opts.get('auxw', '')): e.ext(ins); m.q.issue(f'W{h}')
    m.p3_w = nh

def run(m, layer, next_pre):
    e = m.e; q = m.q; opts = m.opts.get('p3', {}); L = layer
    rot = 1 if (layer == 0 or opts.get('rot_all')) else 0
    srd(e, 8, ws_off=reg(L, R_X1) - BLK_BIAS, size=S*D*2 + BLK_BIAS)
    e(f'''
    s_lshl_b32 s23, s{S_MT2}, 8
    s_lshl_b32 s18, s20, 6
    s_add_u32 s23, s23, s18
    s_mul_i32 s22, s{S_NT2}, 112
    ''')
    x_dma_offsets(e, V_XOFF, 23, 2048, blocked=True)
    e(f'''
    s_mul_i32 s30, s{S_MT2}, {4096*rot}
    s_add_u32 s31, s30, 65536
    s_mov_b32 s34, 0
    s_lshl_b32 s40, s20, 13
    s_add_u32 s52, s40, 4096
    s_mul_i32 s18, s23, {LDW}
    s_mul_i32 s19, s{S_NT2}, 3584
    s_add_u32 s18, s18, s19
    ''')
    frag_store_addr(e, V_ST, 18)
    e(f'''
    s_lshl_b32 s18, s23, 7
    s_add_u32 s60, s18, {reg(L, R_STF)}
    v_lshlrev_b32 v29, 11, v31
    v_lshl_add_u32 v29, v30, 4, v29
    v_add_u32 v1, s22, v30
    v_lshlrev_b32 v28, 4, v1
    v_and_b32 v1, 1, v31
    v_mul_u32_u24 v1, {CS_PLANE}, v1
    v_add_u32 v28, v28, v1
    s_mov_b32 s62, {WS_CS + 3072*16}
    s_mov_b32 s63, {WS_CS + (3072+F)*16}
    ''')
    x_read_addr_f(e, V_XRD, 40)
    e(f'''
    v_mul_u32_u24 v1, 1920, v31
    v_bfe_u32 v3, v2, 2, 2
    v_mul_u32_u24 v3, 224, v3
    v_add_u32 v1, v1, v3
    v_and_b32 v3, 3, v2
    v_lshl_add_u32 v1, v3, 3, v1
    v_add_u32 v{V_WRD}, {WBASE}, v1
    s_mov_b32 s36, 0
    s_mov_b32 s37, 0
    s_mov_b32 s42, 0
    s_mov_b32 s48, {WHALF}
    s_mov_b32 s49, {(-(NWS-1)*WHALF) & 0xffffffff:#x}
    s_mov_b32 s50, {XSLOT}
    s_mov_b32 s51, {(-(NXS-1)*XSLOT) & 0xffffffff:#x}
    ''')
    C1 = -2.0 * 0.7978845608028654 * 1.4426950408889634
    C2 = C1 * 0.044715
    e(f's_mov_b32 s44, {f2u(C1):#x}\ns_mov_b32 s45, {f2u(C2):#x}')
    docs = (L == 0)
    touch = (L == 0 and not opts.get('notouch'))
    if docs:
        e('v_mov_b32 v1, 0x3f803f80')
        for i in range(4): e(f'v_accvgpr_write_b32 a{ONES+i}, v1')
        e(f'''
        s_lshr_b32 s18, s{S_MT2}, 2
        s_mul_i32 s18, s18, {CS_PLANE}
        s_and_b32 s19, s{S_MT2}, 3
        s_lshl_b32 s19, s19, 2
        s_add_u32 s18, s18, s19
        s_add_u32 s54, s18, s62
        s_add_u32 s55, s18, s63
        v_add_u32 v1, s22, v30
        v_lshlrev_b32 v27, 4, v1
        ''')
    if touch:
        srd(e, 4, ptr=P_DOWN, size=F*D*2)
        e('s_mov_b32 s7, 0x00020000')
        e(f's_lshl_b32 s18, s2, 2\ns_add_u32 s18, s18, s20\ns_mul_i32 s33, s18, {56*128}\nv_lshlrev_b32 v26, 7, v31')
    m.stamp('p3 wait')
    m.wait(L, E_C, f's_lshl_b32 s18, s{S_MT2}, 1', 16, nshard=2)
    m.stamp('p3 go')
    if L == 0 and m.opts.get('local'): m.xcc_check_issue(25)
    pend = []
    for u in range(NB):
        pend.append(('X%d' % u, 'xa', 2*u - 1, 2*(u-3) + 1))
        pend.append(('X%d' % u, 'xb', 2*u - 1, 2*(u-3) + 1))
        for h in (2*u, 2*u + 1):
            if h >= m.p3_w: pend.append(('W%d' % h, 'w', h - 1, h - 4))
    mk = {'xa': lambda: dma_x(0), 'xb': lambda: dma_x(1), 'w': lambda: dma_w(opts.get('auxw', ''))}
    def take(step, maxg):
        out = []
        while len(out) < maxg:
            cand = None; seen = set()
            for g in pend:
                cls = g[1][0]
                if cls in seen: continue
                seen.add(cls)
                if g[3] <= step and (cand is None or g[2] < cand[2]): cand = g
            if cand is None: break
            pend.remove(cand); out.append(cand)
        return out
    ninit = sum(1 for g in pend if g[2] <= 0)
    for g in take(-1, ninit + 2):
        for ins in mk[g[1]](): e.ext(ins); q.issue(g[0])
    small = stats_loads(lambda o: f'a[{RAW+o}:{RAW+o+3}]', 29, 60)
    csl = [[f'buffer_load_dwordx4 a[{CSA+4*b}:{CSA+4*b+3}], v28, s[24:27], s{62 + b//7} offen offset:{(b%7)*256} sc1'] for b in range(14)]
    def fin():
        Lx = [f'v_accvgpr_read_b32 v{4+i}, a{RAW+i}' for i in range(4)]
        for k in range(1, 8):
            Lx += [f'v_accvgpr_read_b32 v{8+i}, a{RAW+4*k+i}' for i in range(4)]
            Lx += [f'v_add_f32 v{4+i}, v{4+i}, v{8+i}' for i in range(4)]
        Lx += ['v_add_f32 v4, v4, v6', 'v_add_f32 v5, v5, v7']
        st = stats_t(4, 24, 8, None)[30:]
        st += [f'v_rcp_f32 v{16+tb}, v{24+tb}' for tb in range(4)]
        st += [f'v_cndmask_b32 v{8+tb}, 0, v{8+tb}, vcc' for tb in range(4)]
        st += [f'v_mul_f32 v{20+tb}, v{16+tb}, v{16+tb}' for tb in range(4)]
        st += [f'v_mul_f32 v{24+tb}, v{24+tb}, v{24+tb}' for tb in range(4)]
        st += [f'v_mul_f32 v{20+tb}, v{20+tb}, v{16+tb}' for tb in range(4)]
        st += [f'v_mul_f32 v{16+tb}, s44, v{16+tb}' for tb in range(4)]
        st += [f'v_mul_f32 v{20+tb}, s45, v{20+tb}' for tb in range(4)]
        st += [f'v_accvgpr_write_b32 a{NMB+4*tb+i}, v{8+tb}' for tb in range(4) for i in range(4)]
        return Lx, st
    def mfma(b, tb, p, c=None):
        a = acc(b, tb)
        cc = f'v[{a}:{a+3}]' if c is None else c
        return f'v_mfma_f32_16x16x32_bf16 v[{a}:{a+3}], a[{wfrag(p,b)}:{wfrag(p,b)+3}], a[{xfrag(p,tb)}:{xfrag(p,tb)+3}], {cc}'
    def reads(p, s):
        x = lambda tb: f'ds_read_b128 a[{xfrag(p,tb)}:{xfrag(p,tb)+3}], v{V_XRD+s} offset:{tb*2048}'
        def w(b, h):
            off = (b // 7) * WREG + 4 * h * 224 + (b % 7) * 32
            return f'ds_read_b64_tr_b16 a[{wfrag(p,b)+2*h}:{wfrag(p,b)+2*h+1}], v{V_WRD} offset:{off}'
        g = [x(0), w(0, 0), w(0, 1), x(1), x(2), x(3)]
        for b in range(1, 14): g += [w(b, 0), w(b, 1)]
        return g
    needs = [max(2 if tb == 0 else 2 + tb, 5 + 2*b if b else 0) for b in range(14) for tb in range(4)]
    n = q.wait_for({'X0', 'W0', 'W1'})
    e(f's_waitcnt vmcnt({n})')
    e('s_barrier')
    m.stamp('p3 main')
    if L == 0 and m.opts.get('local'): m.xcc_check_finish(25)
    e('v_cmp_gt_u32 vcc, 32, v2')
    e.ext(reads(0, 0))
    bodies = []
    for u in range(NB):
        B = []
        for s in range(2):
            t = 2 * u + s; p = s
            ms = [mfma(b, tb, p, '0' if t == 0 else None) for b in range(14) for tb in range(4)]
            last = (t == NSTEP - 1)
            rd = []; pre = []; bar = []
            if not last:
                pre = [f's_add_u32 s37, s37, {WHALF}', f's_cmp_eq_u32 s37, {WHALF*NWS}', 's_cselect_b32 s43, s49, s48',
                       's_cselect_b32 s37, 0, s37', f'v_add_u32 v{V_WRD}, s43, v{V_WRD}']
                if s == 1:
                    pre += [f's_add_u32 s36, s36, {XSLOT}', f's_cmp_eq_u32 s36, {XSLOT*NXS}', 's_cselect_b32 s42, s51, s50',
                            's_cselect_b32 s36, 0, s36', f'v_add_u32 v{V_XRD}, s42, v{V_XRD}']
                else:
                    pre += [f'v_add_u32 v{V_XRD+1}, s42, v{V_XRD+1}']
                rd = reads(p ^ 1, s ^ 1)
            if t > 0 and not last:
                tags = {f'W{t+1}'} | ({f'X{u+1}'} if s == 1 else set())
                if t == NSTEP - 2: tags |= {'small', 'csl'}
                if t == 29: tags |= {'flg'}
                n = q.wait_for(tags)
                bar = [f's_waitcnt vmcnt({n})', 's_barrier']
            dm = []
            for g in take(t, 3 if t < 3 else 2):
                for ins in mk[g[1]](): dm.append(ins); q.issue(g[0])
            if touch and s == 0 and 2 <= u < 16:
                dm.append([f'buffer_load_dword a{ONES+4}, v26, s[4:7], s33 offen', 's_add_u32 s33, s33, 512']); q.issue('touch')
            if t == 28:
                for ins in small: dm.append(ins); q.issue('small')
            chk = docs and not m.opts.get('nosync')
            if chk and t == 27:
                dm.append([f's_lshl_b32 s19, s{S_NT2}, 8', f's_add_u32 s19, s19, {flag_off(0, E_CS, 0)}', 'v_mov_b32 v24, 0',
                           'buffer_load_dword v25, v24, s[24:27], s19 offen sc1']); q.issue('flg')
            if t == 29:
                if chk:
                    ok = m.lab('cok'); pl = m.lab('cpl')
                    bar += [f's_mov_b32 s39, {SPIN_LIMIT}', f'{pl}:', 'v_readfirstlane_b32 s18, v25', 's_nop 0', 's_cmp_ge_u32 s18, 8', f's_cbranch_scc1 {ok}',
                            's_sleep 1', 'buffer_load_dword v25, v24, s[24:27], s19 offen sc1', 's_waitcnt vmcnt(0)',
                            's_sub_u32 s39, s39, 1', 's_cmp_lg_u32 s39, 0', f's_cbranch_scc1 {pl}', f'{ok}:']
                for ins in csl: dm.append(ins); q.issue('csl')
            ex = []
            if t == NSTEP - 2: ex = fin()[0]
            if t == NSTEP - 1: ex = fin()[1]
            if docs and t == 4:
                ex = []
                for i in range(4):
                    ex += [f'v_accvgpr_read_b32 v{16+i}, a{CSP+4*i}']
                for i in range(4):
                    ex += [f'v_cvt_pk_bf16_f32 v{20+i}, v{16+i}, v{16+i}']
                for i in range(4):
                    ex += [f'v_and_b32 v{20+i}, 0xffff0000, v{20+i}']
                for i in range(4):
                    ex += [f'v_sub_f32 v{20+i}, v{16+i}, v{20+i}']
                for i in range(4):
                    ex += [f'v_cvt_pk_bf16_f32 v{20+i}, v{16+i}, v{20+i}']
            step = build_step(ms, needs, 32, pre, bar, rd, dm, ex, nb=4)
            if docs and t < 4:
                ls = [m.lab('cs') for _ in range(4)]; le = m.lab('cse')
                for w in range(4):
                    if w < 3: step += [f's_cmp_lg_u32 s20, {w}', f's_cbranch_scc1 {ls[w+1]}']
                    for i in range(4):
                        b = w + 4*i
                        if b < 14:
                            d = CSP + 4*i
                            step.append(f'v_mfma_f32_16x16x32_bf16 a[{d}:{d+3}], a[{ONES}:{ONES+3}], a[{wfrag(p,b)}:{wfrag(p,b)+3}], ' + ('0' if t == 0 else f'a[{d}:{d+3}]'))
                    if w < 3: step += [f's_branch {le}', f'{ls[w+1]}:']
                step += [f'{le}:']
                if t == 3: step += ['s_nop 7']
            if docs and t == 4:
                ls = [m.lab('cw') for _ in range(4)]; le = m.lab('cwe')
                step += ['s_mov_b64 exec, 0xffff']
                for w in range(4):
                    if w < 3: step += [f's_cmp_lg_u32 s20, {w}', f's_cbranch_scc1 {ls[w+1]}']
                    for i in range(4):
                        b = min(w + 4*i, 13) if w + 4*i >= 14 else w + 4*i
                        src = 20 + i if w + 4*i < 14 else None
                        if src is None:
                            b = w + 4*(i-1); src = 20 + i - 1
                        step.append(f'buffer_store_dword v{src}, v27, s[24:27], s{54 + b//7} offen offset:{(b%7)*256} sc1')
                    if w < 3: step += [f's_branch {le}', f'{ls[w+1]}:']
                step += [f'{le}:', 's_mov_b64 exec, -1']
                for i in range(4): q.issue('csw')
            if docs and t == 9:
                assert 'csw' not in q.q
                sk = m.lab('csp')
                if not m.opts.get('nosync'):
                    step += [f's_cmp_lg_u32 s20, 0', f's_cbranch_scc1 {sk}', f's_lshl_b32 s18, s{S_NT2}, 8', f's_add_u32 s18, s18, {flag_off(0, E_CS, 0)}',
                             'v_mov_b32 v1, 0', 'v_mov_b32 v3, 1', 's_mov_b64 exec, 1', 'buffer_atomic_add v3, v1, s[24:27], s18 offen sc1', 's_mov_b64 exec, -1', f'{sk}:']
            B += step
        bodies.append(B)
    assert not pend
    e.ext(loopify(bodies, m.lab('p3L'), 38))
    e('s_barrier')
    pre = Pre(m, next_pre)
    pre.emit_setup()
    corr = []
    for b in range(14):
        for tb in range(4):
            a = acc(b, tb)
            corr.append(f'v_mfma_f32_16x16x32_bf16 v[{a}:{a+3}], a[{CSA+4*b}:{CSA+4*b+3}], a[{NMB+4*tb}:{NMB+4*tb+3}], v[{a}:{a+3}]')
    if opts.get('late_pre'): e.ext(corr)
    else: pre.weave(corr, opts.get('weave', 3))
    m.stamp('p3 epi')
    srd(e, 56, ws_off=reg(L, R_H), size=S*F*2)
    for tb in range(4): e(f's_mov_b32 s{60+tb}, {tb*16*LDW}')
    e(f'v_and_b32 v1, 1, v31')
    e(f'v_mul_u32_u24 v1, {16*LDW - 512}, v1')
    e(f'v_add_u32 v14, v1, v{V_ST}')
    TP = [4, 6, 12, 28]
    e('s_cmp_eq_u32 s94, 1')
    def ep_pair(t1, t2, voff, soff, imm):
        items = []
        for (b, tb) in (t1, t2):
            for h in range(2):
                items.append((acc(b, tb) + 2*h, acc(b + 7, tb) + 2*h, V_K + tb))
        P = lambda i: f'v[{items[i][0]}:{items[i][0]+1}]'
        U = lambda i: f'v[{items[i][1]}:{items[i][1]+1}]'
        Tm = lambda i: f'v[{TP[i]}:{TP[i]+1}]'
        def bc(r): return (f'v[{r}:{r+1}]', 0) if r % 2 == 0 else (f'v[{r-1}:{r}]', 1)
        for i in range(4): e(f'v_pk_mul_f32 {Tm(i)}, {P(i)}, {P(i)}')
        for i in range(4):
            k = items[i][2]; (k2, s2), (k1, s1) = bc(k + 4), bc(k)
            e(f'v_pk_fma_f32 {Tm(i)}, {Tm(i)}, {k2}, {k1} op_sel:[0,{s2},{s1}] op_sel_hi:[1,{s2},{s1}]')
        for i in range(4): e(f'v_pk_mul_f32 {Tm(i)}, {Tm(i)}, {P(i)}')
        for i in range(8): e(f'v_exp_f32 v{TP[i//2]+i%2}, v{TP[i//2]+i%2}')
        for i in range(4): e(f'v_pk_mul_f32 {U(i)}, {U(i)}, {P(i)}')
        for i in range(4):
            k3, s3 = bc(items[i][2] + 8)
            e(f'v_pk_fma_f32 {Tm(i)}, {Tm(i)}, {k3}, {k3} op_sel:[0,{s3},{s3}] op_sel_hi:[1,{s3},{s3}]')
        for i in range(8): e(f'v_rcp_f32 v{TP[i//2]+i%2}, v{TP[i//2]+i%2}')
        for i in range(4): e(f'v_pk_mul_f32 {U(i)}, {U(i)}, {Tm(i)}')
        r = acc(*t1)
        for i in range(4): e(f'v_cvt_pk_bf16_f32 v{r+i}, v{items[i][1]}, v{items[i][1]+1}')
        e(f'v_permlane16_swap_b32 v{r}, v{r+2}')
        e(f'v_permlane16_swap_b32 v{r+1}, v{r+3}')
        if not m.opts.get('local'):
            e(f'buffer_store_dwordx4 v[{r}:{r+3}], v{voff}, s[56:59], s{soff} offen offset:{imm} sc1')
            return
        la = m.lab('hs'); lb = m.lab('ht')
        e(f's_cbranch_scc1 {la}')
        e(f'buffer_store_dwordx4 v[{r}:{r+3}], v{voff}, s[56:59], s{soff} offen offset:{imm} sc1')
        e(f's_branch {lb}\n{la}:')
        e(f'buffer_store_dwordx4 v[{r}:{r+3}], v{voff}, s[56:59], s{soff} offen offset:{imm}')
        e(f'{lb}:')
    for tb in range(4):
        for bp in range(3):
            ep_pair((2*bp, tb), (2*bp+1, tb), V_ST, 60 + tb, bp * 1024)
        if tb % 2 == 1:
            ep_pair((6, tb - 1), (6, tb), 14, 60 + tb - 1, 3072)
    m.stamp('p3 st')
    m.publish(L, E_D, f's_lshl_b32 s18, s{S_MT2}, 1\ns_add_u32 s18, s18, s{S_PAR}')
    m.stamp('p3 pub')
    pre.weave([], 1)
```

```python
from asmlib import *
from common import *
from mega import *

XT = 16384; WT = 8192; STAGE = 2 * XT + 2 * WT; NS = 3
def acc(nb, tb): return 32 + (nb * 4 + tb) * 4
def xfrag(p, tb): return 96 + p * 32 + tb * 4
def wfrag(p, nb): return 96 + p * 32 + 16 + nb * 4
V_RES = 160; V_TMP = 176
V_XOFF = 4; V_WOFF = 8; V_XRD = 12; V_WRD = 14
V_ST = 18; V_SST = 19; V_EX = 20; V_EXR = 21; V_RO = 22

def dma_x(half):
    g = []
    for j in range(4):
        ins = [f'buffer_load_dwordx4 v{V_XOFF+j//2}, s[8:11], s{30+half} offen offset:{j*1024} sc1 lds']
        if j == 0: ins = [f's_add_u32 m0, s34, s{40 if half == 0 else 52}', 's_nop 0'] + ins
        if j == 3 and half == 1: ins += [f's_add_u32 s34, s34, {STAGE}', f's_cmp_eq_u32 s34, {STAGE*NS}', 's_cselect_b32 s34, 0, s34']
        if j == 3: ins += [f's_add_u32 s{30+half}, s{30+half}, 4096']
        g.append(ins)
    return g
def dma_w():
    g = []
    for j in range(4):
        ins = [f'buffer_load_dwordx4 v{V_WOFF+j}, s[12:15], s32 offen offset:{j*1024} lds']
        if j == 0: ins = ['s_add_u32 m0, s35, s41', 's_nop 0'] + ins
        if j == 3: ins += [f's_add_u32 s35, s35, {STAGE}', f's_cmp_eq_u32 s35, {STAGE*NS}', 's_cselect_b32 s35, 0, s35']
        if j == 3: ins += [f's_add_u32 s32, s32, {128*2048}']
        g.append(ins)
    return g

def tail_addr(e, res_blk, out_blk, nt64):
    e(f'''
    s_mov_b32 s60, {16*2048}
    s_lshl_b32 s61, s18, 11
    ''')
    for blk, v, kind in ((res_blk, V_RO, 'r'), (out_blk, V_ST, 'o')):
        if blk:
            e(f's_lshl_b32 s19, {nt64}, 11\ns_add_u32 s19, s19, s61\nv_lshlrev_b32 v{v}, 4, v30')
            if kind == 'r': e(f'v_and_b32 v1, 1, v31\nv_lshl_add_u32 v{v}, v1, 3, v{v}\nv_lshrrev_b32 v1, 1, v31\nv_lshl_add_u32 v{v}, v1, 8, v{v}')
            else: e(f'v_and_b32 v1, 1, v31\nv_lshl_add_u32 v{v}, v1, 9, v{v}\nv_lshrrev_b32 v1, 1, v31\nv_lshl_add_u32 v{v}, v1, 8, v{v}')
        else:
            e(f's_lshl_b32 s19, {nt64}, 7\ns_add_u32 s19, s19, s61\nv_lshlrev_b32 v{v}, 11, v30')
            if kind == 'r': e(f'v_lshl_add_u32 v{v}, v31, 3, v{v}')
            else: e(f'v_and_b32 v1, 1, v31\nv_lshl_add_u32 v{v}, v1, 5, v{v}\nv_lshrrev_b32 v1, 1, v31\nv_lshl_add_u32 v{v}, v1, 4, v{v}')
        e(f'v_add_u32 v{v}, s19, v{v}')
    e(f'''
    s_lshl_b32 s18, s18, 7
    s_lshr_b32 s19, {nt64}, 1
    s_lshl_b32 s19, s19, 8
    s_add_u32 s18, s18, s19
    s_and_b32 s19, {nt64}, 1
    s_lshl_b32 s19, s19, 3
    s_add_u32 s18, s18, s19
    v_lshlrev_b32 v{V_SST}, 4, v30
    v_add_u32 v{V_SST}, s18, v{V_SST}
    ''')

def res_loads(res):
    L = []
    for i in range(2):
        for nb in range(4):
            r = V_RES + (i * 4 + nb) * 2
            L.append([f'buffer_load_dwordx2 v[{r}:{r+1}], v{V_RO}, s[56:59], {"0" if i == 0 else "s60"} offen offset:{nb*(512 if res[0] == "ws" else 32)}' + (' sc1' if res[0] == 'ws' else '')])
    return L

def unpack_res(e):
    for i in range(2):
        for nb in range(4):
            r = V_RES + (i*4+nb)*2; tm = V_TMP + (i*4+nb)*4
            e(f'v_lshlrev_b32 v{tm}, 16, v{r}')
            e(f'v_and_b32 v{tm+1}, 0xffff0000, v{r}')
            e(f'v_lshlrev_b32 v{tm+2}, 16, v{r+1}')
            e(f'v_and_b32 v{tm+3}, 0xffff0000, v{r+1}')

def finalize(e, out, st_off):
    if out[0] == 'ptr': srd(e, 56, ptr=out[1], size=S*D*2)
    else: srd(e, 56, ws_off=out[1], size=S*D*2)
    for i in range(2):
        for nb in range(4):
            r = 96 + (i*4+nb)*4; tm = V_TMP + (i*4+nb)*4
            e(f'v_pk_add_f32 v[{tm}:{tm+1}], v[{tm}:{tm+1}], v[{r}:{r+1}]')
            e(f'v_pk_add_f32 v[{tm+2}:{tm+3}], v[{tm+2}:{tm+3}], v[{r+2}:{r+3}]')
    for i in range(2):
        for nb in range(4):
            tm = V_TMP + (i*4+nb)*4; o = 32 + i*8 + nb*2
            e(f'v_cvt_pk_bf16_f32 v{o}, v{tm}, v{tm+1}')
            e(f'v_cvt_pk_bf16_f32 v{o+1}, v{tm+2}, v{tm+3}')
    if st_off is not None:
        for d in range(16): e(f'v_mov_b32 v{64+d}, v{32+d}')
    blk = out[0] == 'ws'
    for i in range(2):
        for pr in range(2):
            o = 32 + i*8 + pr*4
            e(f'v_permlane16_swap_b32 v{o}, v{o+2}')
            e(f'v_permlane16_swap_b32 v{o+1}, v{o+3}')
            e(f'buffer_store_dwordx4 v[{o}:{o+3}], v{V_ST}, s[56:59], {"0" if i == 0 else "s60"} offen offset:{pr*(1024 if blk else 64)}' + (' sc1' if blk else ''))
    if st_off is not None:
        e('s_mov_b32 s18, 0x3f803f80')
        for i in range(2):
            e(f'v_mov_b32 v{48+2*i}, 0'); e(f'v_mov_b32 v{49+2*i}, 0')
        for d in range(8):
            for i in range(2):
                o = 64 + i*8 + d
                e(f'v_dot2_f32_bf16 v{48+2*i}, v{o}, s18, v{48+2*i}')
                e(f'v_dot2_f32_bf16 v{49+2*i}, v{o}, v{o}, v{49+2*i}')
        e('s_nop 2')
        for sw in ('v_permlane32_swap_b32', 'v_permlane16_swap_b32'):
            for j in range(4): e(f'v_mov_b32 v{52+j}, v{48+j}')
            for j in range(4): e(f'{sw} v{48+j}, v{52+j}')
            for j in range(2): e(f'v_pk_add_f32 v[{48+2*j}:{49+2*j}], v[{48+2*j}:{49+2*j}], v[{52+2*j}:{53+2*j}]')
        e(f's_mov_b32 s18, {st_off}')
        e('s_mov_b64 exec, 0xffff')
        e(f'buffer_store_dwordx2 v[48:49], v{V_SST}, s[24:27], s18 offen sc1')
        e(f'buffer_store_dwordx2 v[50:51], v{V_SST}, s[24:27], s18 offen offset:2048 sc1')
        e('s_mov_b64 exec, -1')

def pre_w(m, tag, K, wptr, ntiles=3):
    e = m.e
    srd(e, 12, ptr=wptr, size=K*D*2)
    e(f's_lshl_b32 s18, s20, 5\ns_lshl_b32 s19, s{S_CI}, 7')
    w_dma_offsets(e, V_WOFF, 4, 18, 2048, 19)
    e(f'''
    s_mov_b32 s32, 0
    s_mov_b32 s35, 0
    s_lshl_b32 s41, s20, 12
    s_add_u32 s41, s41, {2*XT}
    ''')
    for u in range(ntiles):
        for ins in dma_w(): e.ext(ins); m.q.issue(f'{tag}T{u}')
    m.pd_w = ntiles

def run(m, tag, K, a_off, res, out, st_off, wait_fn, pub_fn, next_pre, opts):
    e = m.e; q = m.q
    LDA = K * 2; NBODY = K // 128; NSTEP = 2 * NBODY
    srd(e, 8, ws_off=a_off - BLK_BIAS, size=S*LDA + BLK_BIAS)
    if res[0] == 'ptr': srd(e, 56, ptr=res[1], size=S*D*2)
    else: srd(e, 56, ws_off=res[1], size=S*D*2)
    e(f'''
    s_lshl_b32 s23, s{S_MT}, 7
    s_and_b32 s28, s20, 1            ; wm
    s_lshr_b32 s29, s20, 1           ; wk
    s_lshl_b32 s18, s28, 6
    s_add_u32 s33, s23, s18
    s_lshl_b32 s18, s29, 11
    ''')
    x_dma_offsets(e, V_XOFF, 33, LDA, 18, blocked=True)
    e(f'''
    s_mov_b32 s30, 0
    s_mov_b32 s31, {32*LDA}
    s_mov_b32 s34, 0
    s_lshl_b32 s40, s20, 13
    s_add_u32 s52, s40, 4096
    s_lshl_b32 s18, s29, 5
    s_add_u32 s18, s18, s33
    ''')
    tail_addr(e, res[0] == 'ws', out[0] == 'ws', f's{S_CI}')
    e(f'''
    ''')
    x_read_addr_f(e, V_XRD, 40)
    e(f's_lshl_b32 s18, s29, 13\ns_add_u32 s18, s18, {2*XT}')
    w_read_addr(e, V_WRD, [0, 1, 2, 3], 18)
    e(f'''
    v_lshlrev_b32 v{V_EX}, 4, v2
    v_add_u32 v{V_EX}, s40, v{V_EX}
    v_xor_b32 v{V_EXR}, {2 << 13}, v{V_EX}
    s_mov_b32 s36, 0
    s_mov_b32 s42, 0
    s_mov_b32 s50, {STAGE}
    s_mov_b32 s51, {(-(NS-1)*STAGE) & 0xffffffff:#x}
    ''')
    m.stamp(tag + ' wait')
    wait_fn()
    m.stamp(tag + ' go')
    flat = []
    for u in range(NBODY):
        al = 2*(u - NS) + 1
        flat += [(ins, f'{tag}T{u}', al) for ins in dma_x(0) + dma_x(1)]
        if u >= m.pd_w: flat += [(ins, f'{tag}T{u}', al) for ins in dma_w()]
    def take(step, n):
        o = []
        while flat and len(o) < n and flat[0][2] <= step: o.append(flat.pop(0))
        return o
    n0 = sum(1 for f in flat if f[1] in (f'{tag}T0', f'{tag}T1'))
    for ins, tg, _ in take(-1, n0): e.ext(ins); q.issue(tg)
    small = res_loads(res)
    def mfma(nb, tb, p, c=None):
        a = acc(nb, tb)
        cc = f'v[{a}:{a+3}]' if c is None else c
        return f'v_mfma_f32_16x16x32_bf16 v[{a}:{a+3}], v[{wfrag(p,nb)}:{wfrag(p,nb)+3}], v[{xfrag(p,tb)}:{xfrag(p,tb)+3}], {cc}'
    def reads(p, s):
        x = lambda tb: f'ds_read_b128 v[{xfrag(p,tb)}:{xfrag(p,tb)+3}], v{V_XRD+s} offset:{tb*2048}'
        w = lambda nb, h: f'ds_read_b64_tr_b16 v[{wfrag(p,nb)+2*h}:{wfrag(p,nb)+2*h+1}], v{V_WRD+nb} offset:{(32*s+4*h)*128}'
        g = [x(0), w(0, 0), w(0, 1), x(1), x(2), x(3)]
        for nb in range(1, 4): g += [w(nb, 0), w(nb, 1)]
        return g
    needs = [max(2 if tb == 0 else 2 + tb, 5 + 2*b if b else 0) for b in range(4) for tb in range(4)]
    n = q.wait_for({f'{tag}T0'})
    e(f's_waitcnt vmcnt({n})')
    e('s_barrier')
    m.stamp(tag + ' main')
    e.ext(reads(0, 0))
    bodies = []
    for u in range(NBODY):
        B = []
        for s in range(2):
            t = 2 * u + s; p = s
            last = (t == NSTEP - 1)
            ms = [mfma(nb, tb, p, '0' if t == 0 else None) for nb in range(4) for tb in range(4)]
            pre = []; bar = []; rd = []
            if not last:
                if s == 1:
                    pre = [f's_add_u32 s36, s36, {STAGE}', f's_cmp_eq_u32 s36, {STAGE*NS}', 's_cselect_b32 s42, s51, s50',
                           's_cselect_b32 s36, 0, s36', f'v_add_u32 v{V_XRD}, s42, v{V_XRD}'] + \
                          [f'v_add_u32 v{V_WRD+i}, s42, v{V_WRD+i}' for i in range(4)]
                    n = q.wait_for({f'{tag}T{u+1}'})
                    bar = [f's_waitcnt vmcnt({n})', 's_barrier']
                else:
                    pre = [f'v_add_u32 v{V_XRD+1}, s42, v{V_XRD+1}']
                rd = reads(p ^ 1, s ^ 1)
            dm = []
            for ins, tg, _ in take(t, 8 if (s == 1 or t == 0) else 4): dm.append(ins); q.issue(tg)
            if not flat and not dm and small:
                for ins in small[:4]: dm.append(ins); q.issue('res')
                small = small[4:]
            B += build_step(ms, needs, 12, pre, bar, rd, dm, [], nb=(3 if s == 1 else 1))
        bodies.append(B)
    assert not flat and not small
    e.ext(loopify(bodies, m.lab(tag + 'L'), 38))
    e('s_barrier')
    m.stamp(tag + ' epi')
    e('s_nop 7')
    l0 = m.lab('wk0'); lx = m.lab('ex')
    e(f's_cmp_eq_u32 s29, 0\ns_cbranch_scc1 {l0}')
    nres = q.wait_for({'res'})
    def exch(wk):
        keep = [2*wk, 2*wk+1]; send = [2 - 2*wk, 3 - 2*wk]
        for i, tb in enumerate(send):
            for nb in range(4):
                a = acc(nb, tb)
                e(f'ds_write_b128 v{V_EX}, v[{a}:{a+3}] offset:{(i*4+nb)*1024}')
        e(f's_waitcnt vmcnt({nres})')
        unpack_res(e)
        e('s_waitcnt lgkmcnt(0)')
        e('s_barrier')
        for i in range(2):
            for nb in range(4):
                r = 96 + (i*4+nb)*4
                e(f'ds_read_b128 v[{r}:{r+3}], v{V_EXR} offset:{(i*4+nb)*1024}')
        for i, tb in enumerate(keep):
            for nb in range(4):
                a = acc(nb, tb); tm = V_TMP + (i*4+nb)*4
                e(f'v_pk_add_f32 v[{tm}:{tm+1}], v[{tm}:{tm+1}], v[{a}:{a+1}]')
                e(f'v_pk_add_f32 v[{tm+2}:{tm+3}], v[{tm+2}:{tm+3}], v[{a+2}:{a+3}]')
    exch(1)
    e(f's_branch {lx}\n{l0}:')
    exch(0)
    e(f'{lx}:')
    e('s_waitcnt lgkmcnt(0)')
    finalize(e, out, st_off)
    m.stamp(tag + ' st')
    pub_fn()
    m.stamp(tag + ' pub')
    Pre(m, next_pre).emit_all()
```

```python
from asmlib import *
from common import *
from mega import *
import pd
from pd import acc, xfrag, wfrag, V_RES, V_TMP, V_XOFF, V_WOFF, V_XRD, V_WRD, V_ST, V_SST, V_EX, V_EXR, V_RO

XT = 16384; WG_ = 8192; STAGE = XT + 2 * WG_; NS = 5
KH = F // 2; NBODY = KH // 64; NSTEP = 2 * NBODY; LDA = F * 2

def dma_x():
    g = []
    for j in range(4):
        ins = [f'buffer_load_dwordx4 v{V_XOFF+j//2}, s[8:11], s30 offen offset:{j*1024} lds']
        if j == 0: ins = ['s_add_u32 m0, s34, s40', 's_nop 0'] + ins
        if j == 3: ins += [f's_add_u32 s34, s34, {STAGE}', f's_cmp_eq_u32 s34, {STAGE*NS}', 's_cselect_b32 s34, 0, s34']
        if j == 3: ins += ['s_add_u32 s30, s30, 2048']
        g.append(ins)
    return g
def dma_w():
    g = []
    for j in range(4):
        ins = [f'buffer_load_dwordx4 v{V_WOFF+j}, s[12:15], s32 offen offset:{j*1024} lds']
        if j == 0: ins = ['s_add_u32 m0, s35, s41', 's_nop 0'] + ins
        if j == 3: ins += [f's_add_u32 s35, s35, {STAGE}', f's_cmp_eq_u32 s35, {STAGE*NS}', 's_cselect_b32 s35, 0, s35']
        if j == 3: ins += [f's_add_u32 s32, s32, {64*2048}']
        g.append(ins)
    return g

def pre_w(m, ntiles=NS):
    e = m.e
    srd(e, 12, ptr=P_DOWN, size=F*D*2)
    e(f'''
    s_lshr_b32 s18, s20, 1
    s_lshl_b32 s18, s18, 5             ; k row 32*(w>>1)
    s_and_b32 s19, s{S_CI}, 7
    s_lshl_b32 s19, s19, 1
    s_and_b32 s32, s20, 1
    s_add_u32 s19, s19, s32
    s_lshl_b32 s19, s19, 7
    ''')
    w_dma_offsets(e, V_WOFF, 4, 18, 2048, 19)
    e(f'''
    s_lshl_b32 s41, s32, 13
    s_lshl_b32 s18, s18, 7
    s_add_u32 s41, s41, s18
    s_add_u32 s41, s41, {XT}
    s_mul_i32 s32, s{S_PAR}, {KH*2048}
    s_mov_b32 s35, 0
    ''')
    for u in range(ntiles):
        for ins in dma_w(): e.ext(ins); m.q.issue(f'p4T{u}')
    m.ps_w = ntiles

def run(m, L, res, out, st_off, wait_fn, pub_fn, next_pre, opts):
    e = m.e; q = m.q; tag = 'p4'
    srd(e, 8, ws_off=reg(L, R_H) - BLK_BIAS, size=S*LDA + BLK_BIAS)
    srd(e, 56, ws_off=res[1], size=S*D*2)
    e(f'''
    s_lshl_b32 s23, s{S_MT}, 7
    s_lshr_b32 s28, s20, 1           ; wm
    s_and_b32 s29, s20, 1            ; wn
    s_lshl_b32 s18, s20, 5
    s_add_u32 s33, s23, s18
    ''')
    x_dma_offsets(e, V_XOFF, 33, LDA, None, blocked=True)
    e(f'''
    s_mul_i32 s30, s{S_PAR}, {KH*32}
    s_mov_b32 s34, 0
    s_lshl_b32 s40, s20, 12
    s_and_b32 s54, s{S_CI}, 7
    s_lshl_b32 s54, s54, 1
    s_add_u32 s54, s54, s29
    s_lshl_b32 s18, s28, 6
    s_add_u32 s18, s18, s23
    s_lshl_b32 s19, s{S_PAR}, 5
    s_add_u32 s18, s18, s19
    ''')
    pd.tail_addr(e, True, out[0] == 'ws', 's54')
    e('s_lshl_b32 s18, s28, 13')
    x_read_addr_f(e, V_XRD, 18)
    e(f's_lshl_b32 s18, s29, 13\ns_add_u32 s18, s18, {XT}')
    w_read_addr(e, V_WRD, [0, 1, 2, 3], 18)
    e(f'''
    s_lshl_b32 s18, s2, 2
    s_add_u32 s18, s18, s20
    s_xor_b32 s19, s18, 4
    s_lshl_b32 s62, s18, 7
    s_add_u32 s62, s62, {WS_XFLAGS + L*1024*128}
    s_lshl_b32 s63, s19, 7
    s_add_u32 s63, s63, {WS_XFLAGS + L*1024*128}
    s_lshl_b32 s18, s18, 12
    s_add_u32 s18, s18, {reg(L, R_PX)}
    s_lshl_b32 s19, s19, 12
    s_add_u32 s19, s19, {reg(L, R_PX)}
    v_lshlrev_b32 v1, 4, v2
    v_add_u32 v{V_EX}, s18, v1
    v_add_u32 v{V_EXR}, s19, v1
    s_mov_b32 s55, 4096
    s_mov_b32 s36, 0
    s_mov_b32 s42, 0
    s_mov_b32 s50, {STAGE}
    s_mov_b32 s51, {(-(NS-1)*STAGE) & 0xffffffff:#x}
    ''')
    small = pd.res_loads(res)
    m.stamp(tag + ' wait')
    wait_fn()
    m.stamp(tag + ' go')
    flat = []
    for u in range(NBODY):
        al = 2*(u - NS) + 1
        flat += [(ins, f'{tag}T{u}', al) for ins in dma_x()]
        if u >= m.ps_w: flat += [(ins, f'{tag}T{u}', al) for ins in dma_w()]
    def take(step, n):
        o = []
        while flat and len(o) < n and flat[0][2] <= step: o.append(flat.pop(0))
        return o
    n0 = sum(1 for f in flat if int(f[1][3:]) < opts.get('n0', 3))
    for ins, tg, _ in take(-1, n0): e.ext(ins); q.issue(tg)
    def mfma(nb, tb, p, c=None):
        a = acc(nb, tb)
        cc = f'v[{a}:{a+3}]' if c is None else c
        return f'v_mfma_f32_16x16x32_bf16 v[{a}:{a+3}], v[{wfrag(p,nb)}:{wfrag(p,nb)+3}], v[{xfrag(p,tb)}:{xfrag(p,tb)+3}], {cc}'
    def reads(p, s):
        x = lambda tb: f'ds_read_b128 v[{xfrag(p,tb)}:{xfrag(p,tb)+3}], v{V_XRD+s} offset:{tb*2048}'
        w = lambda nb, h: f'ds_read_b64_tr_b16 v[{wfrag(p,nb)+2*h}:{wfrag(p,nb)+2*h+1}], v{V_WRD+nb} offset:{(32*s+4*h)*128}'
        g = [x(0), w(0, 0), w(0, 1), x(1), x(2), x(3)]
        for nb in range(1, 4): g += [w(nb, 0), w(nb, 1)]
        return g
    needs = [max(2 if tb == 0 else 2 + tb, 5 + 2*b if b else 0) for b in range(4) for tb in range(4)]
    n = q.wait_for({f'{tag}T0'})
    e(f's_waitcnt vmcnt({n})')
    e('s_barrier')
    m.stamp(tag + ' main')
    e.ext(reads(0, 0))
    bodies = []
    for u in range(NBODY):
        B = []
        for s in range(2):
            t = 2 * u + s; p = s
            last = (t == NSTEP - 1)
            ms = [mfma(nb, tb, p, '0' if t == 0 else None) for nb in range(4) for tb in range(4)]
            pre = []; bar = []; rd = []
            adv = [f's_add_u32 s36, s36, {STAGE}', f's_cmp_eq_u32 s36, {STAGE*NS}', 's_cselect_b32 s42, s51, s50', 's_cselect_b32 s36, 0, s36']
            ex = []
            if not last:
                if s == 1:
                    pre = [f'v_add_u32 v{V_XRD}, s42, v{V_XRD}', f'v_add_u32 v{V_WRD}, s42, v{V_WRD}'] + \
                          [f'v_add_u32 v{V_WRD+i}, s42, v{V_WRD+i}' for i in range(1, 4)]
                    n = q.wait_for({f'{tag}T{u+1}'} | ({'res'} if u == NBODY - 2 else set()))
                    bar = [f's_waitcnt vmcnt({n})', 's_barrier']
                else:
                    pre = [f'v_add_u32 v{V_XRD+1}, s42, v{V_XRD+1}']
                    ex = adv
                rd = reads(p ^ 1, s ^ 1)
            dm = []
            for ins, tg, _ in take(t, 4 if t >= 4 else 6): dm.append(ins); q.issue(tg)
            if not flat and not dm and small:
                for ins in small[:4]: dm.append(ins); q.issue('res')
                small = small[4:]
            if opts.get('nodma') and 6 <= t < 44: dm = []
            if opts.get('noread'): rd = []
            if opts.get('nobar'): bar = bar[:1]
            B += build_step(ms, needs, 12, pre, bar, rd, dm, ex, nb=(3 if s == 1 else 1))
        bodies.append(B)
    assert not flat and not small and 'res' not in q.q
    e.ext(loopify(bodies, m.lab(tag + 'L'), 38))
    e('s_barrier')
    m.stamp(tag + ' epi')
    e('s_nop 7')
    l0 = m.lab('ks0'); lx = m.lab('ex')
    e(f's_cmp_eq_u32 s{S_PAR}, 0\ns_cbranch_scc1 {l0}')
    def send(ks):
        keep = [2*ks, 2*ks+1]; snd = [2 - 2*ks, 3 - 2*ks]
        for i, tb in enumerate(snd):
            for nb in range(4):
                a = acc(nb, tb); o = 96 + (i*4+nb)*2
                e(f'v_cvt_pk_bf16_f32 v{o}, v{a}, v{a+1}')
                e(f'v_cvt_pk_bf16_f32 v{o+1}, v{a+2}, v{a+3}')
        for k in range(4):
            e(f'buffer_store_dwordx4 v[{96+4*k}:{99+4*k}], v{V_EX}, s[24:27], 0 offen offset:{k*1024} sc1')
        pd.unpack_res(e)
        for i, tb in enumerate(keep):
            for nb in range(4):
                a = acc(nb, tb); tm = V_TMP + (i*4+nb)*4
                e(f'v_pk_add_f32 v[{tm}:{tm+1}], v[{tm}:{tm+1}], v[{a}:{a+1}]')
                e(f'v_pk_add_f32 v[{tm+2}:{tm+3}], v[{tm+2}:{tm+3}], v[{a+2}:{a+3}]')
    send(1)
    e(f's_branch {lx}\n{l0}:')
    send(0)
    e(f'{lx}:')
    pl = m.lab('xpl'); ok = m.lab('xok')
    e(f'''
    v_mov_b32 v1, 0
    v_mov_b32 v3, 1
    s_waitcnt vmcnt(0)
    s_mov_b64 exec, 1
    buffer_store_dword v3, v1, s[24:27], s62 offen sc1
    s_mov_b64 exec, -1
    ''')
    q.clear()
    e(f'''
    v_mov_b32 v28, 0
    s_mov_b32 s39, {SPIN_LIMIT}
    {pl}:
    buffer_load_dword v29, v28, s[24:27], s63 offen sc1
    s_waitcnt vmcnt(0)
    v_readfirstlane_b32 s18, v29
    s_nop 0
    s_cmp_lg_u32 s18, 0
    s_cbranch_scc1 {ok}
    s_sleep 1
    s_sub_u32 s39, s39, 1
    s_cmp_lg_u32 s39, 0
    s_cbranch_scc1 {pl}
    {ok}:
    ''')
    for k in range(4):
        e(f'buffer_load_dwordx4 v[{128+4*k}:{131+4*k}], v{V_EXR}, s[24:27], 0 offen offset:{k*1024} sc1')
        q.issue('px')
    m.stamp(tag + ' got')
    e(f's_waitcnt vmcnt({q.wait_for({"px"})})')
    for k in range(16):
        e(f'v_lshlrev_b32 v{96+2*k}, 16, v{128+k}')
        e(f'v_and_b32 v{97+2*k}, 0xffff0000, v{128+k}')
    pd.finalize(e, out, st_off)
    m.stamp(tag + ' st')
    pub_fn()
    m.stamp(tag + ' pub')
    Pre(m, next_pre).emit_all()
```

```python
import sys
import build, k0, p1, pd, p3, ps
from mega import *
from common import *
LDS = 163840
def make(opts=None, info=None):
    opts = opts or {}
    import common
    common.RPACE = opts.get('rpace', 1.6); common.RMARGIN = opts.get('rmargin', 3); common.COARSE = opts.get('coarse', 4)
    m = M('mega_kernel', opts)
    m.prologue()
    m.stamp('start')
    p1.pre_w(m, 0)
    if opts.get('local'): m.xcc_publish()
    else: m.e('s_mov_b32 s94, 0')
    for L in range(2):
        xin = ('ptr', P_X) if L == 0 else ('ws', reg(0, R_X2))
        p1.run(m, L, lambda: pd.pre_w(m, 'p2', 1024, P_WO))
        pd.run(m, 'p2', 1024, reg(L, R_O), xin, ('ws', reg(L, R_X1)), reg(L, R_STF),
               lambda: m.wait(L, E_B, f's_mov_b32 s18, s{S_MT}', 16),
               lambda: m.publish(L, E_C, f's_lshr_b32 s18, s{S_MT}, 1\ns_lshl_b32 s18, s18, 1\ns_add_u32 s18, s18, s{S_PAR}'),
               lambda: p3.pre_w(m, L), opts.get('p2', {}))
        p3.run(m, L, lambda: ps.pre_w(m))
        last = (L == 1)
        ps.run(m, L, ('ws', reg(L, R_X1)), ('ptr', P_OUT) if last else ('ws', reg(0, R_X2)), None if last else reg(1, R_STA),
               lambda: m.wait(L, E_D, f's_lshr_b32 s18, s{S_MT}, 1\ns_lshl_b32 s18, s18, 1\ns_add_u32 s18, s18, s{S_PAR}', 16),
               (lambda: None) if last else (lambda: m.publish(L, E_E, f's_mov_b32 s18, s{S_MT}')),
               None if last else (lambda: p1.pre_w(m, 1, 4)), opts.get('p4', {}))
    if info is not None: info['stamps'] = m.stamp_names
    kt = m.finish()
    kt0, lds0 = k0.gen('k0_kernel', {'ws0': opts.get('ws0', 0)})
    return build.assemble_file([('k0_kernel', k0.NCS + k0.NST, 256, lds0), ('mega_kernel', 256, 256, LDS)], [kt0, kt])
if __name__ == '__main__':
    out = sys.argv[1] if len(sys.argv) > 1 else 'interleave_layers__linear_kernel_hedgehog__geglu_ffn__prompt.s'
    opts = eval(sys.argv[2]) if len(sys.argv) > 2 else {}
    open(out, 'w').write(make(opts))
```

```python
import sys
HEADER = open('interleave_layers__linear_kernel_hedgehog__geglu_ffn__prompt.s.ref').read().split('; Override launch')[0] if __name__ != 'x' else ''
def assemble_file(launches, kernels, single=False):
    L = []
    for n, g, b, lds in launches:
        L.append(f'; @launch grid=({g},1,1) block=({b},1,1) lds={lds}' if single else f'; @launch kernel={n} grid=({g},1,1) block=({b},1,1) lds={lds}')
    L.append('.amdgcn_target "amdgcn-amd-amdhsa--gfx950"')
    L.append('.text')
    import re
    for c, d in kernels: L += [re.sub(r'\s+', ' ', x.split(';')[0]).replace(', ', ',').replace(' offset:0 ', ' ').strip() for x in c if x.split(';')[0].strip()]
    L.append('.section .rodata,"a"')
    for c, d in kernels: L += d
    return HEADER + '\n'.join(L) + '\n'
```

```python
from asmlib import *
from common import *

P_X, P_WQKV, P_PHI, P_WO, P_GATE, P_UP, P_DOWN, P_OUT = 64, 66, 68, 70, 74, 76, 78, 80
S_MT, S_CI, S_MT2, S_NT2, S_PAR = 84, 85, 86, 87, 88
SPIN_LIMIT = 1 << 22

class M:
    def __init__(self, name, opts):
        self.e = Asm(); self.name = name; self.opts = opts; self.nl = 0; self.q = DmaQ(); self.nst = 0
        self.stamp_names = []
    def lab(self, s):
        self.nl += 1
        return f'{self.name}_{s}{self.nl}'
    def prologue(self):
        e = self.e
        e(f'''
        s_cmp_ge_u32 s2, 256
        s_cbranch_scc1 {self.name}_end
        s_load_dwordx16 s[64:79], s[0:1], 0
        s_load_dwordx4 s[80:83], s[0:1], 64
        s_load_dwordx2 s[16:17], s[0:1], 80
        v_lshrrev_b32 v1, 6, v0
        v_and_b32 v2, 63, v0
        v_readfirstlane_b32 s20, v1
        v_and_b32 v30, 15, v2
        v_lshrrev_b32 v31, 4, v2
        s_and_b32 s21, s2, 7
        s_lshr_b32 s22, s2, 3             ; idx
        s_lshr_b32 s23, s21, 1            ; rg
        s_and_b32 s{S_PAR}, s21, 1
        s_lshl_b32 s18, s23, 2
        s_and_b32 s19, s22, 3
        s_add_u32 s{S_MT}, s18, s19
        s_lshl_b32 s18, s{S_PAR}, 3
        s_lshr_b32 s19, s22, 2
        s_add_u32 s{S_CI}, s18, s19
        s_lshl_b32 s18, s23, 1
        s_and_b32 s19, s22, 1
        s_add_u32 s{S_MT2}, s18, s19
        s_lshl_b32 s18, s{S_PAR}, 4
        s_lshr_b32 s19, s22, 1
        s_add_u32 s{S_NT2}, s18, s19
        s_mov_b32 s11, 0x00020000
        s_mov_b32 s15, 0x00020000
        s_mov_b32 s26, {WS_SIZE - self.opts.get('ws0', 0)*MB}
        s_mov_b32 s27, 0x00020000
        s_mov_b32 s59, 0x00020000
        s_mov_b32 s46, {f2u(1.0/1024):#x}
        s_mov_b32 s47, {f2u(1e-5):#x}
        s_lshl_b32 s89, s2, 2
        s_add_u32 s89, s89, s20
        s_lshl_b32 s89, s89, 10
        s_add_u32 s89, s89, {WS_STAMP}
        s_waitcnt lgkmcnt(0)
        s_add_u32 s16, s16, {self.opts.get('ws0', 0)*MB}
        s_addc_u32 s17, s17, 0
        s_mov_b32 s24, s16
        s_mov_b32 s25, s17
        ''')
    def stamp(self, nm):
        if not self.opts.get('stamp'): return
        e = self.e
        i = self.nst; self.nst += 1; self.stamp_names.append(nm)
        e('s_memrealtime s[90:91]')
        e('s_memtime s[96:97]')
        e('s_waitcnt lgkmcnt(0)')
        e('v_mov_b32 v0, s90')
        e('v_mov_b32 v1, s96')
        e('v_mov_b32 v3, 0')
        e('s_mov_b64 exec, 1')
        e(f'buffer_store_dwordx2 v[0:1], v3, s[24:27], s89 offen offset:{8*i}')
        e('s_mov_b64 exec, -1')
        self.q.issue('stamp')
    def tag_write(self):
        sk = self.lab('tw')
        return [f's_or_b32 s18, s2, s20\ns_cmp_lg_u32 s18, 0\ns_cbranch_scc1 {sk}\ns_memrealtime s[90:91]\ns_waitcnt lgkmcnt(0)\ns_or_b32 s18, s90, 1\n'
                f'v_mov_b32 v1, 0\nv_mov_b32 v3, s18\ns_mov_b64 exec, 1\nglobal_store_dword v1, v3, s[82:83] sc1\ns_mov_b64 exec, -1\n{sk}:']
    def tag_load(self, vz, v):
        return [f'v_mov_b32 v{vz}, 0', f'global_load_dword v{v}, v{vz}, s[82:83] sc1']
    def tag_check(self, vz, v):
        ok = self.lab('tok'); pl = self.lab('tpl')
        return [f's_mov_b32 s39, {SPIN_LIMIT}', f'{pl}:', f'v_readfirstlane_b32 s94, v{v}', 's_nop 0', 's_cmp_lg_u32 s94, 0', f's_cbranch_scc1 {ok}',
                's_sleep 1', f'global_load_dword v{v}, v{vz}, s[82:83] sc1', 's_waitcnt vmcnt(0)',
                's_sub_u32 s39, s39, 1', 's_cmp_lg_u32 s39, 0', f's_cbranch_scc1 {pl}', f'{ok}:']
    def signal(self, layer, edge, expr):
        skip = self.lab('pub')
        return [f's_cmp_lg_u32 s20, 0', f's_cbranch_scc1 {skip}'] + expr.split('\n') + [
            's_lshl_b32 s18, s18, 8', 's_lshl_b32 s19, s19, 2', 's_add_u32 s18, s18, s19', f's_add_u32 s18, s18, {flag_off(layer, edge, 0)}',
            'v_mov_b32 v1, 0', 'v_mov_b32 v3, s94', 's_mov_b64 exec, 1', 'buffer_store_dword v3, v1, s[24:27], s18 offen sc1', 's_mov_b64 exec, -1', f'{skip}:']
    def publish(self, layer, edge, expr):
        e = self.e
        e('s_waitcnt vmcnt(0)'); self.q.clear()
        e('s_barrier')
        e.ext(self.signal(layer, edge, expr))
    def wait(self, layer, edge, group_expr, n, nshard=1):
        e = self.e
        bar = self.lab('wbar'); poll = self.lab('poll'); got = self.lab('got')
        e(f's_cmp_lg_u32 s20, 0\ns_cbranch_scc1 {bar}')
        e(group_expr)
        assert n == 16
        e(f'''
        s_lshl_b32 s18, s18, 8
        s_add_u32 s18, s18, {flag_off(layer, edge, 0)}
        v_lshlrev_b32 v1, 2, v30
        v_lshl_add_u32 v1, v31, 8, v1
        s_mov_b32 exec_lo, {(1 << (16*nshard)) - 1:#x}
        s_mov_b32 exec_hi, 0
        s_mov_b32 s39, {SPIN_LIMIT}
        {poll}:
        buffer_load_dword v3, v1, s[24:27], s18 offen sc1
        s_waitcnt vmcnt(0)
        v_cmp_ne_u32 vcc, s94, v3
        s_nop 1
        s_cmp_eq_u64 vcc, 0
        s_cbranch_scc1 {got}
        s_sleep 1
        s_sub_u32 s39, s39, 1
        s_cmp_lg_u32 s39, 0
        s_cbranch_scc1 {poll}
        {got}:
        s_mov_b64 exec, -1
        {bar}:
        s_barrier
        ''')
    def soft_load(self, soff, voff, v):
        return [f'buffer_load_dword v{v}, v{voff}, s[24:27], s{soff} offen sc1']
    def soft_check(self, soff, voff, v):
        ok = self.lab('sok'); pl = self.lab('spl')
        return [f's_mov_b32 s39, {SPIN_LIMIT}', f'{pl}:', f'v_cmp_ne_u32 s[90:91], s94, v{v}', 's_nop 1', 's_cmp_eq_u64 s[90:91], 0', f's_cbranch_scc1 {ok}',
                's_sleep 1', f'buffer_load_dword v{v}, v{voff}, s[24:27], s{soff} offen sc1', 's_waitcnt vmcnt(0)',
                's_sub_u32 s39, s39, 1', 's_cmp_lg_u32 s39, 0', f's_cbranch_scc1 {pl}', f'{ok}:']
    def finish(self, vg=256, ag=256):
        e = self.e
        e(f'{self.name}_end:')
        e('s_endpgm')
        return kernel_text(self.name, hazard_pass(e.L), vg, ag, sgpr=100)

def srd(e, base, ptr=None, ws_off=None, size=None):
    if ptr is not None: e(f's_mov_b32 s{base}, s{ptr}\ns_mov_b32 s{base+1}, s{ptr+1}')
    else: e(f's_add_u32 s{base}, s16, {ws_off}\ns_addc_u32 s{base+1}, s17, 0')
    e(f's_mov_b32 s{base+2}, {size}')

def x_dma_offsets(e, v, row_sreg, ld, extra_sreg=None, blocked=False):
    if not blocked:
        e(f'''
        v_lshrrev_b32 v3, 3, v2
        v_add_u32 v3, s{row_sreg}, v3
        v_mul_u32_u24 v3, {ld}, v3
        ''')
        if extra_sreg is not None: e(f'v_add_u32 v3, s{extra_sreg}, v3')
        e(f'''
        v_and_b32 v1, 7, v2
        v_xor_b32 v1, v1, v31
        v_lshl_add_u32 v{v}, v1, 4, v3
        v_xor_b32 v1, 4, v1
        v_lshl_add_u32 v{v+1}, v1, 4, v3
        v_add_u32 v{v+1}, {8*ld - 1024}, v{v+1}
        v_add_u32 v{v+2}, {16*ld - 2048}, v{v}
        v_add_u32 v{v+3}, {16*ld - 2048}, v{v+1}
        ''')
    else:
        e(f'''
        s_mul_i32 s19, s{row_sreg}, {ld}
        v_lshlrev_b32 v{v}, 4, v2
        v_add_u32 v{v}, s19, v{v}
        ''')
        if extra_sreg is not None: e(f'v_add_u32 v{v}, s{extra_sreg}, v{v}')
        e(f'v_add_u32 v{v+1}, {16*ld - 2048}, v{v}')
BLK_BIAS = 0


def w_dma_offsets(e, v, n, krow_sreg, ld, col_sreg):
    e(f'''
    v_lshrrev_b32 v3, 3, v2
    v_add_u32 v3, s{krow_sreg}, v3
    v_mul_u32_u24 v3, {ld}, v3
    v_add_u32 v3, s{col_sreg}, v3
    v_and_b32 v1, 1, v31
    v_lshlrev_b32 v1, 1, v1
    v_and_b32 v0, 7, v2
    v_xor_b32 v1, v1, v0
    v_lshl_add_u32 v{v}, v1, 4, v3
    v_xor_b32 v1, 4, v1
    v_lshl_add_u32 v{v+1}, v1, 4, v3
    v_add_u32 v{v+1}, {8*ld - 1024}, v{v+1}
    ''')
    if n == 4:
        e(f'v_add_u32 v{v+2}, {16*ld - 2048}, v{v}\nv_add_u32 v{v+3}, {16*ld - 2048}, v{v+1}')

def x_read_addr_f(e, v, base_sreg):
    e(f'v_lshlrev_b32 v{v}, 4, v2\nv_add_u32 v{v}, s{base_sreg}, v{v}\nv_add_u32 v{v+1}, 1024, v{v}')

def frag_store_addr(e, v, base_sreg):
    e(f'''
    v_lshlrev_b32 v{v}, 4, v30
    v_and_b32 v1, 1, v31
    v_lshl_add_u32 v{v}, v1, 9, v{v}
    v_lshrrev_b32 v1, 1, v31
    v_lshl_add_u32 v{v}, v1, 8, v{v}
    v_add_u32 v{v}, s{base_sreg}, v{v}
    ''')

def x_read_addr(e, v, base_sreg):
    e(f'''
    v_lshrrev_b32 v1, 1, v30
    v_lshlrev_b32 v3, 7, v30
    v_add_u32 v3, s{base_sreg}, v3
    v_xor_b32 v{v}, v31, v1
    v_xor_b32 v{v+1}, 4, v{v}
    v_lshl_add_u32 v{v}, v{v}, 4, v3
    v_lshl_add_u32 v{v+1}, v{v+1}, 4, v3
    ''')

def w_read_addr(e, v, nbs, base_sreg, nb_xor_sreg=None):
    e(f'''
    v_bfe_u32 v1, v2, 2, 2
    v_lshl_add_u32 v3, v31, 3, v1
    v_lshlrev_b32 v3, 7, v3
    v_add_u32 v3, s{base_sreg}, v3
    v_and_b32 v0, 1, v2
    v_lshl_add_u32 v3, v0, 3, v3
    v_and_b32 v1, 2, v1
    v_and_b32 v0, 1, v31
    v_lshl_add_u32 v1, v0, 2, v1
    v_bfe_u32 v0, v2, 1, 1
    v_or_b32 v1, v1, v0
    ''')
    if nb_xor_sreg is not None: e(f'v_xor_b32 v1, s{nb_xor_sreg}, v1')
    for i, nb in enumerate(nbs):
        e(f'v_xor_b32 v0, {2*nb}, v1')
        e(f'v_lshl_add_u32 v{v+i}, v0, 4, v3')

def stats_loads(dst_fmt, voff, soff):
    return [[f'buffer_load_dwordx4 {dst_fmt(i*4)}, v{voff}, s[24:27], s{soff} offen offset:{i*256} sc1'] for i in range(8)]

class Pre:
    def __init__(self, m, fn):
        self.m = m; self.setup = []; self.dmas = []
        if fn is None: return
        keep_e, keep_q = m.e, m.q
        cap = Asm(); m.e = cap
        class Q:
            def __init__(s): s.marks = []
            def issue(s, tag): s.marks.append((len(cap.L), tag))
        m.q = Q()
        fn()
        marks = m.q.marks
        m.e, m.q = keep_e, keep_q
        first = next(i for i, l in enumerate(cap.L) if 'm0' in l)
        self.setup = cap.L[:first]
        prev = first
        for pos, tag in marks:
            self.dmas.append((cap.L[prev:pos], tag)); prev = pos
    def emit_setup(self): self.m.e.ext(self.setup)
    def emit_all(self):
        self.emit_setup()
        while self.dmas: self.one()
    def one(self):
        if self.dmas:
            ins, tag = self.dmas.pop(0)
            self.m.e.ext(ins); self.m.q.issue(tag)
    def weave(self, lines, every):
        for i, l in enumerate(lines):
            self.m.e(l)
            if i % every == every - 1: self.one()
        while self.dmas: self.one()
```

```python
from asmlib import *
from common import *
from mega import *

XT = 16384; WG_ = 8192; STAGE = XT + 3 * WG_; NS = 4
LDW = 3 * D * 2
NBODY = 16; NSTEP = 32
ROWB = 352; HREG = 128 * ROWB

def acc(blk, tb): return 32 + (blk * 4 + tb) * 4
def xfrag(p, tb): return 128 + p * 40 + tb * 4
def wfrag(p, b): return 128 + p * 40 + 16 + b * 4
V_RAW = 208; V_PHI = 240; V_A = 248
CSA = 0; NMB = 24; PHH = 40; ONES = 48; CSP = 52; CSL = 64
V_XOFF = 4; V_WOFF = 8; V_XRD = 12; V_WRD = 14
V_LW = 18; V_LR = 19; V_KV = 20; V_OS = 21; V_KZ = 22

def dma_x(aux='', kadv=128, frag=False, rot=False):
    g = []
    for j in range(4):
        ins = [f'buffer_load_dwordx4 v{V_XOFF+(j//2 if frag else j)}, s[8:11], s30 offen offset:{j*1024} {aux} lds']
        if j == 0: ins = ['s_add_u32 m0, s34, s40', 's_nop 0'] + ins
        if j == 3: ins += [f's_add_u32 s34, s34, {STAGE}', f's_cmp_eq_u32 s34, {STAGE*NS}', 's_cselect_b32 s34, 0, s34']
        if j == 3: ins += [f's_add_u32 s30, s30, {kadv}'] + (['s_and_b32 s30, s30, 0x7ff'] if rot else [])
        g.append(ins)
    return g
def dma_w(rot=False):
    g = []
    so = [32, 33, 31]; mb = [41, 43, 53]
    for grp in range(3):
        for j in range(2):
            ins = [f'buffer_load_dwordx4 v{V_WOFF+j}, s[12:15], s{so[grp]} offen offset:{j*1024} lds']
            if j == 0: ins = [f's_add_u32 m0, s35, s{mb[grp]}', 's_nop 0'] + ins
            if j == 1 and not rot: ins += [f's_add_u32 s{so[grp]}, s{so[grp]}, {64*LDW}']
            if j == 1 and grp == 2:
                ins += [f's_add_u32 s35, s35, {STAGE}', f's_cmp_eq_u32 s35, {STAGE*NS}', 's_cselect_b32 s35, 0, s35']
                if rot: ins += [f's_add_u32 s32, s32, {64*LDW}', f's_cmp_eq_u32 s32, {D*LDW}', 's_cselect_b32 s32, 0, s32', 's_add_u32 s33, s32, 2048', 's_add_u32 s31, s32, 4096']
            g.append(ins)
    return g

def pre_w(m, layer, ntiles=2):
    e = m.e
    srd(e, 12, ptr=P_WQKV, size=D*LDW)
    e(f'''
    s_lshl_b32 s18, s20, 4
    s_lshl_b32 s19, s{S_CI}, 7
    ''')
    w_dma_offsets(e, V_WOFF, 2, 18, LDW, 19)
    e(f'''
    s_mul_i32 s32, s{S_MT}, {64*LDW if layer == 0 else 0}
    s_add_u32 s33, s32, 2048
    s_add_u32 s31, s32, 4096
    s_mov_b32 s35, 0
    s_lshl_b32 s41, s20, 11
    s_add_u32 s41, s41, {XT}
    s_add_u32 s43, s41, {WG_}
    s_add_u32 s53, s41, {2*WG_}
    ''')
    for u in range(ntiles):
        for ins in dma_w(layer == 0): e.ext(ins); m.q.issue(f'P1T{u}')
    m.p1_w = ntiles

def run(m, layer, next_pre):
    e = m.e; q = m.q; opts = m.opts.get('p1', {})
    L = layer
    xaux = '' if L == 0 else 'sc1'
    if L == 0: srd(e, 8, ptr=P_X, size=S*D*2)
    else: srd(e, 8, ws_off=reg(0, R_X2) - BLK_BIAS, size=S*D*2 + BLK_BIAS)
    e(f'''
    s_lshl_b32 s23, s{S_MT}, 7        ; m0
    s_lshr_b32 s28, s20, 1            ; wm
    s_and_b32 s29, s20, 1             ; wh
    s_lshl_b32 s18, s20, 5
    s_add_u32 s18, s18, s23
    ''')
    x_dma_offsets(e, V_XOFF, 18, 2048, blocked=(L > 0))
    e(f's_mul_i32 s30, s{S_MT}, {128 if L == 0 else 0}\ns_mov_b32 s34, 0\ns_lshl_b32 s40, s20, 12')
    def rest_setup():
        e('s_lshl_b32 s18, s28, 13')
        (x_read_addr if L == 0 else x_read_addr_f)(e, V_XRD, 18)
        e(f's_mov_b32 s18, {XT}\ns_lshl_b32 s19, s29, 2')
        w_read_addr(e, V_WRD, [0, 1], 18, 19)
        e(f'''
        s_lshl_b32 s18, s{S_CI}, 1
        s_add_u32 s54, s18, s29            ; head
        s_lshl_b32 s18, s{S_MT}, 3
        s_lshl_b32 s19, s28, 2
        s_add_u32 s18, s18, s19
        s_lshl_b32 s18, s18, 11
        s_add_u32 s60, s18, {reg(L, R_STA)}
        v_lshlrev_b32 v23, 11, v31
        v_lshl_add_u32 v23, v30, 4, v23
        s_lshl_b32 s18, s54, 5
        v_add_u32 v1, s18, v30
        v_lshlrev_b32 v24, 4, v1
        v_mov_b32 v16, v24
        v_mul_u32_u24 v1, {CS_PLANE}, v31
        v_add_u32 v24, v24, v1
        s_mov_b32 s62, {WS_CS}
        s_mov_b32 s63, {WS_CS + 1024*16}
        s_mov_b32 s55, {WS_CS + 2048*16}
        v_lshlrev_b32 v25, 8, v31
        v_lshl_add_u32 v25, v30, 1, v25
        s_lshl_b32 s45, s54, 11
        s_lshl_b32 s18, s28, 6
        v_add_u32 v1, s18, v30
        v_mul_u32_u24 v1, {ROWB}, v1
        v_lshrrev_b32 v3, 2, v30
        v_xor_b32 v3, v3, v31
        v_lshl_add_u32 v1, v3, 3, v1
        s_mul_i32 s18, s29, {HREG}
        v_add_u32 v{V_LW}, s18, v1
        v_bfe_u32 v1, v2, 2, 2
        v_lshl_add_u32 v1, v31, 2, v1
        v_mul_u32_u24 v1, {ROWB}, v1
        v_and_b32 v3, 3, v2
        v_xor_b32 v3, v3, v31
        v_lshl_add_u32 v1, v3, 3, v1
        v_add_u32 v{V_LR}, s18, v1
        s_lshl_b32 s18, s{S_MT}, 5
        s_add_u32 s18, s18, s54
        s_mul_i32 s18, s18, {KVP_HEAD}
        s_add_u32 s18, s18, {reg(L, R_KVP)}
        s_lshl_b32 s19, s28, 7
        s_add_u32 s19, s19, s18
        s_add_u32 s19, s19, 8192
        v_lshlrev_b32 v1, 4, v31
        v_add_u32 v{V_KZ}, s19, v1
        s_lshl_b32 s19, s28, 12
        s_add_u32 s18, s18, s19
        v_lshlrev_b32 v1, 4, v2
        v_add_u32 v{V_KV}, s18, v1
        s_lshl_b32 s18, s28, 6
        s_add_u32 s18, s18, s23
        s_lshl_b32 s18, s18, 11
        s_lshl_b32 s19, s54, 10
        s_add_u32 s18, s18, s19
        s_add_u32 s18, s18, {reg(L, R_O)}
        ''')
        frag_store_addr(e, V_OS, 18)
        e(f'''
        s_mov_b32 s36, 0
        s_mov_b32 s42, 0
        s_mov_b32 s50, {STAGE}
        s_mov_b32 s51, {(-(NS-1)*STAGE) & 0xffffffff:#x}
        ''')
        srd(e, 56, ptr=P_PHI, size=65536)
        e(f'''
        s_lshr_b32 s18, s{S_MT}, 3
        s_lshl_b32 s19, s{S_CI}, 1
        s_add_u32 s18, s18, s19
        s_mul_i32 s44, s18, 6144
        s_bfe_u32 s18, s{S_MT}, 0x10002
        s_mul_i32 s18, s18, 3072
        s_add_u32 s44, s44, s18
        s_and_b32 s18, s{S_MT}, 1
        s_lshl_b32 s18, s18, 10
        s_add_u32 s44, s44, s18
        s_and_b32 s18, s{S_MT}, 2
        s_lshl_b32 s18, s18, 2
        s_add_u32 s44, s44, s18
        s_lshr_b32 s18, s{S_MT}, 2
        s_add_u32 s18, s18, s19
        s_mul_i32 s39, s18, 6144
        s_bfe_u32 s18, s{S_MT}, 0x10001
        s_mul_i32 s18, s18, 3072
        s_add_u32 s39, s39, s18
        s_and_b32 s18, s{S_MT}, 1
        s_lshl_b32 s18, s18, 3
        s_add_u32 s39, s39, s18
        s_add_u32 s39, s39, 2048
        s_lshr_b32 s18, s{S_MT}, 3
        s_lshl_b32 s18, s18, 2
        s_add_u32 s18, s18, s20
        s_cmp_eq_u32 s18, 1
        s_cselect_b32 s44, s39, s44
        s_add_u32 s44, s44, {reg(L, R_KVR)}
        s_mov_b32 s92, s44
        ''')
    const = []
    for b in range(6):
        const.append([f'buffer_load_dwordx4 a[{CSA+4*b}:{CSA+4*b+3}], v24, s[24:27], s{[62,63,55][b//2]} offen offset:{(b%2)*256} sc1'])
    for fb in range(2):
        for i in range(8):
            d = (i & 3) + 16 * (i >> 2)
            dst = f'v{V_PHI + fb*4 + i//2}' if i % 2 == 0 else f'a{PHH + fb*4 + i//2}'
            const.append([f'buffer_load_ushort {dst}, v25, s[56:59], s45 offen offset:{d*64 + fb*32}'])
    small = stats_loads(lambda o: f'v[{V_RAW+o}:{V_RAW+o+3}]', 23, 60)
    if L > 0:
        rest_setup()
        for ins in const: e.ext(ins); q.issue('const')
        m.stamp('p1 wait')
        m.wait(L - 1, E_E, f's_mov_b32 s18, s{S_MT}', 16)
    else:
        small = const + small
    m.stamp('p1 go')
    nw = m.p1_w
    flat = []
    for u in range(NBODY):
        xs = [(ins, f'P1T{u}', 2*(u - NS) + 1) for ins in dma_x(xaux, 128 if L == 0 else 2048, L > 0, L == 0)]
        ws = [(ins, f'P1T{u}', 2*(u - NS) + 1) for ins in dma_w(L == 0)] if u >= nw else []
        flat += xs + ws
    def take(step, n):
        out = []
        while flat and len(out) < n and flat[0][2] <= step: out.append(flat.pop(0))
        return out
    n0 = sum(1 for f in flat if int(f[1][3:]) < max(2, nw))
    for ins, tag, _ in take(-1, n0): e.ext(ins); q.issue(tag)
    if L == 0:
        e(f'''
        s_lshl_b32 s18, s{S_CI}, 3
        s_add_u32 s18, s18, s23
        s_lshl_b32 s19, s20, 1
        s_add_u32 s48, s18, s19
        s_lshl_b32 s18, s48, 11
        v_lshlrev_b32 v1, 5, v2
        ''')
        for r in range(2):
            for h in range(2):
                e(f'buffer_load_dwordx4 v[{V_RAW+r*8+h*4}:{V_RAW+r*8+h*4+3}], v1, s[8:11], s18 offen offset:{r*2048 + h*16}'); q.issue('xr')
        for x in m.tag_write(): e(x)
        rest_setup()
        e(f'''
        v_mov_b32 v1, 0x3f803f80
        v_accvgpr_write_b32 a{ONES}, v1
        v_accvgpr_write_b32 a{ONES+1}, v1
        v_accvgpr_write_b32 a{ONES+2}, v1
        v_accvgpr_write_b32 a{ONES+3}, v1
        s_lshr_b32 s18, s{S_MT}, 2
        s_mul_i32 s18, s18, {CS_PLANE}
        s_and_b32 s19, s{S_MT}, 3
        s_lshl_b32 s19, s19, 2
        s_add_u32 s18, s18, s19
        v_add_u32 v16, s18, v16
        s_lshr_b32 s18, s48, 4
        s_lshl_b32 s18, s18, 11
        s_and_b32 s19, s48, 15
        s_lshl_b32 s19, s19, 4
        s_add_u32 s18, s18, s19
        s_add_u32 s48, s18, {reg(0, R_STA)}
        v_lshrrev_b32 v17, 3, v2
        v_lshlrev_b32 v17, 8, v17
        v_bfe_u32 v1, v2, 2, 1
        v_lshl_add_u32 v17, v1, 3, v17
        s_lshl_b32 s49, s{S_MT}, 8
        s_add_u32 s49, s49, {flag_off(0, E_S, 0)}
        s_lshl_b32 s52, s{S_CI}, 8
        s_add_u32 s52, s52, {flag_off(0, E_CSQ, 0)}
        v_lshlrev_b32 v28, 2, v30
        ''')
    def mfma(b, tb, p, c=None):
        a = acc(b, tb)
        cc = f'v[{a}:{a+3}]' if c is None else c
        return f'v_mfma_f32_16x16x32_bf16 v[{a}:{a+3}], v[{wfrag(p,b)}:{wfrag(p,b)+3}], v[{xfrag(p,tb)}:{xfrag(p,tb)+3}], {cc}'
    def reads(p, s):
        x = lambda tb: f'ds_read_b128 v[{xfrag(p,tb)}:{xfrag(p,tb)+3}], v{V_XRD+s} offset:{tb*2048}'
        w = lambda b, h: f'ds_read_b64_tr_b16 v[{wfrag(p,b)+2*h}:{wfrag(p,b)+2*h+1}], v{V_WRD+(b&1)} offset:{(b>>1)*WG_ + (32*s+4*h)*128}'
        g = [x(0), w(0, 0), w(0, 1), x(1), x(2), x(3)]
        for b in range(1, 6): g += [w(b, 0), w(b, 1)]
        return g
    needs = [max(2 if tb == 0 else 2 + tb, 5 + 2*b if b else 0) for b in range(6) for tb in range(4)]
    n = q.wait_for({'P1T0'})
    e(f's_waitcnt vmcnt({n})')
    e('s_barrier')
    m.stamp('p1 main')
    e.ext(reads(0, 0))
    extra = []
    for i in range(8):
        extra.append(f'v_accvgpr_read_b32 v26, a{PHH+i}')
        extra.append(f'v_lshl_or_b32 v{V_PHI+i}, v26, 16, v{V_PHI+i}')
    extra += stats_t(V_RAW, V_A, V_RAW + 8, None)
    for tb in range(4): extra.append(f'v_rcp_f32 v{V_A+tb}, v{V_A+tb}')
    for tb in range(4):
        for i in range(4): extra.append(f'v_accvgpr_write_b32 a{NMB+4*tb+i}, v{V_RAW+8+tb}')
    TW = 27
    early = []
    if L == 0:
        A0 = V_RAW + 16; T0 = V_RAW + 20
        early += [f'v_mov_b32 v{A0+i}, 0' for i in range(4)]
        for d in range(8):
            for r in range(2):
                x = V_RAW + r*8 + d; t0 = T0 + r*2
                early += [f'v_lshlrev_b32 v{t0}, 16, v{x}', f'v_and_b32 v{t0+1}, 0xffff0000, v{x}']
            for r in range(2):
                t0 = T0 + r*2
                early += [f'v_add_f32 v{A0+2*r}, v{A0+2*r}, v{t0}', f'v_fmac_f32 v{A0+2*r+1}, v{t0}, v{t0}',
                          f'v_add_f32 v{A0+2*r}, v{A0+2*r}, v{t0+1}', f'v_fmac_f32 v{A0+2*r+1}, v{t0+1}, v{t0+1}']
        for qp in ('[1,0,3,2]', '[2,3,0,1]'):
            early += [f'v_add_f32_dpp v{A0+i}, v{A0+i}, v{A0+i} quad_perm:{qp} row_mask:0xf bank_mask:0xf' for i in range(4)]
        C0 = V_RAW + 24
        early += [f'v_accvgpr_read_b32 v{C0+i}, a{CSP+4*i}' for i in range(3)]
        early += [f'v_cvt_pk_bf16_f32 v{C0+4+i}, v{C0+i}, v{C0+i}' for i in range(3)]
        early += [f'v_and_b32 v{C0+4+i}, 0xffff0000, v{C0+4+i}' for i in range(3)]
        early += [f'v_sub_f32 v{C0+4+i}, v{C0+i}, v{C0+4+i}' for i in range(3)]
        early += [f'v_cvt_pk_bf16_f32 v{C0+4+i}, v{C0+i}, v{C0+4+i}' for i in range(3)]
    SENT = 252
    sent = []
    if L == 0:
        for LL in range(2):
            for k in range(4):
                g = [f'buffer_store_dwordx4 v[{SENT}:{SENT+3}], v29, s[24:27], s48 offen offset:{k*1024} sc1']
                if k == 0 and LL == 0:
                    g = [f'v_mov_b32 v{SENT+i}, -1' for i in range(4)] + ['v_lshlrev_b32 v29, 4, v2', 's_lshl_b32 s18, s2, 2', 's_add_u32 s18, s18, s20',
                         's_lshl_b32 s18, s18, 12', f's_add_u32 s48, s18, {reg(0, R_PX)}'] + g
                if k == 3 and LL == 0: g += [f's_add_u32 s48, s48, {LAYER_STRIDE}']
                sent.append(g)
        sent.append([f'buffer_store_dwordx2 v[{SENT}:{SENT+1}], v29, s[24:27], s44 offen sc1', f's_add_u32 s44, s44, {LAYER_STRIDE}'])
        sent.append([f'buffer_store_dwordx2 v[{SENT}:{SENT+1}], v29, s[24:27], s44 offen sc1'])
    touch = (L == 0 and not opts.get('notouch'))
    if touch:
        e(f'''
        s_cmp_lt_u32 s20, 2
        s_cselect_b32 s4, s{P_GATE}, s{P_UP}
        s_cselect_b32 s5, s{P_GATE+1}, s{P_UP+1}
        s_mov_b32 s6, {D*F*2}
        s_mov_b32 s7, 0x00020000
        s_lshl_b32 s18, s2, 1
        s_and_b32 s19, s20, 1
        s_add_u32 s18, s18, s19
        s_mul_i32 s37, s18, {112*128}
        s_lshl_b32 s18, s2, 2
        s_add_u32 s18, s18, s20
        s_lshl_b32 s61, s18, 11
        ''')
    bodies = []
    for u in range(NBODY):
        B = []
        for s in range(2):
            t = 2 * u + s; p = s
            last = (t == NSTEP - 1)
            ms = [mfma(b, tb, p, '0' if t == 0 else None) for b in range(6) for tb in range(4)]
            pre = []; bar = []; rd = []
            if not last:
                if s == 1:
                    pre = [f's_add_u32 s36, s36, {STAGE}', f's_cmp_eq_u32 s36, {STAGE*NS}', 's_cselect_b32 s42, s51, s50',
                           's_cselect_b32 s36, 0, s36', f'v_add_u32 v{V_XRD}, s42, v{V_XRD}'] + \
                          [f'v_add_u32 v{V_WRD+i}, s42, v{V_WRD+i}' for i in range(2)]
                    tags = {f'P1T{u+1}'} | ({'small'} if t == TW else set())
                    if L == 0 and t == 1: tags |= {'xr'}
                    if L == 0 and t == 9: tags |= {'tag', 'hand'}
                    if L == 0 and t == 19: tags |= {'flg'}
                    n = q.wait_for(tags)
                    bar = [f's_waitcnt vmcnt({n})', 's_barrier']
                    if L == 0 and t == 9:
                        bar += m.tag_check(26, 27)
                        bar += m.signal(0, E_S, f's_mov_b32 s18, s{S_MT}\ns_mov_b32 s19, s{S_CI}')
                        bar += m.signal(0, E_CSQ, f's_mov_b32 s18, s{S_CI}\ns_mov_b32 s19, s{S_MT}')
                    if L == 0 and t == 19:
                        bar += m.soft_check(49, 28, 26) + m.soft_check(52, 28, 27)
                else:
                    pre = [f'v_add_u32 v{V_XRD+1}, s42, v{V_XRD+1}']
                rd = reads(p ^ 1, s ^ 1)
            dm = []
            for ins, tag, _ in take(t, opts.get('q', 8) if t < 8 else 6): dm.append(ins); q.issue(tag)
            if L == 0 and t == 6: dm.append(m.tag_load(26, 27)); q.issue('tag')
            if L == 0 and t == 17:
                dm.append(m.soft_load(49, 28, 26)); q.issue('flg'); dm.append(m.soft_load(52, 28, 27)); q.issue('flg')
            if t >= 8 and sent:
                dm.append(sent.pop(0)); q.issue('sent')
            if small and t >= (21 if L == 0 else 25):
                k = max(0, (9 if L == 0 else 4) - len(dm))
                for ins in small[:k]: dm.append(ins); q.issue('small')
                small = small[k:]
            if t == TW: assert not small
            if touch and t in (27, 28):
                dm.append(['v_min_u32 v27, 55, v2', 'v_lshlrev_b32 v27, 7, v27', f'buffer_load_dword a{CSL}, v27, s[4:7], s37 offen', f's_add_u32 s37, s37, {56*128}']); q.issue('touch')
            if touch and t == 29:
                dm.append([f's_mov_b32 s4, s{P_WO}', f's_mov_b32 s5, s{P_WO+1}', f's_mov_b32 s6, {D*D*2}', 'v_lshlrev_b32 v27, 7, v30',
                           f'buffer_load_dword a{CSL}, v27, s[4:7], s61 offen']); q.issue('touch')
            ex = []
            if t >= TW and extra:
                k = (len(extra) + NSTEP - 1 - t) // (NSTEP - t)
                ex = extra[:k]; extra = extra[k:]
            if early and 2 <= t <= 6:
                k = (len(early) + 6 - t) // (7 - t)
                ex = early[:k]; early = early[k:]
            if opts.get('nodma') and 8 <= t < 21: dm = []
            if opts.get('noread'): rd = []
            if opts.get('nobar'): bar = bar[:1]
            step = build_step(ms, needs, 16, pre, bar, rd, dm, ex, nb=(3 if s == 1 else 1))
            if L == 0 and t < 2:
                l1 = m.lab('cq'); le = m.lab('cqe')
                step += ['s_cmp_lg_u32 s28, 0', f's_cbranch_scc1 {l1}']
                for wm in range(2):
                    for i in range(3):
                        d = CSP + 4*i; b = 3*wm + i
                        step.append(f'v_mfma_f32_16x16x32_bf16 a[{d}:{d+3}], a[{ONES}:{ONES+3}], v[{wfrag(p,b)}:{wfrag(p,b)+3}], ' + ('0' if t == 0 else f'a[{d}:{d+3}]'))
                    if wm == 0: step += [f's_branch {le}', f'{l1}:']
                step += [f'{le}:']
            if L == 0 and t == 6:
                l1 = m.lab('cw'); le = m.lab('cwe')
                A0 = V_RAW + 16; C0 = V_RAW + 24
                step += ['s_mov_b32 exec_lo, 0x11111111', 's_mov_b32 exec_hi, 0x11111111']
                for r in range(2): step.append(f'buffer_store_dwordx2 v[{A0+2*r}:{A0+2*r+1}], v17, s[24:27], s48 offen offset:{r*16} sc1')
                step += ['s_mov_b64 exec, 0xffff', 's_cmp_lg_u32 s28, 0', f's_cbranch_scc1 {l1}']
                for wm in range(2):
                    for i in range(3):
                        b = 3*wm + i
                        step.append(f'buffer_store_dword v{C0+4+i}, v16, s[24:27], s{[62,63,55][b//2]} offen offset:{(b%2)*256} sc1')
                    if wm == 0: step += [f's_branch {le}', f'{l1}:']
                step += [f'{le}:', 's_mov_b64 exec, -1']
                for i in range(5): q.issue('hand')
            B += step
        bodies.append(B)
    assert not flat and not extra and not small and not early and not sent, (len(flat), len(extra), len(small))
    if opts.get('lst'):
        cuts = opts['lst']
        prev = 0
        for c in cuts + [NBODY]:
            e.ext(loopify(bodies[prev:c], m.lab('p1L'), 38)); prev = c
            if c < NBODY:
                sv = list(q.q); e('s_waitcnt lgkmcnt(0)'); m.stamp(f'p1 b{c}'); q.q = sv
    else:
        e.ext(loopify(bodies, m.lab('p1L'), 38))
    for b in range(6):
        for tb in range(4):
            a = acc(b, tb)
            e(f'v_mfma_f32_16x16x32_bf16 v[{a}:{a+3}], a[{CSA+4*b}:{CSA+4*b+3}], a[{NMB+4*tb}:{NMB+4*tb+3}], v[{a}:{a+3}]')
    e('s_barrier')
    m.stamp('p1 epi')
    e(f's_mov_b32 s44, {f2u(LOG2E):#x}')
    e(f's_mov_b32 s45, {f2u(LOG2E):#x}')
    def bc(r): return (f'v[{r}:{r+1}]', 0) if r % 2 == 0 else (f'v[{r-1}:{r}]', 1)
    for i in range(4): e(f'v_mov_b32 v{24+i}, 0x3f803f80')
    PB = 128; PP = 144; MX = 176; EP = 192; PK = 208
    def feat(mi, part=3):
      e = m.e
      if part & 1:
        for tb in range(4):
            ar, sl = bc(V_A + tb)
            for db in range(2):
                a = acc(2*mi + db, tb)
                for h in range(2):
                    e(f'v_pk_mul_f32 v[{a+2*h}:{a+2*h+1}], v[{a+2*h}:{a+2*h+1}], {ar} op_sel:[0,{sl}] op_sel_hi:[1,{sl}]')
        for tb in range(4):
            for db in range(2):
                a = acc(2*mi + db, tb)
                for h in range(2):
                    e(f'v_cvt_pk_bf16_f32 v{PB+tb*4+db*2+h}, v{a+2*h}, v{a+2*h+1}')
        for tb in range(4):
            for fb in range(2):
                p = PP + tb*8 + fb*4
                e(f'v_mfma_f32_16x16x32_bf16 v[{p}:{p+3}], v[{V_PHI+fb*4}:{V_PHI+fb*4+3}], v[{PB+tb*4}:{PB+tb*4+3}], 0')
        for tb in range(4):
            p = PP + tb*8; mx = MX + 2*tb
            e(f'v_max3_f32 v{mx}, v{p}, v{p+1}, v{p+2}')
            e(f'v_max3_f32 v{mx+1}, -v{p}, -v{p+1}, -v{p+2}')
        for k in (3, 5):
            for tb in range(4):
                p = PP + tb*8; mx = MX + 2*tb
                e(f'v_max3_f32 v{mx}, v{mx}, v{p+k}, v{p+k+1}')
                e(f'v_max3_f32 v{mx+1}, v{mx+1}, -v{p+k}, -v{p+k+1}')
        for tb in range(4):
            p = PP + tb*8; mx = MX + 2*tb
            e(f'v_max_f32 v{mx}, v{mx}, v{p+7}')
            e(f'v_max_f32_e64 v{mx+1}, v{mx+1}, -v{p+7}')
        for tb in range(4): e(f'v_permlane32_swap_b32 v{MX+2*tb}, v{MX+2*tb+1}')
        for tb in range(4): e(f'v_max_f32 v{MX+2*tb}, v{MX+2*tb}, v{MX+2*tb+1}')
        for pr in range(2): e(f'v_permlane16_swap_b32 v{MX+4*pr}, v{MX+4*pr+2}')
        for pr in range(2): e(f'v_max_f32 v{MX+4*pr}, v{MX+4*pr}, v{MX+4*pr+2}')
        for pr in range(2): e(f'v_mul_f32 v{MX+4*pr}, s44, v{MX+4*pr}')
        for pr in range(2): e(f'v_mov_b32 v{MX+4*pr+2}, v{MX+4*pr}')
        for pr in range(2): e(f'v_permlane16_swap_b32 v{MX+4*pr}, v{MX+4*pr+2}')
        for tb in range(4): e(f'v_mov_b32 v{MX+2*tb+1}, v{MX+2*tb}')
        for tb in range(4): e(f'v_permlane32_swap_b32 v{MX+2*tb}, v{MX+2*tb+1}')
      if part & 2:
        for tb in range(4):
            p = PP + tb*8; mx = MX + 2*tb
            for i in range(4):
                e(f'v_pk_fma_f32 v[{EP+2*i}:{EP+2*i+1}], v[{p+2*i}:{p+2*i+1}], s[44:45], v[{mx}:{mx+1}] op_sel:[0,0,0] op_sel_hi:[1,1,0] neg_lo:[0,0,1] neg_hi:[0,0,1]')
            for i in range(4):
                e(f'v_pk_fma_f32 v[{EP+8+2*i}:{EP+8+2*i+1}], v[{p+2*i}:{p+2*i+1}], s[44:45], v[{mx}:{mx+1}] op_sel:[0,0,1] op_sel_hi:[1,1,1] neg_lo:[1,0,1] neg_hi:[1,0,1]')
            for i in range(16): e(f'v_exp_f32 v{EP+i}, v{EP+i}')
            for i in range(8): e(f'v_cvt_pk_bf16_f32 v{PK+tb*8+i}, v{EP+2*i}, v{EP+2*i+1}')
    feat(1)
    SS = 144
    for tb in range(4):
        for sg in range(2):
            r = SS + (tb*2+sg)*4
            e(f'v_mfma_f32_16x16x32_bf16 v[{r}:{r+3}], v[24:27], v[{PK+tb*8+sg*4}:{PK+tb*8+sg*4+3}], 0')
    for tb in range(4):
        for sg in range(2):
            for fb in range(2):
                r = PK + tb*8 + sg*4 + fb*2
                e(f'ds_write_b64 v{V_LW}, v[{r}:{r+1}] offset:{tb*16*ROWB + sg*64 + fb*32}')
    for tb in range(4):
        for sg in range(2):
            r = SS + (tb*2+sg)*4
            e(f'v_rcp_f32 v{r}, v{r}')
    for tb in range(4):
        for sg in range(2):
            r = SS + (tb*2+sg)*4
            e(f'v_mul_f32 v{r+2}, v{r}, v{V_A+tb}')
            e(f'v_cvt_pk_bf16_f32 v{r}, v{r}, 0')
            e(f'v_mov_b32 v{r+1}, 0')
    for tb in range(4):
        for sg in range(2):
            r = SS + (tb*2+sg)*4
            t = 176 + sg*8
            for db in range(2):
                a = acc(4 + db, tb)
                for h in range(2):
                    e(f'v_pk_mul_f32 v[{t+db*4+2*h}:{t+db*4+2*h+1}], v[{a+2*h}:{a+2*h+1}], v[{r+2}:{r+3}] op_sel:[0,0] op_sel_hi:[1,0]')
            o = 192 + (tb % 2) * 8 + sg * 4
            for i in range(4): e(f'v_cvt_pk_bf16_f32 v{o+i}, v{t+2*i}, v{t+2*i+1}')
            for db in range(2):
                e(f'ds_write_b64 v{V_LW}, v[{o+2*db}:{o+2*db+1}] offset:{tb*16*ROWB + 128 + sg*64 + db*32}')
            e(f'ds_write_b64 v{V_LW}, v[{r}:{r+1}] offset:{tb*16*ROWB + 256 + sg*32}')
    e('s_waitcnt lgkmcnt(0)')
    e('s_barrier')
    e(f's_lshl_b32 s18, s28, 6')
    e(f'v_add_u32 v28, s18, v{V_LR}')
    e(f's_lshl_b32 s18, s28, 5')
    e(f'v_add_u32 v29, s18, v{V_LR}')
    FA = 128
    for ks in range(4):
        f = FA + ks * 20
        for h in range(2):
            ro = (ks*32 + h*16) * ROWB
            for fb in range(2): e(f'ds_read_b64_tr_b16 v[{f+fb*4+2*h}:{f+fb*4+2*h+1}], v28 offset:{ro + fb*32}')
            for db in range(2): e(f'ds_read_b64_tr_b16 v[{f+8+db*4+2*h}:{f+8+db*4+2*h+1}], v28 offset:{ro + 128 + db*32}')
            e(f'ds_read_b64_tr_b16 v[{f+16+2*h}:{f+16+2*h+1}], v29 offset:{ro + 256}')
    KV = acc(2, 0)
    for ks in range(4):
        f = FA + ks * 20
        e(f's_waitcnt lgkmcnt({min(15, (3-ks)*10)})')
        for fb in range(2):
            for bk in range(3):
                d = KV + (fb*3+bk)*4
                e(f'v_mfma_f32_16x16x32_bf16 v[{d}:{d+3}], v[{f+fb*4}:{f+fb*4+3}], v[{f+8+bk*4}:{f+8+bk*4+3}], ' + ('0' if ks == 0 else f'v[{d}:{d+3}]'))
    for fb in range(2):
        for db in range(2):
            d = KV + (fb*3+db)*4
            e(f'buffer_store_dwordx4 v[{d}:{d+3}], v{V_KV}, s[24:27], 0 offen offset:{(fb*2+db)*1024} sc1')
    e('s_mov_b32 exec_lo, 0x00010001')
    e('s_mov_b32 exec_hi, 0x00010001')
    for fb in range(2):
        d = KV + (fb*3+2)*4
        e(f'buffer_store_dwordx4 v[{d}:{d+3}], v{V_KZ}, s[24:27], 0 offen offset:{fb*64} sc1')
    e('s_mov_b64 exec, -1')
    feat(0, 1)
    m.publish(L, E_A1, f's_mov_b32 s18, s{S_CI}\ns_mov_b32 s19, s{S_MT}')
    m.stamp('p1 pubA1')
    pre = Pre(m, next_pre)
    pre.emit_setup()
    keep = m.e; cap = Asm(); m.e = cap; e = cap
    feat(0, 2)
    m.e = keep; e = keep
    pre.weave(cap.L, 8)
    m.stamp('p1 featq')
    m.wait(L, E_A1, f's_mov_b32 s18, s{S_CI}', 16)
    m.stamp('p1 gotA1')
    skip = m.lab('hop'); w1 = m.lab('hopz')
    R0 = 64
    e(f'''
    s_cmp_gt_u32 s20, 1
    s_cbranch_scc1 {skip}
    s_cmp_eq_u32 s20, 1
    s_cbranch_scc1 {w1}
    s_lshr_b32 s18, s{S_MT}, 3
    s_lshl_b32 s19, s{S_CI}, 1
    s_add_u32 s18, s18, s19            ; head
    s_mul_i32 s19, s18, {KVP_HEAD}
    s_add_u32 s19, s19, {reg(L, R_KVP)}
    s_and_b32 s60, s{S_MT}, 7
    s_lshl_b32 s61, s60, 10
    s_add_u32 s19, s19, s61
    v_lshlrev_b32 v1, 4, v2
    ''')
    for i in range(16):
        e(f'buffer_load_dwordx4 v[{R0+4*i}:{R0+4*i+3}], v1, s[24:27], s19 offen sc1')
        if i < 15: e(f's_add_u32 s19, s19, {32*KVP_HEAD}')
    def tree():
        for i in range(1, 16):
            e(f's_waitcnt vmcnt({15-i})')
            e(f'v_pk_add_f32 v[{R0}:{R0+1}], v[{R0}:{R0+1}], v[{R0+4*i}:{R0+4*i+1}]')
            e(f'v_pk_add_f32 v[{R0+2}:{R0+3}], v[{R0+2}:{R0+3}], v[{R0+4*i+2}:{R0+4*i+3}]')
        e(f'v_cvt_pk_bf16_f32 v{R0+4}, v{R0}, v{R0+1}')
        e(f'v_cvt_pk_bf16_f32 v{R0+5}, v{R0+2}, v{R0+3}')
    tree()
    e(f'buffer_store_dwordx2 v[{R0+4}:{R0+5}], v1, s[24:27], s92 offen sc1')
    e(f'''
    s_branch {skip}
    {w1}:
    s_cmp_gt_u32 s{S_MT}, 7
    s_cbranch_scc1 {skip}
    s_lshr_b32 s18, s{S_MT}, 2
    s_lshl_b32 s19, s{S_CI}, 1
    s_add_u32 s18, s18, s19            ; head
    s_mul_i32 s19, s18, {KVP_HEAD}
    s_add_u32 s19, s19, {reg(L, R_KVP) + 8192}
    s_and_b32 s60, s{S_MT}, 3
    s_lshl_b32 s61, s60, 6
    s_add_u32 s19, s19, s61
    v_lshlrev_b32 v1, 4, v31
    ''')
    for i in range(16):
        e(f'buffer_load_dwordx4 v[{R0+4*i}:{R0+4*i+3}], v1, s[24:27], s19 offen sc1')
        if i < 15: e(f's_add_u32 s19, s19, {32*KVP_HEAD}')
    e(f'''
    v_and_b32 v3, 3, v2
    v_cmp_eq_u32 vcc, 0, v3
    v_cmp_eq_u32 s[60:61], 1, v3
    v_cndmask_b32 v3, 0, v24, s[60:61]
    v_lshlrev_b32 v1, 4, v2
    ''')
    tree()
    e(f'v_cndmask_b32 v{R0+4}, v3, v{R0+4}, vcc')
    e(f'v_cndmask_b32 v{R0+5}, v3, v{R0+5}, vcc')
    e(f'buffer_store_dwordx2 v[{R0+4}:{R0+5}], v1, s[24:27], s92 offen sc1')
    e(f'{skip}:')
    m.stamp('p1 hop1')
    KA = 32
    pl = m.lab('kpl'); ok = m.lab('kok')
    e(f'''
    s_mul_i32 s18, s54, 6144
    s_add_u32 s18, s18, {reg(L, R_KVR)}
    s_add_u32 s19, s18, 4096
    v_lshlrev_b32 v1, 4, v2
    s_mov_b32 s44, {f2u(1e-6):#x}
    s_mov_b32 s39, {1 << 16}
    {pl}:
    ''')
    for i in range(6):
        e(f'buffer_load_dwordx4 v[{KA+4*i}:{KA+4*i+3}], v1, s[24:27], s{18 + i//4} offen offset:{(i%4)*1024} sc1')
    for tb in range(4): e(f's_mov_b32 s{60+tb}, {tb*16*2048}')
    e('s_waitcnt vmcnt(0)'); q.clear()
    e(f'v_max3_u32 v3, v{KA}, v{KA+1}, v{KA+2}')
    for k in range(KA+3, KA+23, 2): e(f'v_max3_u32 v3, v3, v{k}, v{k+1}')
    e(f'''
    v_max_u32 v3, v3, v{KA+23}
    v_cmp_eq_u32 vcc, -1, v3
    s_nop 1
    s_cmp_eq_u64 vcc, 0
    s_cbranch_scc1 {ok}
    s_sub_u32 s39, s39, 1
    s_cmp_lg_u32 s39, 0
    s_cbranch_scc1 {pl}
    {ok}:
    ''')
    m.stamp('p1 gotkv')
    o_compute(e, range(4), KA, lambda tb: PK + tb*8, lambda tb: 64 + tb*24, lambda tb: 160 + tb*4)
    for tb in range(4):
        e(f'buffer_store_dwordx4 v[{160+tb*4}:{163+tb*4}], v{V_OS}, s[24:27], s{60+tb} offen sc1')
    m.publish(L, E_B, f's_mov_b32 s18, s{S_MT}\ns_mov_b32 s19, s{S_CI}')
    m.stamp('p1 pubB')

def o_compute(e, tbs, KA, EB, NN, OUT):
    for tb in tbs:
        for sg in range(2):
            for bk in range(3):
                d = NN(tb) + (sg*3+bk)*4; a = KA + (sg*3+bk)*4; b = EB(tb) + sg*4
                e(f'v_mfma_f32_16x16x32_bf16 v[{d}:{d+3}], v[{a}:{a+3}], v[{b}:{b+3}], 0')
    for tb in tbs:
        for sg in range(2):
            z = NN(tb) + (sg*3+2)*4
            e(f'v_rcp_f32 v{z+1}, v{z+1}')
    for tb in tbs:
        zp = NN(tb) + 8; zm = NN(tb) + 20
        e(f'v_fma_f32 v{zp+2}, v{zp}, v{zp+1}, s44')
        e(f'v_fma_f32 v{zp+2}, v{zm}, v{zm+1}, v{zp+2}')
    for tb in tbs:
        zp = NN(tb) + 8
        e(f'v_rcp_f32 v{zp+2}, v{zp+2}')
    for tb in tbs:
        zp = NN(tb) + 8; zm = NN(tb) + 20
        e(f'v_mul_f32 v{zp}, v{zp+1}, v{zp+2}')
        e(f'v_mul_f32 v{zm}, v{zm+1}, v{zp+2}')
    for tb in tbs:
        n = NN(tb); zp = n + 8; zm = n + 20
        for i in range(4):
            e(f'v_pk_mul_f32 v[{n+2*i}:{n+2*i+1}], v[{n+2*i}:{n+2*i+1}], v[{zp}:{zp+1}] op_sel:[0,0] op_sel_hi:[1,0]')
        for i in range(4):
            e(f'v_pk_fma_f32 v[{n+2*i}:{n+2*i+1}], v[{n+12+2*i}:{n+12+2*i+1}], v[{zm}:{zm+1}], v[{n+2*i}:{n+2*i+1}] op_sel:[0,0,0] op_sel_hi:[1,0,1]')
    for tb in tbs:
        n = NN(tb); o = OUT(tb)
        for i in range(4): e(f'v_cvt_pk_bf16_f32 v{o+i}, v{n+2*i}, v{n+2*i+1}')
    for tb in tbs:
        o = OUT(tb)
        e(f'v_permlane16_swap_b32 v{o}, v{o+2}')
        e(f'v_permlane16_swap_b32 v{o+1}, v{o+3}')
```

```python
from asmlib import *
from common import *
from mega import *

XSLOT = 32768; NXS = 3
WREG = 7680; WHALF = 2 * WREG; NWS = 4; WBASE = XSLOT * NXS
LDW = F * 2; NB = 16; NSTEP = 32
WL = [0, 896, 1920, 2816]
def acc(b, tb): return 32 + (b * 4 + tb) * 4
def xfrag(p, tb): return p * 72 + tb * 4
def wfrag(p, b): return p * 72 + 16 + b * 4
CSA = 144; NMB = 200; RAW = 216; ONES = 248; CSP = 216
V_XOFF = 4; V_WOFF = 8; V_XRD = 12; V_WRD = 14; V_ST = 15; V_K = 16

def dma_x(half):
    g = []
    for j in range(4):
        ins = [f'buffer_load_dwordx4 v{V_XOFF+j//2}, s[8:11], s{30+half} offen offset:{j*1024} sc1 lds']
        if j == 0: ins = [f's_add_u32 m0, s34, s{40 if half == 0 else 52}', 's_nop 0'] + ins
        if half == 1 and j == 3: ins += ['s_add_u32 s30, s30, 2048', 's_and_b32 s30, s30, 0x7fff']
        if half == 1 and j == 3: ins += [f's_add_u32 s34, s34, {XSLOT}', f's_cmp_eq_u32 s34, {XSLOT*NXS}', 's_cselect_b32 s34, 0, s34']
        if half == 1 and j == 3: ins += ['s_add_u32 s31, s30, 65536']
        g.append(ins)
    return g
def dma_w(aux=''):
    g = []
    for j in range(4):
        ins = [f'buffer_load_dwordx4 v{V_WOFF+j}, s[12:15], s32 offen offset:{WL[j]} {aux} lds']
        if j == 0: ins = ['s_add_u32 m0, s35, s41', 's_nop 0'] + ins
        if j == 3: ins += [f's_add_u32 s35, s35, {WHALF}', f's_cmp_eq_u32 s35, {WHALF*NWS}', 's_cselect_b32 s35, 0, s35']
        if j == 3: ins += [f's_add_u32 s32, s32, {32*LDW}', f's_cmp_eq_u32 s32, {D*LDW}', 's_cselect_b32 s32, 0, s32']
        g.append(ins)
    return g

def pre_w(m, layer, nh=4):
    e = m.e; opts = m.opts.get('p3', {})
    e(f'''
    s_cmp_lt_u32 s20, 2
    s_cselect_b32 s12, s{P_GATE}, s{P_UP}
    s_cselect_b32 s13, s{P_GATE+1}, s{P_UP+1}
    s_mov_b32 s14, {D*F*2}
    v_mul_u32_u24 v1, 4682, v2
    v_lshrrev_b32 v1, 16, v1
    v_mul_u32_u24 v3, 14, v1
    v_sub_u32 v3, v2, v3
    v_lshlrev_b32 v3, 4, v3
    s_and_b32 s18, s20, 1
    s_lshl_b32 s18, s18, 4
    v_add_u32 v1, s18, v1
    v_mul_u32_u24 v1, {LDW}, v1
    v_add_u32 v1, v1, v3
    s_mul_i32 s19, s{S_NT2}, 224
    v_add_u32 v{V_WOFF}, s19, v1
    ''')
    for j in range(1, 4): e(f'v_add_u32 v{V_WOFF+j}, {j*4*LDW - WL[j]}, v{V_WOFF}')
    rot = 1 if (layer == 0 or opts.get('rot_all')) else 0
    e(f'''
    s_mul_i32 s32, s{S_MT2}, {128*LDW*rot}       ; k rotation
    s_mov_b32 s35, 0
    s_lshr_b32 s18, s20, 1
    s_mul_i32 s41, s18, {WREG}
    s_and_b32 s18, s20, 1
    s_mul_i32 s18, s18, 3840
    s_add_u32 s41, s41, s18
    s_add_u32 s41, s41, {WBASE}
    ''')
    for h in range(nh):
        for ins in dma_w(opts.get('aux0', '') if layer == 0 else ''): e.ext(ins); m.q.issue(f'W{h}')
    m.p3_w = nh

def run(m, layer, next_pre):
    e = m.e; q = m.q; opts = m.opts.get('p3', {}); L = layer
    rot = 1 if (layer == 0 or opts.get('rot_all')) else 0
    srd(e, 8, ws_off=reg(L, R_X1) - BLK_BIAS, size=S*D*2 + BLK_BIAS)
    e(f'''
    s_lshl_b32 s23, s{S_MT2}, 8
    s_lshl_b32 s18, s20, 6
    s_add_u32 s23, s23, s18
    s_mul_i32 s22, s{S_NT2}, 112
    ''')
    x_dma_offsets(e, V_XOFF, 23, 2048, blocked=True)
    e(f'''
    s_mul_i32 s30, s{S_MT2}, {4096*rot}
    s_add_u32 s31, s30, 65536
    s_mov_b32 s34, 0
    s_lshl_b32 s40, s20, 13
    s_add_u32 s52, s40, 4096
    s_mul_i32 s18, s23, {LDW}
    s_mul_i32 s19, s{S_NT2}, 3584
    s_add_u32 s18, s18, s19
    ''')
    frag_store_addr(e, V_ST, 18)
    e(f'''
    s_lshl_b32 s18, s23, 7
    s_add_u32 s60, s18, {reg(L, R_STF)}
    v_lshlrev_b32 v29, 11, v31
    v_lshl_add_u32 v29, v30, 4, v29
    v_add_u32 v1, s22, v30
    v_lshlrev_b32 v28, 4, v1
    v_and_b32 v1, 1, v31
    v_mul_u32_u24 v1, {CS_PLANE}, v1
    v_add_u32 v28, v28, v1
    s_mov_b32 s62, {WS_CS + 3072*16}
    s_mov_b32 s63, {WS_CS + (3072+F)*16}
    ''')
    x_read_addr_f(e, V_XRD, 40)
    e(f'''
    v_mul_u32_u24 v1, 1920, v31
    v_bfe_u32 v3, v2, 2, 2
    v_mul_u32_u24 v3, 224, v3
    v_add_u32 v1, v1, v3
    v_and_b32 v3, 3, v2
    v_lshl_add_u32 v1, v3, 3, v1
    v_add_u32 v{V_WRD}, {WBASE}, v1
    s_mov_b32 s36, 0
    s_mov_b32 s37, 0
    s_mov_b32 s42, 0
    s_mov_b32 s48, {WHALF}
    s_mov_b32 s49, {(-(NWS-1)*WHALF) & 0xffffffff:#x}
    s_mov_b32 s50, {XSLOT}
    s_mov_b32 s51, {(-(NXS-1)*XSLOT) & 0xffffffff:#x}
    ''')
    C1 = -2.0 * 0.7978845608028654 * 1.4426950408889634
    C2 = C1 * 0.044715
    e(f's_mov_b32 s44, {f2u(C1):#x}\ns_mov_b32 s45, {f2u(C2):#x}')
    docs = (L == 0)
    touch = (L == 0 and not opts.get('notouch'))
    if docs:
        e('v_mov_b32 v1, 0x3f803f80')
        for i in range(4): e(f'v_accvgpr_write_b32 a{ONES+i}, v1')
        e(f'''
        s_lshr_b32 s18, s{S_MT2}, 2
        s_mul_i32 s18, s18, {CS_PLANE}
        s_and_b32 s19, s{S_MT2}, 3
        s_lshl_b32 s19, s19, 2
        s_add_u32 s18, s18, s19
        s_add_u32 s54, s18, s62
        s_add_u32 s55, s18, s63
        v_add_u32 v1, s22, v30
        v_lshlrev_b32 v27, 4, v1
        ''')
    if touch:
        srd(e, 4, ptr=P_DOWN, size=F*D*2)
        e('s_mov_b32 s7, 0x00020000')
        e(f's_lshl_b32 s18, s2, 2\ns_add_u32 s18, s18, s20\ns_mul_i32 s33, s18, {56*128}\nv_lshlrev_b32 v26, 7, v31')
    m.stamp('p3 wait')
    m.wait(L, E_C, f's_lshl_b32 s18, s{S_MT2}, 1', 16, nshard=2)
    m.stamp('p3 go')
    pend = []
    for u in range(NB):
        pend.append(('X%d' % u, 'xa', 2*u - 1, 2*(u-3) + 1))
        pend.append(('X%d' % u, 'xb', 2*u - 1, 2*(u-3) + 1))
        for h in (2*u, 2*u + 1):
            if h >= m.p3_w: pend.append(('W%d' % h, 'w', h - 1, h - 4))
    mk = {'xa': lambda: dma_x(0), 'xb': lambda: dma_x(1), 'w': lambda: dma_w(opts.get('auxw', ''))}
    def take(step, maxg):
        out = []
        while len(out) < maxg:
            cand = None; seen = set()
            for g in pend:
                cls = g[1][0]
                if cls in seen: continue
                seen.add(cls)
                if g[3] <= step and (cand is None or g[2] < cand[2]): cand = g
            if cand is None: break
            pend.remove(cand); out.append(cand)
        return out
    ninit = sum(1 for g in pend if g[2] <= 0)
    for g in take(-1, ninit + 2):
        for ins in mk[g[1]](): e.ext(ins); q.issue(g[0])
    small = stats_loads(lambda o: f'a[{RAW+o}:{RAW+o+3}]', 29, 60)
    csl = [[f'buffer_load_dwordx4 a[{CSA+4*b}:{CSA+4*b+3}], v28, s[24:27], s{62 + b//7} offen offset:{(b%7)*256} sc1'] for b in range(14)]
    def fin():
        Lx = [f'v_accvgpr_read_b32 v{4+i}, a{RAW+i}' for i in range(4)]
        for k in range(1, 8):
            Lx += [f'v_accvgpr_read_b32 v{8+i}, a{RAW+4*k+i}' for i in range(4)]
            Lx += [f'v_add_f32 v{4+i}, v{4+i}, v{8+i}' for i in range(4)]
        Lx += ['v_add_f32 v4, v4, v6', 'v_add_f32 v5, v5, v7']
        st = stats_t(4, 24, 8, None)[30:]
        st += [f'v_rcp_f32 v{16+tb}, v{24+tb}' for tb in range(4)]
        st += [f'v_cndmask_b32 v{8+tb}, 0, v{8+tb}, vcc' for tb in range(4)]
        st += [f'v_mul_f32 v{20+tb}, v{16+tb}, v{16+tb}' for tb in range(4)]
        st += [f'v_mul_f32 v{24+tb}, v{24+tb}, v{24+tb}' for tb in range(4)]
        st += [f'v_mul_f32 v{20+tb}, v{20+tb}, v{16+tb}' for tb in range(4)]
        st += [f'v_mul_f32 v{16+tb}, s44, v{16+tb}' for tb in range(4)]
        st += [f'v_mul_f32 v{20+tb}, s45, v{20+tb}' for tb in range(4)]
        st += [f'v_accvgpr_write_b32 a{NMB+4*tb+i}, v{8+tb}' for tb in range(4) for i in range(4)]
        return Lx, st
    def mfma(b, tb, p, c=None):
        a = acc(b, tb)
        cc = f'v[{a}:{a+3}]' if c is None else c
        return f'v_mfma_f32_16x16x32_bf16 v[{a}:{a+3}], a[{wfrag(p,b)}:{wfrag(p,b)+3}], a[{xfrag(p,tb)}:{xfrag(p,tb)+3}], {cc}'
    def reads(p, s):
        x = lambda tb: f'ds_read_b128 a[{xfrag(p,tb)}:{xfrag(p,tb)+3}], v{V_XRD+s} offset:{tb*2048}'
        def w(b, h):
            off = (b // 7) * WREG + 4 * h * 224 + (b % 7) * 32
            return f'ds_read_b64_tr_b16 a[{wfrag(p,b)+2*h}:{wfrag(p,b)+2*h+1}], v{V_WRD} offset:{off}'
        g = [x(0), w(0, 0), w(0, 1), x(1), x(2), x(3)]
        for b in range(1, 14): g += [w(b, 0), w(b, 1)]
        return g
    needs = [max(2 if tb == 0 else 2 + tb, 5 + 2*b if b else 0) for b in range(14) for tb in range(4)]
    n = q.wait_for({'X0', 'W0', 'W1'})
    e(f's_waitcnt vmcnt({n})')
    e('s_barrier')
    m.stamp('p3 main')
    e('v_cmp_gt_u32 vcc, 32, v2')
    e.ext(reads(0, 0))
    bodies = []
    for u in range(NB):
        B = []
        for s in range(2):
            t = 2 * u + s; p = s
            ms = [mfma(b, tb, p, '0' if t == 0 else None) for b in range(14) for tb in range(4)]
            last = (t == NSTEP - 1)
            rd = []; pre = []; bar = []
            if not last:
                pre = [f's_add_u32 s37, s37, {WHALF}', f's_cmp_eq_u32 s37, {WHALF*NWS}', 's_cselect_b32 s43, s49, s48',
                       's_cselect_b32 s37, 0, s37', f'v_add_u32 v{V_WRD}, s43, v{V_WRD}']
                if s == 1:
                    pre += [f's_add_u32 s36, s36, {XSLOT}', f's_cmp_eq_u32 s36, {XSLOT*NXS}', 's_cselect_b32 s42, s51, s50',
                            's_cselect_b32 s36, 0, s36', f'v_add_u32 v{V_XRD}, s42, v{V_XRD}']
                else:
                    pre += [f'v_add_u32 v{V_XRD+1}, s42, v{V_XRD+1}']
                rd = reads(p ^ 1, s ^ 1)
            if t > 0 and not last:
                tags = {f'W{t+1}'} | ({f'X{u+1}'} if s == 1 else set())
                if t == NSTEP - 2: tags |= {'small', 'csl'}
                if t == 29: tags |= {'flg'}
                n = q.wait_for(tags)
                bar = [f's_waitcnt vmcnt({n})', 's_barrier']
            dm = []
            for g in take(t, 3 if t < 3 else 2):
                for ins in mk[g[1]](): dm.append(ins); q.issue(g[0])
            if touch and s == 0 and 2 <= u < 16:
                dm.append([f'buffer_load_dword a{ONES+4}, v26, s[4:7], s33 offen', 's_add_u32 s33, s33, 512']); q.issue('touch')
            if t == 28:
                for ins in small: dm.append(ins); q.issue('small')
            if docs and t == 27:
                dm.append([f's_lshl_b32 s53, s{S_NT2}, 8', f's_add_u32 s53, s53, {flag_off(0, E_CS, 0)}', 'v_and_b32 v24, 7, v2', 'v_lshlrev_b32 v24, 2, v24']
                          + m.soft_load(53, 24, 25)); q.issue('flg')
            if t == 29:
                if docs: bar += m.soft_check(53, 24, 25)
                for ins in csl: dm.append(ins); q.issue('csl')
            ex = []
            if t == NSTEP - 2: ex = fin()[0]
            if t == NSTEP - 1: ex = fin()[1]
            if docs and t == 4:
                ex = []
                for i in range(4):
                    ex += [f'v_accvgpr_read_b32 v{16+i}, a{CSP+4*i}']
                for i in range(4):
                    ex += [f'v_cvt_pk_bf16_f32 v{20+i}, v{16+i}, v{16+i}']
                for i in range(4):
                    ex += [f'v_and_b32 v{20+i}, 0xffff0000, v{20+i}']
                for i in range(4):
                    ex += [f'v_sub_f32 v{20+i}, v{16+i}, v{20+i}']
                for i in range(4):
                    ex += [f'v_cvt_pk_bf16_f32 v{20+i}, v{16+i}, v{20+i}']
            step = build_step(ms, needs, 32, pre, bar, rd, dm, ex, nb=4)
            if docs and t < 4:
                ls = [m.lab('cs') for _ in range(4)]; le = m.lab('cse')
                for w in range(4):
                    if w < 3: step += [f's_cmp_lg_u32 s20, {w}', f's_cbranch_scc1 {ls[w+1]}']
                    for i in range(4):
                        b = w + 4*i
                        if b < 14:
                            d = CSP + 4*i
                            step.append(f'v_mfma_f32_16x16x32_bf16 a[{d}:{d+3}], a[{ONES}:{ONES+3}], a[{wfrag(p,b)}:{wfrag(p,b)+3}], ' + ('0' if t == 0 else f'a[{d}:{d+3}]'))
                    if w < 3: step += [f's_branch {le}', f'{ls[w+1]}:']
                step += [f'{le}:']
                if t == 3: step += ['s_nop 7']
            if docs and t == 4:
                ls = [m.lab('cw') for _ in range(4)]; le = m.lab('cwe')
                step += ['s_mov_b64 exec, 0xffff']
                for w in range(4):
                    if w < 3: step += [f's_cmp_lg_u32 s20, {w}', f's_cbranch_scc1 {ls[w+1]}']
                    for i in range(4):
                        b = min(w + 4*i, 13) if w + 4*i >= 14 else w + 4*i
                        src = 20 + i if w + 4*i < 14 else None
                        if src is None:
                            b = w + 4*(i-1); src = 20 + i - 1
                        step.append(f'buffer_store_dword v{src}, v27, s[24:27], s{54 + b//7} offen offset:{(b%7)*256} sc1')
                    if w < 3: step += [f's_branch {le}', f'{ls[w+1]}:']
                step += [f'{le}:', 's_mov_b64 exec, -1']
                for i in range(4): q.issue('csw')
            if docs and t == 9:
                assert 'csw' not in q.q
                step += m.signal(0, E_CS, f's_mov_b32 s18, s{S_NT2}\ns_mov_b32 s19, s{S_MT2}')
            B += step
        bodies.append(B)
    assert not pend
    e.ext(loopify(bodies, m.lab('p3L'), 38))
    e('s_barrier')
    pre = Pre(m, next_pre)
    pre.emit_setup()
    corr = []
    for b in range(14):
        for tb in range(4):
            a = acc(b, tb)
            corr.append(f'v_mfma_f32_16x16x32_bf16 v[{a}:{a+3}], a[{CSA+4*b}:{CSA+4*b+3}], a[{NMB+4*tb}:{NMB+4*tb+3}], v[{a}:{a+3}]')
    if opts.get('late_pre'): e.ext(corr)
    else: pre.weave(corr, opts.get('weave', 3))
    m.stamp('p3 epi')
    srd(e, 56, ws_off=reg(L, R_H), size=S*F*2)
    for tb in range(4): e(f's_mov_b32 s{60+tb}, {tb*16*LDW}')
    e(f'v_and_b32 v1, 1, v31')
    e(f'v_mul_u32_u24 v1, {16*LDW - 512}, v1')
    e(f'v_add_u32 v14, v1, v{V_ST}')
    TP = [4, 6, 12, 28]
    def ep_pair(t1, t2, voff, soff, imm):
        items = []
        for (b, tb) in (t1, t2):
            for h in range(2):
                items.append((acc(b, tb) + 2*h, acc(b + 7, tb) + 2*h, V_K + tb))
        P = lambda i: f'v[{items[i][0]}:{items[i][0]+1}]'
        U = lambda i: f'v[{items[i][1]}:{items[i][1]+1}]'
        Tm = lambda i: f'v[{TP[i]}:{TP[i]+1}]'
        def bc(r): return (f'v[{r}:{r+1}]', 0) if r % 2 == 0 else (f'v[{r-1}:{r}]', 1)
        for i in range(4): e(f'v_pk_mul_f32 {Tm(i)}, {P(i)}, {P(i)}')
        for i in range(4):
            k = items[i][2]; (k2, s2), (k1, s1) = bc(k + 4), bc(k)
            e(f'v_pk_fma_f32 {Tm(i)}, {Tm(i)}, {k2}, {k1} op_sel:[0,{s2},{s1}] op_sel_hi:[1,{s2},{s1}]')
        for i in range(4): e(f'v_pk_mul_f32 {Tm(i)}, {Tm(i)}, {P(i)}')
        for i in range(8): e(f'v_exp_f32 v{TP[i//2]+i%2}, v{TP[i//2]+i%2}')
        for i in range(4): e(f'v_pk_mul_f32 {U(i)}, {U(i)}, {P(i)}')
        for i in range(4):
            k3, s3 = bc(items[i][2] + 8)
            e(f'v_pk_fma_f32 {Tm(i)}, {Tm(i)}, {k3}, {k3} op_sel:[0,{s3},{s3}] op_sel_hi:[1,{s3},{s3}]')
        for i in range(8): e(f'v_rcp_f32 v{TP[i//2]+i%2}, v{TP[i//2]+i%2}')
        for i in range(4): e(f'v_pk_mul_f32 {U(i)}, {U(i)}, {Tm(i)}')
        r = acc(*t1)
        for i in range(4): e(f'v_cvt_pk_bf16_f32 v{r+i}, v{items[i][1]}, v{items[i][1]+1}')
        e(f'v_permlane16_swap_b32 v{r}, v{r+2}')
        e(f'v_permlane16_swap_b32 v{r+1}, v{r+3}')
        e(f'buffer_store_dwordx4 v[{r}:{r+3}], v{voff}, s[56:59], s{soff} offen offset:{imm} sc1')
    for tb in range(4):
        for bp in range(3):
            ep_pair((2*bp, tb), (2*bp+1, tb), V_ST, 60 + tb, bp * 1024)
        if tb % 2 == 1:
            ep_pair((6, tb - 1), (6, tb), 14, 60 + tb - 1, 3072)
    m.stamp('p3 st')
    m.publish(L, E_D, f's_lshl_b32 s18, s{S_MT2}, 1\ns_add_u32 s18, s18, s{S_PAR}\ns_and_b32 s19, s{S_NT2}, 15')
    m.stamp('p3 pub')
    pre.weave([], 1)
```

```python
from asmlib import *
from common import *
from mega import *
import pd
from pd import acc, xfrag, wfrag, V_RES, V_TMP, V_XOFF, V_WOFF, V_XRD, V_WRD, V_ST, V_SST, V_EX, V_EXR, V_RO

XT = 16384; WG_ = 8192; STAGE = XT + 2 * WG_; NS = 5
KH = F // 2; NBODY = KH // 64; NSTEP = 2 * NBODY; LDA = F * 2

def dma_x():
    g = []
    for j in range(4):
        ins = [f'buffer_load_dwordx4 v{V_XOFF+j//2}, s[8:11], s30 offen offset:{j*1024} lds']
        if j == 0: ins = ['s_add_u32 m0, s34, s40', 's_nop 0'] + ins
        if j == 3: ins += [f's_add_u32 s34, s34, {STAGE}', f's_cmp_eq_u32 s34, {STAGE*NS}', 's_cselect_b32 s34, 0, s34']
        if j == 3: ins += ['s_add_u32 s30, s30, 2048']
        g.append(ins)
    return g
def dma_w():
    g = []
    for j in range(4):
        ins = [f'buffer_load_dwordx4 v{V_WOFF+j}, s[12:15], s32 offen offset:{j*1024} lds']
        if j == 0: ins = ['s_add_u32 m0, s35, s41', 's_nop 0'] + ins
        if j == 3: ins += [f's_add_u32 s35, s35, {STAGE}', f's_cmp_eq_u32 s35, {STAGE*NS}', 's_cselect_b32 s35, 0, s35']
        if j == 3: ins += [f's_add_u32 s32, s32, {64*2048}']
        g.append(ins)
    return g

def pre_w(m, ntiles=NS):
    e = m.e
    srd(e, 12, ptr=P_DOWN, size=F*D*2)
    e(f'''
    s_lshr_b32 s18, s20, 1
    s_lshl_b32 s18, s18, 5             ; k row 32*(w>>1)
    s_and_b32 s19, s{S_CI}, 7
    s_lshl_b32 s19, s19, 1
    s_and_b32 s32, s20, 1
    s_add_u32 s19, s19, s32
    s_lshl_b32 s19, s19, 7
    ''')
    w_dma_offsets(e, V_WOFF, 4, 18, 2048, 19)
    e(f'''
    s_lshl_b32 s41, s32, 13
    s_lshl_b32 s18, s18, 7
    s_add_u32 s41, s41, s18
    s_add_u32 s41, s41, {XT}
    s_mul_i32 s32, s{S_PAR}, {KH*2048}
    s_mov_b32 s35, 0
    ''')
    for u in range(ntiles):
        for ins in dma_w(): e.ext(ins); m.q.issue(f'p4T{u}')
    m.ps_w = ntiles

def run(m, L, res, out, st_off, wait_fn, pub_fn, next_pre, opts):
    e = m.e; q = m.q; tag = 'p4'
    srd(e, 8, ws_off=reg(L, R_H) - BLK_BIAS, size=S*LDA + BLK_BIAS)
    srd(e, 56, ws_off=res[1], size=S*D*2)
    e(f'''
    s_lshl_b32 s23, s{S_MT}, 7
    s_lshr_b32 s28, s20, 1           ; wm
    s_and_b32 s29, s20, 1            ; wn
    s_lshl_b32 s18, s20, 5
    s_add_u32 s33, s23, s18
    ''')
    x_dma_offsets(e, V_XOFF, 33, LDA, None, blocked=True)
    e(f'''
    s_mul_i32 s30, s{S_PAR}, {KH*32}
    s_mov_b32 s34, 0
    s_lshl_b32 s40, s20, 12
    s_and_b32 s54, s{S_CI}, 7
    s_lshl_b32 s54, s54, 1
    s_add_u32 s54, s54, s29
    s_lshl_b32 s18, s28, 6
    s_add_u32 s18, s18, s23
    s_lshl_b32 s19, s{S_PAR}, 5
    s_add_u32 s18, s18, s19
    ''')
    pd.tail_addr(e, True, out[0] == 'ws', 's54')
    e('s_lshl_b32 s18, s28, 13')
    x_read_addr_f(e, V_XRD, 18)
    e(f's_lshl_b32 s18, s29, 13\ns_add_u32 s18, s18, {XT}')
    w_read_addr(e, V_WRD, [0, 1, 2, 3], 18)
    e(f'''
    s_lshl_b32 s18, s2, 2
    s_add_u32 s18, s18, s20
    s_xor_b32 s19, s18, 4
    s_lshl_b32 s18, s18, 12
    s_add_u32 s18, s18, {reg(L, R_PX)}
    s_lshl_b32 s19, s19, 12
    s_add_u32 s19, s19, {reg(L, R_PX)}
    v_lshlrev_b32 v1, 4, v2
    v_add_u32 v{V_EX}, s18, v1
    v_add_u32 v{V_EXR}, s19, v1
    s_mov_b32 s55, 4096
    s_mov_b32 s36, 0
    s_mov_b32 s42, 0
    s_mov_b32 s50, {STAGE}
    s_mov_b32 s51, {(-(NS-1)*STAGE) & 0xffffffff:#x}
    ''')
    small = pd.res_loads(res)
    m.stamp(tag + ' wait')
    wait_fn()
    m.stamp(tag + ' go')
    flat = []
    for u in range(NBODY):
        al = 2*(u - NS) + 1
        flat += [(ins, f'{tag}T{u}', al) for ins in dma_x()]
        if u >= m.ps_w: flat += [(ins, f'{tag}T{u}', al) for ins in dma_w()]
    def take(step, n):
        o = []
        while flat and len(o) < n and flat[0][2] <= step: o.append(flat.pop(0))
        return o
    n0 = sum(1 for f in flat if int(f[1][3:]) < opts.get('n0', 3))
    for ins, tg, _ in take(-1, n0): e.ext(ins); q.issue(tg)
    def mfma(nb, tb, p, c=None):
        a = acc(nb, tb)
        cc = f'v[{a}:{a+3}]' if c is None else c
        return f'v_mfma_f32_16x16x32_bf16 v[{a}:{a+3}], v[{wfrag(p,nb)}:{wfrag(p,nb)+3}], v[{xfrag(p,tb)}:{xfrag(p,tb)+3}], {cc}'
    def reads(p, s):
        x = lambda tb: f'ds_read_b128 v[{xfrag(p,tb)}:{xfrag(p,tb)+3}], v{V_XRD+s} offset:{tb*2048}'
        w = lambda nb, h: f'ds_read_b64_tr_b16 v[{wfrag(p,nb)+2*h}:{wfrag(p,nb)+2*h+1}], v{V_WRD+nb} offset:{(32*s+4*h)*128}'
        g = [x(0), w(0, 0), w(0, 1), x(1), x(2), x(3)]
        for nb in range(1, 4): g += [w(nb, 0), w(nb, 1)]
        return g
    needs = [max(2 if tb == 0 else 2 + tb, 5 + 2*b if b else 0) for b in range(4) for tb in range(4)]
    n = q.wait_for({f'{tag}T0'})
    e(f's_waitcnt vmcnt({n})')
    e('s_barrier')
    m.stamp(tag + ' main')
    e.ext(reads(0, 0))
    bodies = []
    for u in range(NBODY):
        B = []
        for s in range(2):
            t = 2 * u + s; p = s
            last = (t == NSTEP - 1)
            ms = [mfma(nb, tb, p, '0' if t == 0 else None) for nb in range(4) for tb in range(4)]
            pre = []; bar = []; rd = []
            adv = [f's_add_u32 s36, s36, {STAGE}', f's_cmp_eq_u32 s36, {STAGE*NS}', 's_cselect_b32 s42, s51, s50', 's_cselect_b32 s36, 0, s36']
            ex = []
            if not last:
                if s == 1:
                    pre = [f'v_add_u32 v{V_XRD}, s42, v{V_XRD}', f'v_add_u32 v{V_WRD}, s42, v{V_WRD}'] + \
                          [f'v_add_u32 v{V_WRD+i}, s42, v{V_WRD+i}' for i in range(1, 4)]
                    n = q.wait_for({f'{tag}T{u+1}'} | ({'res'} if u == NBODY - 2 else set()))
                    bar = [f's_waitcnt vmcnt({n})', 's_barrier']
                else:
                    pre = [f'v_add_u32 v{V_XRD+1}, s42, v{V_XRD+1}']
                    ex = adv
                rd = reads(p ^ 1, s ^ 1)
            dm = []
            for ins, tg, _ in take(t, 4 if t >= 4 else 6): dm.append(ins); q.issue(tg)
            if not flat and not dm and small:
                for ins in small[:4]: dm.append(ins); q.issue('res')
                small = small[4:]
            if opts.get('nodma') and 6 <= t < 44: dm = []
            if opts.get('noread'): rd = []
            if opts.get('nobar'): bar = bar[:1]
            B += build_step(ms, needs, 12, pre, bar, rd, dm, ex, nb=(3 if s == 1 else 1))
        bodies.append(B)
    assert not flat and not small and 'res' not in q.q
    e.ext(loopify(bodies, m.lab(tag + 'L'), 38))
    e('s_barrier')
    m.stamp(tag + ' epi')
    e('s_nop 7')
    l0 = m.lab('ks0'); lx = m.lab('ex')
    e(f's_cmp_eq_u32 s{S_PAR}, 0\ns_cbranch_scc1 {l0}')
    def send(ks):
        keep = [2*ks, 2*ks+1]; snd = [2 - 2*ks, 3 - 2*ks]
        for i, tb in enumerate(snd):
            for nb in range(4):
                a = acc(nb, tb); o = 96 + (i*4+nb)*2
                e(f'v_cvt_pk_bf16_f32 v{o}, v{a}, v{a+1}')
                e(f'v_cvt_pk_bf16_f32 v{o+1}, v{a+2}, v{a+3}')
        for k in range(4):
            e(f'buffer_store_dwordx4 v[{96+4*k}:{99+4*k}], v{V_EX}, s[24:27], 0 offen offset:{k*1024} sc1')
        pd.unpack_res(e)
        for i, tb in enumerate(keep):
            for nb in range(4):
                a = acc(nb, tb); tm = V_TMP + (i*4+nb)*4
                e(f'v_pk_add_f32 v[{tm}:{tm+1}], v[{tm}:{tm+1}], v[{a}:{a+1}]')
                e(f'v_pk_add_f32 v[{tm+2}:{tm+3}], v[{tm+2}:{tm+3}], v[{a+2}:{a+3}]')
    send(1)
    e(f's_branch {lx}\n{l0}:')
    send(0)
    e(f'{lx}:')
    pl = m.lab('xpl'); ok = m.lab('xok')
    e(f's_mov_b32 s39, {1 << 16}\n{pl}:')
    for k in range(4):
        e(f'buffer_load_dwordx4 v[{128+4*k}:{131+4*k}], v{V_EXR}, s[24:27], 0 offen offset:{k*1024} sc1')
    e('s_waitcnt vmcnt(0)'); q.clear()
    e('v_max3_u32 v1, v128, v129, v130')
    for k in range(131, 143, 2): e(f'v_max3_u32 v1, v1, v{k}, v{k+1}')
    e(f'''
    v_max_u32 v1, v1, v143
    v_cmp_eq_u32 vcc, -1, v1
    s_nop 1
    s_cmp_eq_u64 vcc, 0
    s_cbranch_scc1 {ok}
    s_sub_u32 s39, s39, 1
    s_cmp_lg_u32 s39, 0
    s_cbranch_scc1 {pl}
    {ok}:
    ''')
    m.stamp(tag + ' got')
    for k in range(16):
        e(f'v_lshlrev_b32 v{96+2*k}, 16, v{128+k}')
        e(f'v_and_b32 v{97+2*k}, 0xffff0000, v{128+k}')
    pd.finalize(e, out, st_off)
    m.stamp(tag + ' st')
    pub_fn()
    m.stamp(tag + ' pub')
    Pre(m, next_pre).emit_all()
```

```python
import sys
import build, p1, pd, p3, ps
from mega import *
from common import *
LDS = 163840
KN = 'interleave_layers__linear_kernel_hedgehog__geglu_ffn__prompt_kernel'
def make(opts=None, info=None):
    opts = opts or {}
    import common
    common.RPACE = opts.get('rpace', 1.6); common.RMARGIN = opts.get('rmargin', 3); common.COARSE = opts.get('coarse', 4)
    m = M(KN, opts)
    m.prologue()
    m.stamp('start')
    p1.pre_w(m, 0)
    for L in range(2):
        xin = ('ptr', P_X) if L == 0 else ('ws', reg(0, R_X2))
        p1.run(m, L, lambda: pd.pre_w(m, 'p2', 1024, P_WO))
        pd.run(m, 'p2', 1024, reg(L, R_O), xin, ('ws', reg(L, R_X1)), reg(L, R_STF),
               lambda: m.wait(L, E_B, f's_mov_b32 s18, s{S_MT}', 16),
               lambda: m.publish(L, E_C, f's_and_b32 s18, s{S_MT}, 14\ns_add_u32 s18, s18, s{S_PAR}\ns_and_b32 s19, s{S_MT}, 1\ns_lshl_b32 s19, s19, 3\ns_and_b32 s39, s{S_CI}, 7\ns_add_u32 s19, s19, s39'),
               lambda: p3.pre_w(m, L), opts.get('p2', {}))
        p3.run(m, L, lambda: ps.pre_w(m))
        last = (L == 1)
        ps.run(m, L, ('ws', reg(L, R_X1)), ('ptr', P_OUT) if last else ('ws', reg(0, R_X2)), None if last else reg(1, R_STA),
               lambda: m.wait(L, E_D, f's_and_b32 s18, s{S_MT}, 14\ns_add_u32 s18, s18, s{S_PAR}', 16),
               (lambda: None) if last else (lambda: m.publish(L, E_E, f's_mov_b32 s18, s{S_MT}\ns_mov_b32 s19, s{S_CI}')),
               None if last else (lambda: p1.pre_w(m, 1, 4)), opts.get('p4', {}))
    if info is not None: info['stamps'] = m.stamp_names
    kt = m.finish()
    return build.assemble_file([(KN, 256, 256, LDS)], [kt], single=opts.get('single', False))
if __name__ == '__main__':
    out = sys.argv[1] if len(sys.argv) > 1 else 'interleave_layers__linear_kernel_hedgehog__geglu_ffn__prompt.s'
    opts = eval(sys.argv[2]) if len(sys.argv) > 2 else {}
    open(out, 'w').write(make(opts))
```

```python
import struct
f2u = lambda f: struct.unpack('<I', struct.pack('<f', f))[0]
MB = 1 << 20
S, D, F = 2048, 1024, 3584
WS_SIZE = 268435456
LOG2E = 1.4426950408889634
LAYER_STRIDE = 44 * MB
R_O = 0
R_X1 = 4 * MB
R_X2 = 8 * MB
R_H = 12 * MB
R_KVP = 27 * MB
R_KVR = 32 * MB
R_STA = 33 * MB
R_STF = 33 * MB + 512 * 1024
R_PX = 34 * MB
SHARE = True
def reg(layer, r):
    if SHARE and r in (R_O, R_X1, R_H, R_KVP, R_STF): layer = 0
    return 65536 + layer * LAYER_STRIDE + r
WS_CS = 90 * MB
CS_COLS = 10240
CS_PLANE = CS_COLS * 16
WS_FLAGS = 91 * MB
WS_XCC = 93 * MB
WS_STAMP = 94 * MB
KVP_HEAD = 8448
def flag_off(layer, edge, group): return WS_FLAGS + ((layer * 16 + edge) * 64 + group) * 256
E_A1, E_A2, E_B, E_C, E_D, E_E, E_CS, E_S, E_CSQ = range(9)
WS_XFLAGS = WS_FLAGS + 2 * 16 * 64 * 256
FLAG_BYTES = 2 * 16 * 64 * 256

class DmaQ:
    def __init__(self): self.q = []
    def issue(self, tag): self.q.append(tag)
    def wait_for(self, tags):
        last = -1
        for i, t in enumerate(self.q):
            if t in tags: last = i
        n = len(self.q) - 1 - last
        if last >= 0: self.q = self.q[last + 1:]
        return min(n, 63)
    def clear(self): self.q = []

def loopify(bodies, label, cnt_sreg, unroll=1):
    out = []; i = 0; k = 0
    while i < len(bodies):
        j = i
        while j + 1 < len(bodies) and bodies[j + 1] == bodies[i]: j += 1
        n = j - i + 1
        u = unroll
        while u > 1 and n // u < 2: u -= 1
        if n // u >= 2:
            it = n // u
            out.append(f's_mov_b32 s{cnt_sreg}, {it}')
            out.append(f'{label}_{k}:')
            for _ in range(u): out.extend(bodies[i])
            out.append(f's_sub_u32 s{cnt_sreg}, s{cnt_sreg}, 1')
            out.append(f's_cmp_lg_u32 s{cnt_sreg}, 0')
            out.append(f's_cbranch_scc1 {label}_{k}')
            for _ in range(n - it * u): out.extend(bodies[i])
            k += 1
        else:
            for _ in range(n): out.extend(bodies[i])
        i = j + 1
    return out

RPACE = 1.6; RMARGIN = 3; COARSE = 4
def cost(ins):
    if '\n' in ins: return sum(cost(x) for x in ins.split('\n'))
    op = ins.split()[0]
    if op.startswith('s_') or op.endswith(':'): return 0.67
    if op in ('v_exp_f32', 'v_rcp_f32', 'v_sqrt_f32', 'v_rsq_f32') or 'permlane' in op: return 2
    return 1
def atomize(L):
    out = []
    for x in L:
        if out and (x.startswith('s_cselect') or x.startswith('s_cbranch_scc')) and (out[-1].split('\n')[-1].startswith(('s_cmp', 's_cselect'))):
            out[-1] += '\n' + x
        else: out.append(x)
    return out
def is_vmem(ins): return ins.startswith('buffer_') or ins.startswith('global_')

def build_step(ms, needs, nprev, pre, bar, rd, dm, extra, nb=3, dstart=None, dspan=None, cap=2.01):
    n = len(ms)
    gaps = [[] for _ in ms]
    load = lambda g: sum(cost(x) for x in g)
    gi = 0
    pre = atomize(pre); extra = atomize(extra)
    for x in pre:
        while gi < nb - 1 and load(gaps[gi]) + cost(x) > cap: gi += 1
        gaps[gi].append(x)
    gaps[nb - 1] += bar
    r0 = nb - 1 if (bar or load(gaps[nb - 1]) + 1 <= cap) else nb
    ws_ = [1.0 if 'b128' in g else 0.5 for g in rd]
    tot = sum(ws_)
    span_r = max(tot, min(n - r0 - RMARGIN, RPACE * tot))
    pos = 0.0
    for g, w in zip(rd, ws_):
        gaps[min(r0 + int(pos * span_r / tot), n - 1)].append(g)
        pos += w
    rend = nb + 1
    def place(stream, first, targets=None, c=cap):
        cur = first; k = 0
        for idx, x in enumerate(stream):
            want = cur
            if targets is not None:
                if is_vmem(x): want = max(cur, targets[k]); k += 1
            g = want
            while g < n - 1 and load(gaps[g]) + cost(x) > c: g += 1
            gaps[min(g, n - 1)].append(x); cur = min(g, n - 1)
    if dm:
        flat = atomize([x for g in dm for x in g if x != 's_nop 0'])
        nv = sum(1 for x in flat if is_vmem(x))
        ds = min(max(nb + 1, rend if rd else 0), n - 2) if dstart is None else dstart
        span = (n - 1 - ds) if dspan is None else dspan
        place(flat, nb, [ds + (i * span) // nv for i in range(nv)])
    if extra:
        c = cap
        while sum(max(0, c - load(g)) for g in gaps[nb:]) < sum(cost(x) for x in extra) + 3: c += 0.5
        place(extra, nb, None, c)
    step = []
    done = -1; newi = 0
    for i, (m, g) in enumerate(zip(ms, gaps)):
        want = needs[i] if i % COARSE == 0 else -1
        if i % COARSE == 0: want = max(needs[i:i + COARSE])
        if want > done:
            allowed = min(15, (nprev - 1 - want) + newi)
            step.append(f's_waitcnt lgkmcnt({allowed})')
            done = nprev - 1 - (allowed - newi) if allowed - newi >= 0 else nprev - 1
        step.append(m)
        for x in [y for it in g for y in it.split('\n')]:
            if x == 's_barrier' and done < nprev - 1:
                assert newi == 0
                step.append('s_waitcnt lgkmcnt(0)'); done = nprev - 1
            step.append(x)
            if x.startswith('ds_'): newi += 1
    return step

def stats_t(raw, out_a, out_nm, tmp):
    L = []
    r = raw
    for w in (16, 8, 4, 2):
        for i in range(w): L.append(f'v_add_f32 v{r+i}, v{r+i}, v{r+w+i}')
    L += [f'v_mul_f32 v{r}, s46, v{r}', f'v_mul_f32 v{r+1}, s46, v{r+1}', f'v_fma_f32 v{r+1}, -v{r}, v{r}, v{r+1}', f'v_max_f32 v{r+1}, 0, v{r+1}',
          f'v_cvt_pk_bf16_f32 v{r+2}, v{r+1}, v{r+1}', f'v_cvt_pk_bf16_f32 v{out_nm}, -v{r}, -v{r}', f'v_and_b32 v{r+2}, 0xffff0000, v{r+2}', f'v_add_f32 v{r+2}, s47, v{r+2}',
          f'v_cvt_pk_bf16_f32 v{r+2}, v{r+2}, v{r+2}', f'v_mov_b32 v{out_nm+1}, v{out_nm}', f'v_and_b32 v{r+2}, 0xffff0000, v{r+2}', f'v_sqrt_f32 v{r+2}, v{r+2}',
          f'v_permlane16_swap_b32 v{out_nm}, v{out_nm+1}',
          f'v_cvt_pk_bf16_f32 v{r+2}, v{r+2}, v{r+2}', f'v_and_b32 v{out_a}, 0xffff0000, v{r+2}',
          f'v_mov_b32 v{out_nm+2}, v{out_nm}', f'v_mov_b32 v{out_nm+3}, v{out_nm+1}', f'v_mov_b32 v{out_a+1}, v{out_a}',
          f'v_permlane32_swap_b32 v{out_nm}, v{out_nm+2}', f'v_permlane32_swap_b32 v{out_nm+1}, v{out_nm+3}',
          f'v_permlane16_swap_b32 v{out_a}, v{out_a+1}',
          f'v_mov_b32 v{out_a+2}, v{out_a}', f'v_mov_b32 v{out_a+3}, v{out_a+1}', 's_nop 0',
          f'v_permlane32_swap_b32 v{out_a}, v{out_a+2}', f'v_permlane32_swap_b32 v{out_a+1}, v{out_a+3}']
    return L

def stats_finish(rr, n=4, pk=False):
    L = []
    def each(fmt):
        for tb in range(n):
            L.append(eval("f'''" + fmt + "'''", {'r': rr(tb)}))
    def add2(d, a, b):
        if pk: each('v_pk_add_f32 v[{r+%d}:{r+%d}], v[{r+%d}:{r+%d}], v[{r+%d}:{r+%d}]' % (d, d+1, a, a+1, b, b+1))
        else:
            each('v_add_f32 v{r+%d}, v{r+%d}, v{r+%d}' % (d, a, b)); each('v_add_f32 v{r+%d}, v{r+%d}, v{r+%d}' % (d+1, a+1, b+1))
    add2(0, 0, 2); add2(4, 4, 6); add2(0, 0, 4)
    for sw in ('v_permlane32_swap_b32', 'v_permlane16_swap_b32'):
        each('v_mov_b32 v{r+2}, v{r}')
        each('v_mov_b32 v{r+3}, v{r+1}')
        each(sw + ' v{r}, v{r+2}')
        each(sw + ' v{r+1}, v{r+3}')
        add2(0, 0, 2)
    each('v_mul_f32 v{r}, s46, v{r}')
    each('v_mul_f32 v{r+1}, s46, v{r+1}')
    each('v_fma_f32 v{r+1}, -v{r}, v{r}, v{r+1}')
    each('v_max_f32 v{r+1}, 0, v{r+1}')
    each('v_cvt_pk_bf16_f32 v{r+2}, v{r+1}, v{r+1}')
    each('v_and_b32 v{r+2}, 0xffff0000, v{r+2}')
    each('v_add_f32 v{r+2}, s47, v{r+2}')
    each('v_cvt_pk_bf16_f32 v{r+2}, v{r+2}, v{r+2}')
    each('v_and_b32 v{r+2}, 0xffff0000, v{r+2}')
    each('v_sqrt_f32 v{r+2}, v{r+2}')
    each('v_cvt_pk_bf16_f32 v{r+4}, -v{r}, -v{r}')
    each('v_cvt_pk_bf16_f32 v{r+2}, v{r+2}, v{r+2}')
    each('v_and_b32 v{r+2}, 0xffff0000, v{r+2}')
    each('v_rcp_f32 v{r+3}, v{r+2}')
    return L
```

```python
from asmlib import *
from common import *

P_X, P_WQKV, P_PHI, P_WO, P_GATE, P_UP, P_DOWN, P_OUT = 64, 66, 68, 70, 74, 76, 78, 80
S_MT, S_CI, S_MT2, S_NT2, S_PAR = 84, 85, 86, 87, 88
SPIN_LIMIT = 1 << 22

class M:
    def __init__(self, name, opts):
        self.e = Asm(); self.name = name; self.opts = opts; self.nl = 0; self.q = DmaQ(); self.nst = 0
        self.stamp_names = []
    def lab(self, s):
        self.nl += 1
        return f'L{s}{self.nl}'
    def prologue(self):
        e = self.e
        e(f'''
        s_cmp_lt_u32 s2, 256
        s_cbranch_scc1 Lgo
        s_endpgm
        Lgo:
        s_load_dwordx16 s[64:79], s[0:1], 0
        s_load_dwordx4 s[80:83], s[0:1], 64
        s_load_dwordx2 s[16:17], s[0:1], 80
        v_lshrrev_b32 v1, 6, v0
        v_and_b32 v2, 63, v0
        v_readfirstlane_b32 s20, v1
        v_and_b32 v30, 15, v2
        v_lshrrev_b32 v31, 4, v2
        s_and_b32 s21, s2, 7
        s_lshr_b32 s22, s2, 3             ; idx
        s_lshr_b32 s23, s21, 1            ; rg
        s_and_b32 s{S_PAR}, s21, 1
        s_lshl_b32 s18, s23, 2
        s_and_b32 s19, s22, 3
        s_add_u32 s{S_MT}, s18, s19
        s_lshl_b32 s18, s{S_PAR}, 3
        s_lshr_b32 s19, s22, 2
        s_add_u32 s{S_CI}, s18, s19
        ''')
        if self.opts.get('map48', 1):
            e(f'''
            s_lshl_b32 s18, s{S_PAR}, 2
            s_and_b32 s19, s22, 3
            s_add_u32 s{S_MT2}, s18, s19
            s_lshl_b32 s18, s23, 3
            s_lshr_b32 s19, s22, 2
            s_add_u32 s{S_NT2}, s18, s19
            ''')
        else:
            e(f'''
        s_lshl_b32 s18, s23, 1
        s_and_b32 s19, s22, 1
        s_add_u32 s{S_MT2}, s18, s19
        s_lshl_b32 s18, s{S_PAR}, 4
        s_lshr_b32 s19, s22, 1
        s_add_u32 s{S_NT2}, s18, s19
            ''')
        e(f'''
        s_mov_b32 s11, 0x00020000
        s_mov_b32 s15, 0x00020000
        s_mov_b32 s26, {WS_SIZE - self.opts.get('ws0', 0)*MB}
        s_mov_b32 s27, 0x00020000
        s_mov_b32 s59, 0x00020000
        s_mov_b32 s46, {f2u(1.0/1024):#x}
        s_mov_b32 s47, {f2u(1e-5):#x}
        s_lshl_b32 s89, s2, 2
        s_add_u32 s89, s89, s20
        s_lshl_b32 s89, s89, 10
        s_add_u32 s89, s89, {WS_STAMP}
        s_waitcnt lgkmcnt(0)
        s_add_u32 s16, s16, {self.opts.get('ws0', 0)*MB}
        s_addc_u32 s17, s17, 0
        s_mov_b32 s24, s16
        s_mov_b32 s25, s17
        ''')
    def stamp(self, nm):
        if not self.opts.get('stamp'): return
        e = self.e
        i = self.nst; self.nst += 1; self.stamp_names.append(nm)
        e('s_memrealtime s[90:91]')
        e('s_memtime s[96:97]')
        e('s_waitcnt lgkmcnt(0)')
        e('v_mov_b32 v0, s90')
        e('v_mov_b32 v1, s96')
        e('v_mov_b32 v3, 0')
        e('s_mov_b64 exec, 1')
        e(f'buffer_store_dwordx2 v[0:1], v3, s[24:27], s89 offen offset:{8*i}')
        e('s_mov_b64 exec, -1')
        self.q.issue('stamp')
    def code_touch(self, dst):
        CT = self.opts.get('ct', 10)
        return [f's_getpc_b64 s[90:91]', 'Lpc:', f's_sub_u32 s90, s90, Lpc-Lgo', 's_subb_u32 s91, s91, 0',
                's_lshr_b32 s18, s2, 3', 's_lshl_b32 s18, s18, 2', 's_add_u32 s18, s18, s20', f's_mul_i32 s18, s18, {CT*128}',
                f'v_min_u32 v1, {CT-1}, v2', 'v_lshlrev_b32 v1, 7, v1', 'v_add_u32 v1, s18, v1', 's_mov_b32 s18, Lend-Lgo', 'v_min_u32 v1, s18, v1',
                f'global_load_dword {dst}, v1, s[90:91]']
    def phase_touch(self, dst, vt=1, CT=3):
        if not self.opts.get('ptouch', 0): return None
        self.nph = getattr(self, 'nph', 0) + 1
        k = self.nph
        return [f's_getpc_b64 s[90:91]\nLph{k}:\ns_lshr_b32 s18, s2, 3\ns_lshl_b32 s18, s18, 2\ns_add_u32 s18, s18, s20\ns_mul_i32 s18, s18, {CT*128}',
                f'v_min_u32 v{vt}, {CT-1}, v2', f'v_lshlrev_b32 v{vt}, 7, v{vt}', f'v_add_u32 v{vt}, s18, v{vt}', f's_mov_b32 s18, Lend-Lph{k}', f'v_min_u32 v{vt}, s18, v{vt}',
                f'global_load_dword {dst}, v{vt}, s[90:91]']
    def tag_write(self):
        sk = self.lab('tw')
        return [f's_or_b32 s18, s2, s20\ns_cmp_lg_u32 s18, 0\ns_cbranch_scc1 {sk}\ns_memrealtime s[90:91]\ns_waitcnt lgkmcnt(0)\ns_or_b32 s18, s90, 1\n'
                f'v_mov_b32 v1, 0\nv_mov_b32 v3, s18\ns_mov_b64 exec, 1\nglobal_store_dword v1, v3, s[82:83] sc1\ns_mov_b64 exec, -1\n{sk}:']
    def tag_load(self, vz, v):
        return [f'v_mov_b32 v{vz}, 0', f'global_load_dword v{v}, v{vz}, s[82:83] sc1']
    def tag_check(self, vz, v):
        ok = self.lab('tok'); pl = self.lab('tpl')
        return [f's_mov_b32 s39, {SPIN_LIMIT}', f'{pl}:', f'v_readfirstlane_b32 s94, v{v}', 's_nop 0', 's_cmp_lg_u32 s94, 0', f's_cbranch_scc1 {ok}',
                's_sleep 1', f'global_load_dword v{v}, v{vz}, s[82:83] sc1', 's_waitcnt vmcnt(0)',
                's_sub_u32 s39, s39, 1', 's_cmp_lg_u32 s39, 0', f's_cbranch_scc1 {pl}', f'{ok}:']
    def signal(self, layer, edge, expr):
        skip = self.lab('pub')
        return [f's_cmp_lg_u32 s20, 0', f's_cbranch_scc1 {skip}'] + expr.split('\n') + [
            's_lshl_b32 s18, s18, 8', 's_lshl_b32 s19, s19, 2', 's_add_u32 s18, s18, s19', f's_add_u32 s18, s18, {flag_off(layer, edge, 0)}',
            'v_mov_b32 v1, 0', 'v_mov_b32 v3, s94', 's_mov_b64 exec, 1', 'buffer_store_dword v3, v1, s[24:27], s18 offen sc1', 's_mov_b64 exec, -1', f'{skip}:']
    def publish(self, layer, edge, expr, pre=None, nbefore=99):
        e = self.e
        self.q.issue('@')
        if pre is not None:
            pre.emit_setup()
            for _ in range(nbefore): pre.one()
        i = self.q.q.index('@')
        n = len(self.q.q) - 1 - i
        self.q.q = self.q.q[i + 1:]
        e(f's_waitcnt vmcnt({min(n, 63)})')
        e('s_barrier')
        e.ext(self.signal(layer, edge, expr))
        if pre is not None:
            while pre.dmas: pre.one()
    def wait(self, layer, edge, group_expr, n, nshard=1):
        e = self.e
        bar = self.lab('wbar'); poll = self.lab('poll'); got = self.lab('got')
        e(f's_cmp_lg_u32 s20, 0\ns_cbranch_scc1 {bar}')
        e(group_expr)
        assert n == 16
        e(f'''
        s_lshl_b32 s18, s18, 8
        s_add_u32 s18, s18, {flag_off(layer, edge, 0)}
        v_lshlrev_b32 v1, 2, v30
        v_lshl_add_u32 v1, v31, 8, v1
        s_mov_b32 exec_lo, {(1 << (16*nshard)) - 1:#x}
        s_mov_b32 exec_hi, 0
        s_mov_b32 s39, {SPIN_LIMIT}
        {poll}:
        buffer_load_dword v3, v1, s[24:27], s18 offen sc1
        s_waitcnt vmcnt(0)
        v_cmp_ne_u32 vcc, s94, v3
        s_nop 1
        s_cmp_eq_u64 vcc, 0
        s_cbranch_scc1 {got}
        s_sleep 1
        s_sub_u32 s39, s39, 1
        s_cmp_lg_u32 s39, 0
        s_cbranch_scc1 {poll}
        {got}:
        s_mov_b64 exec, -1
        {bar}:
        s_barrier
        ''')
    def soft_load(self, soff, voff, v):
        return [f'buffer_load_dword v{v}, v{voff}, s[24:27], s{soff} offen sc1']
    def soft_check(self, soff, voff, v):
        ok = self.lab('sok'); pl = self.lab('spl')
        return [f's_mov_b32 s39, {SPIN_LIMIT}', f'{pl}:', f'v_cmp_ne_u32 s[90:91], s94, v{v}', 's_nop 1', 's_cmp_eq_u64 s[90:91], 0', f's_cbranch_scc1 {ok}',
                's_sleep 1', f'buffer_load_dword v{v}, v{voff}, s[24:27], s{soff} offen sc1', 's_waitcnt vmcnt(0)',
                's_sub_u32 s39, s39, 1', 's_cmp_lg_u32 s39, 0', f's_cbranch_scc1 {pl}', f'{ok}:']
    def finish(self, vg=256, ag=256):
        e = self.e
        e(f'Lend:')
        e('s_endpgm')
        return kernel_text(self.name, hazard_pass(e.L), vg, ag, sgpr=100)

def srd(e, base, ptr=None, ws_off=None, size=None):
    if ptr is not None: e(f's_mov_b32 s{base}, s{ptr}\ns_mov_b32 s{base+1}, s{ptr+1}')
    else: e(f's_add_u32 s{base}, s16, {ws_off}\ns_addc_u32 s{base+1}, s17, 0')
    e(f's_mov_b32 s{base+2}, {size}')

def x_dma_offsets(e, v, row_sreg, ld, extra_sreg=None, blocked=False):
    if not blocked:
        e(f'''
        v_lshrrev_b32 v3, 3, v2
        v_add_u32 v3, s{row_sreg}, v3
        v_mul_u32_u24 v3, {ld}, v3
        ''')
        if extra_sreg is not None: e(f'v_add_u32 v3, s{extra_sreg}, v3')
        e(f'''
        v_and_b32 v1, 7, v2
        v_xor_b32 v1, v1, v31
        v_lshl_add_u32 v{v}, v1, 4, v3
        v_xor_b32 v1, 4, v1
        v_lshl_add_u32 v{v+1}, v1, 4, v3
        v_add_u32 v{v+1}, {8*ld - 1024}, v{v+1}
        v_add_u32 v{v+2}, {16*ld - 2048}, v{v}
        v_add_u32 v{v+3}, {16*ld - 2048}, v{v+1}
        ''')
    else:
        e(f'''
        s_mul_i32 s19, s{row_sreg}, {ld}
        v_lshlrev_b32 v{v}, 4, v2
        v_add_u32 v{v}, s19, v{v}
        ''')
        if extra_sreg is not None: e(f'v_add_u32 v{v}, s{extra_sreg}, v{v}')
        e(f'v_add_u32 v{v+1}, {16*ld - 2048}, v{v}')
BLK_BIAS = 0


def w_dma_offsets(e, v, n, krow_sreg, ld, col_sreg):
    e(f'''
    v_lshrrev_b32 v3, 3, v2
    v_add_u32 v3, s{krow_sreg}, v3
    v_mul_u32_u24 v3, {ld}, v3
    v_add_u32 v3, s{col_sreg}, v3
    v_and_b32 v1, 1, v31
    v_lshlrev_b32 v1, 1, v1
    v_and_b32 v0, 7, v2
    v_xor_b32 v1, v1, v0
    v_lshl_add_u32 v{v}, v1, 4, v3
    v_xor_b32 v1, 4, v1
    v_lshl_add_u32 v{v+1}, v1, 4, v3
    v_add_u32 v{v+1}, {8*ld - 1024}, v{v+1}
    ''')
    if n == 4:
        e(f'v_add_u32 v{v+2}, {16*ld - 2048}, v{v}\nv_add_u32 v{v+3}, {16*ld - 2048}, v{v+1}')

def x_read_addr_f(e, v, base_sreg):
    e(f'v_lshlrev_b32 v{v}, 4, v2\nv_add_u32 v{v}, s{base_sreg}, v{v}\nv_add_u32 v{v+1}, 1024, v{v}')

def frag_store_addr(e, v, base_sreg):
    e(f'''
    v_lshlrev_b32 v{v}, 4, v30
    v_and_b32 v1, 1, v31
    v_lshl_add_u32 v{v}, v1, 9, v{v}
    v_lshrrev_b32 v1, 1, v31
    v_lshl_add_u32 v{v}, v1, 8, v{v}
    v_add_u32 v{v}, s{base_sreg}, v{v}
    ''')

def x_read_addr(e, v, base_sreg):
    e(f'''
    v_lshrrev_b32 v1, 1, v30
    v_lshlrev_b32 v3, 7, v30
    v_add_u32 v3, s{base_sreg}, v3
    v_xor_b32 v{v}, v31, v1
    v_xor_b32 v{v+1}, 4, v{v}
    v_lshl_add_u32 v{v}, v{v}, 4, v3
    v_lshl_add_u32 v{v+1}, v{v+1}, 4, v3
    ''')

def w_read_addr(e, v, nbs, base_sreg, nb_xor_sreg=None):
    e(f'''
    v_bfe_u32 v1, v2, 2, 2
    v_lshl_add_u32 v3, v31, 3, v1
    v_lshlrev_b32 v3, 7, v3
    v_add_u32 v3, s{base_sreg}, v3
    v_and_b32 v0, 1, v2
    v_lshl_add_u32 v3, v0, 3, v3
    v_and_b32 v1, 2, v1
    v_and_b32 v0, 1, v31
    v_lshl_add_u32 v1, v0, 2, v1
    v_bfe_u32 v0, v2, 1, 1
    v_or_b32 v1, v1, v0
    ''')
    if nb_xor_sreg is not None: e(f'v_xor_b32 v1, s{nb_xor_sreg}, v1')
    for i, nb in enumerate(nbs):
        e(f'v_xor_b32 v0, {2*nb}, v1')
        e(f'v_lshl_add_u32 v{v+i}, v0, 4, v3')

def stats_loads(dst_fmt, voff, soff):
    return [[f'buffer_load_dwordx4 {dst_fmt(i*4)}, v{voff}, s[24:27], s{soff} offen offset:{i*256} sc1'] for i in range(8)]

class Pre:
    def __init__(self, m, fn):
        self.m = m; self.setup = []; self.dmas = []
        if fn is None: return
        keep_e, keep_q = m.e, m.q
        cap = Asm(); m.e = cap
        class Q:
            def __init__(s): s.marks = []
            def issue(s, tag): s.marks.append((len(cap.L), tag))
        m.q = Q()
        fn()
        marks = m.q.marks
        m.e, m.q = keep_e, keep_q
        first = next(i for i, l in enumerate(cap.L) if 'm0' in l)
        self.setup = cap.L[:first]
        prev = first
        for pos, tag in marks:
            self.dmas.append((cap.L[prev:pos], tag)); prev = pos
    def emit_setup(self):
        self.m.e.ext(self.setup); self.setup = []
    def emit_all(self):
        self.emit_setup()
        while self.dmas: self.one()
    def one(self):
        if self.dmas:
            ins, tag = self.dmas.pop(0)
            self.m.e.ext(ins); self.m.q.issue(tag)
    def weave(self, lines, every):
        for i, l in enumerate(lines):
            self.m.e(l)
            if i % every == every - 1: self.one()
        while self.dmas: self.one()
```

```python
from asmlib import *
from common import *
from mega import *

XT = 16384; WG_ = 8192; STAGE = XT + 3 * WG_; NS = 4
LDW = 3 * D * 2
NBODY = 16; NSTEP = 32
ROWB = 352; HREG = 128 * ROWB

def acc(blk, tb): return 32 + (blk * 4 + tb) * 4
def xfrag(p, tb): return 128 + p * 40 + tb * 4
def wfrag(p, b): return 128 + p * 40 + 16 + b * 4
V_RAW = 208; V_PHI = 240; V_A = 248
CSA = 0; NMB = 24; PHH = 40; ONES = 48; CSP = 52; CSL = 64
V_XOFF = 4; V_WOFF = 8; V_XRD = 12; V_WRD = 14
V_LW = 18; V_LR = 19; V_KV = 20; V_OS = 21; V_KZ = 22

def dma_x(aux='', kadv=128, frag=False, rot=False):
    g = []
    for j in range(4):
        ins = [f'buffer_load_dwordx4 v{V_XOFF+(j//2 if frag else j)}, s[8:11], s30 offen offset:{j*1024} {aux} lds']
        if j == 0: ins = ['s_add_u32 m0, s34, s40', 's_nop 0'] + ins
        if j == 3: ins += [f's_add_u32 s34, s34, {STAGE}', f's_cmp_eq_u32 s34, {STAGE*NS}', 's_cselect_b32 s34, 0, s34']
        if j == 3: ins += [f's_add_u32 s30, s30, {kadv}'] + (['s_and_b32 s30, s30, 0x7ff'] if rot else [])
        g.append(ins)
    return g
def dma_w(rot=False):
    g = []
    so = [32, 33, 31]; mb = [41, 43, 53]
    for grp in range(3):
        for j in range(2):
            ins = [f'buffer_load_dwordx4 v{V_WOFF+j}, s[12:15], s{so[grp]} offen offset:{j*1024} lds']
            if j == 0: ins = [f's_add_u32 m0, s35, s{mb[grp]}', 's_nop 0'] + ins
            if j == 1 and not rot: ins += [f's_add_u32 s{so[grp]}, s{so[grp]}, {64*LDW}']
            if j == 1 and grp == 2:
                ins += [f's_add_u32 s35, s35, {STAGE}', f's_cmp_eq_u32 s35, {STAGE*NS}', 's_cselect_b32 s35, 0, s35']
                if rot: ins += [f's_add_u32 s32, s32, {64*LDW}', f's_cmp_eq_u32 s32, {D*LDW}', 's_cselect_b32 s32, 0, s32', 's_add_u32 s33, s32, 2048', 's_add_u32 s31, s32, 4096']
            g.append(ins)
    return g

def pre_w(m, layer, ntiles=2):
    e = m.e
    srd(e, 12, ptr=P_WQKV, size=D*LDW)
    e(f'''
    s_lshl_b32 s18, s20, 4
    s_lshl_b32 s19, s{S_CI}, 7
    ''')
    w_dma_offsets(e, V_WOFF, 2, 18, LDW, 19)
    e(f'''
    s_mul_i32 s32, s{S_MT}, {64*LDW if layer == 0 else 0}
    s_add_u32 s33, s32, 2048
    s_add_u32 s31, s32, 4096
    s_mov_b32 s35, 0
    s_lshl_b32 s41, s20, 11
    s_add_u32 s41, s41, {XT}
    s_add_u32 s43, s41, {WG_}
    s_add_u32 s53, s41, {2*WG_}
    ''')
    for u in range(ntiles):
        for ins in dma_w(layer == 0): e.ext(ins); m.q.issue(f'P1T{u}')
    m.p1_w = ntiles

def run(m, layer, next_pre):
    e = m.e; q = m.q; opts = m.opts.get('p1', {})
    L = layer
    xaux = '' if L == 0 else 'sc1'
    if L == 0: srd(e, 8, ptr=P_X, size=S*D*2)
    else: srd(e, 8, ws_off=reg(0, R_X2) - BLK_BIAS, size=S*D*2 + BLK_BIAS)
    e(f'''
    s_lshl_b32 s23, s{S_MT}, 7        ; m0
    s_lshr_b32 s28, s20, 1            ; wm
    s_and_b32 s29, s20, 1             ; wh
    s_lshl_b32 s18, s20, 5
    s_add_u32 s18, s18, s23
    ''')
    x_dma_offsets(e, V_XOFF, 18, 2048, blocked=(L > 0))
    e(f's_mul_i32 s30, s{S_MT}, {128 if L == 0 else 0}\ns_mov_b32 s34, 0\ns_lshl_b32 s40, s20, 12')
    def rest_setup():
        e('s_lshl_b32 s18, s28, 13')
        (x_read_addr if L == 0 else x_read_addr_f)(e, V_XRD, 18)
        e(f's_mov_b32 s18, {XT}\ns_lshl_b32 s19, s29, 2')
        w_read_addr(e, V_WRD, [0, 1], 18, 19)
        e(f'''
        s_lshl_b32 s18, s{S_CI}, 1
        s_add_u32 s54, s18, s29            ; head
        s_lshl_b32 s18, s{S_MT}, 3
        s_lshl_b32 s19, s28, 2
        s_add_u32 s18, s18, s19
        s_lshl_b32 s18, s18, 11
        s_add_u32 s60, s18, {reg(L, R_STA)}
        v_lshlrev_b32 v23, 11, v31
        v_lshl_add_u32 v23, v30, 4, v23
        s_lshl_b32 s18, s54, 5
        v_add_u32 v1, s18, v30
        v_lshlrev_b32 v24, 4, v1
        v_mov_b32 v16, v24
        v_mul_u32_u24 v1, {CS_PLANE}, v31
        v_add_u32 v24, v24, v1
        s_mov_b32 s62, {WS_CS}
        s_mov_b32 s63, {WS_CS + 1024*16}
        s_mov_b32 s55, {WS_CS + 2048*16}
        v_lshlrev_b32 v25, 8, v31
        v_lshl_add_u32 v25, v30, 1, v25
        s_lshl_b32 s45, s54, 11
        s_lshl_b32 s18, s28, 6
        v_add_u32 v1, s18, v30
        v_mul_u32_u24 v1, {ROWB}, v1
        v_lshrrev_b32 v3, 2, v30
        v_xor_b32 v3, v3, v31
        v_lshl_add_u32 v1, v3, 3, v1
        s_mul_i32 s18, s29, {HREG}
        v_add_u32 v{V_LW}, s18, v1
        v_bfe_u32 v1, v2, 2, 2
        v_lshl_add_u32 v1, v31, 2, v1
        v_mul_u32_u24 v1, {ROWB}, v1
        v_and_b32 v3, 3, v2
        v_xor_b32 v3, v3, v31
        v_lshl_add_u32 v1, v3, 3, v1
        v_add_u32 v{V_LR}, s18, v1
        s_lshl_b32 s18, s{S_MT}, 5
        s_add_u32 s18, s18, s54
        s_mul_i32 s18, s18, {KVP_HEAD}
        s_add_u32 s18, s18, {reg(L, R_KVP)}
        s_lshl_b32 s19, s28, 7
        s_add_u32 s19, s19, s18
        s_add_u32 s19, s19, 8192
        v_lshlrev_b32 v1, 4, v31
        v_add_u32 v{V_KZ}, s19, v1
        s_lshl_b32 s19, s28, 12
        s_add_u32 s18, s18, s19
        v_lshlrev_b32 v1, 4, v2
        v_add_u32 v{V_KV}, s18, v1
        s_lshl_b32 s18, s28, 6
        s_add_u32 s18, s18, s23
        s_lshl_b32 s18, s18, 11
        s_lshl_b32 s19, s54, 10
        s_add_u32 s18, s18, s19
        s_add_u32 s18, s18, {reg(L, R_O)}
        ''')
        frag_store_addr(e, V_OS, 18)
        e(f'''
        s_mov_b32 s36, 0
        s_mov_b32 s42, 0
        s_mov_b32 s50, {STAGE}
        s_mov_b32 s51, {(-(NS-1)*STAGE) & 0xffffffff:#x}
        ''')
        srd(e, 56, ptr=P_PHI, size=65536)
        e(f'''
        s_lshr_b32 s18, s{S_MT}, 3
        s_lshl_b32 s19, s{S_CI}, 1
        s_add_u32 s18, s18, s19
        s_mul_i32 s44, s18, 6144
        s_bfe_u32 s18, s{S_MT}, 0x10002
        s_mul_i32 s18, s18, 3072
        s_add_u32 s44, s44, s18
        s_and_b32 s18, s{S_MT}, 1
        s_lshl_b32 s18, s18, 10
        s_add_u32 s44, s44, s18
        s_and_b32 s18, s{S_MT}, 2
        s_lshl_b32 s18, s18, 2
        s_add_u32 s44, s44, s18
        s_lshr_b32 s18, s{S_MT}, 2
        s_add_u32 s18, s18, s19
        s_mul_i32 s39, s18, 6144
        s_bfe_u32 s18, s{S_MT}, 0x10001
        s_mul_i32 s18, s18, 3072
        s_add_u32 s39, s39, s18
        s_and_b32 s18, s{S_MT}, 1
        s_lshl_b32 s18, s18, 3
        s_add_u32 s39, s39, s18
        s_add_u32 s39, s39, 2048
        s_lshr_b32 s18, s{S_MT}, 3
        s_lshl_b32 s18, s18, 2
        s_add_u32 s18, s18, s20
        s_cmp_eq_u32 s18, 1
        s_cselect_b32 s44, s39, s44
        s_add_u32 s44, s44, {reg(L, R_KVR)}
        s_mov_b32 s92, s44
        ''')
    const = []
    for b in range(6):
        const.append([f'buffer_load_dwordx4 a[{CSA+4*b}:{CSA+4*b+3}], v24, s[24:27], s{[62,63,55][b//2]} offen offset:{(b%2)*256} sc1'])
    for fb in range(2):
        for i in range(8):
            d = (i & 3) + 16 * (i >> 2)
            dst = f'v{V_PHI + fb*4 + i//2}' if i % 2 == 0 else f'a{PHH + fb*4 + i//2}'
            const.append([f'buffer_load_ushort {dst}, v25, s[56:59], s45 offen offset:{d*64 + fb*32}'])
    small = stats_loads(lambda o: f'v[{V_RAW+o}:{V_RAW+o+3}]', 23, 60)
    if L > 0:
        rest_setup()
        if opts.get('lateconst'): small = const + small
        else:
            for ins in const: e.ext(ins); q.issue('const')
        m.stamp('p1 wait')
        m.wait(L - 1, E_E, f's_mov_b32 s18, s{S_MT}', 16)
    else:
        small = const + small
    m.stamp('p1 go')
    nw = m.p1_w
    flat = []
    for u in range(NBODY):
        xs = [(ins, f'P1T{u}', 2*(u - NS) + 1) for ins in dma_x(xaux, 128 if L == 0 else 2048, L > 0, L == 0)]
        ws = [(ins, f'P1T{u}', 2*(u - NS) + 1) for ins in dma_w(L == 0)] if u >= nw else []
        flat += xs + ws
    def take(step, n):
        out = []
        while flat and len(out) < n and flat[0][2] <= step: out.append(flat.pop(0))
        return out
    n0 = sum(1 for f in flat if int(f[1][3:]) < max(2, nw))
    for ins, tag, _ in take(-1, n0): e.ext(ins); q.issue(tag)
    if L == 0:
        e(f'''
        s_lshl_b32 s18, s{S_CI}, 3
        s_add_u32 s18, s18, s23
        s_lshl_b32 s19, s20, 1
        s_add_u32 s48, s18, s19
        s_lshl_b32 s18, s48, 11
        v_lshlrev_b32 v1, 5, v2
        ''')
        for r in range(2):
            for h in range(2):
                e(f'buffer_load_dwordx4 v[{V_RAW+r*8+h*4}:{V_RAW+r*8+h*4+3}], v1, s[8:11], s18 offen offset:{r*2048 + h*16}'); q.issue('xr')
        if m.opts.get('ctouch', 1): e.ext(m.code_touch(f'a{CSL}')); q.issue('ct')
        for x in m.tag_write(): e(x)
        rest_setup()
        e(f'''
        v_mov_b32 v1, 0x3f803f80
        v_accvgpr_write_b32 a{ONES}, v1
        v_accvgpr_write_b32 a{ONES+1}, v1
        v_accvgpr_write_b32 a{ONES+2}, v1
        v_accvgpr_write_b32 a{ONES+3}, v1
        s_lshr_b32 s18, s{S_MT}, 2
        s_mul_i32 s18, s18, {CS_PLANE}
        s_and_b32 s19, s{S_MT}, 3
        s_lshl_b32 s19, s19, 2
        s_add_u32 s18, s18, s19
        v_add_u32 v16, s18, v16
        s_lshr_b32 s18, s48, 4
        s_lshl_b32 s18, s18, 11
        s_and_b32 s19, s48, 15
        s_lshl_b32 s19, s19, 4
        s_add_u32 s18, s18, s19
        s_add_u32 s48, s18, {reg(0, R_STA)}
        v_lshrrev_b32 v17, 3, v2
        v_lshlrev_b32 v17, 8, v17
        v_bfe_u32 v1, v2, 2, 1
        v_lshl_add_u32 v17, v1, 3, v17
        s_lshl_b32 s49, s{S_MT}, 8
        s_add_u32 s49, s49, {flag_off(0, E_S, 0)}
        s_lshl_b32 s52, s{S_CI}, 8
        s_add_u32 s52, s52, {flag_off(0, E_CSQ, 0)}
        v_lshlrev_b32 v28, 2, v30
        ''')
    def mfma(b, tb, p, c=None):
        a = acc(b, tb)
        cc = f'v[{a}:{a+3}]' if c is None else c
        return f'v_mfma_f32_16x16x32_bf16 v[{a}:{a+3}], v[{wfrag(p,b)}:{wfrag(p,b)+3}], v[{xfrag(p,tb)}:{xfrag(p,tb)+3}], {cc}'
    def reads(p, s):
        x = lambda tb: f'ds_read_b128 v[{xfrag(p,tb)}:{xfrag(p,tb)+3}], v{V_XRD+s} offset:{tb*2048}'
        w = lambda b, h: f'ds_read_b64_tr_b16 v[{wfrag(p,b)+2*h}:{wfrag(p,b)+2*h+1}], v{V_WRD+(b&1)} offset:{(b>>1)*WG_ + (32*s+4*h)*128}'
        g = [x(0), w(0, 0), w(0, 1), x(1), x(2), x(3)]
        for b in range(1, 6): g += [w(b, 0), w(b, 1)]
        return g
    needs = [max(2 if tb == 0 else 2 + tb, 5 + 2*b if b else 0) for b in range(6) for tb in range(4)]
    pt = m.phase_touch(f'a{CSL}') if L > 0 else None
    if pt: e.ext(pt); q.issue('pt')
    n = q.wait_for({'P1T0'})
    e(f's_waitcnt vmcnt({n})')
    e('s_barrier')
    m.stamp('p1 main')
    e.ext(reads(0, 0))
    extra = []
    for i in range(8):
        extra.append(f'v_accvgpr_read_b32 v26, a{PHH+i}')
        extra.append(f'v_lshl_or_b32 v{V_PHI+i}, v26, 16, v{V_PHI+i}')
    extra += stats_t(V_RAW, V_A, V_RAW + 8, None)
    for tb in range(4): extra.append(f'v_rcp_f32 v{V_A+tb}, v{V_A+tb}')
    for tb in range(4):
        for i in range(4): extra.append(f'v_accvgpr_write_b32 a{NMB+4*tb+i}, v{V_RAW+8+tb}')
    TW = 27
    early = []
    if L == 0:
        A0 = V_RAW + 16; T0 = V_RAW + 20
        early += [f'v_mov_b32 v{A0+i}, 0' for i in range(4)]
        for d in range(8):
            for r in range(2):
                x = V_RAW + r*8 + d; t0 = T0 + r*2
                early += [f'v_lshlrev_b32 v{t0}, 16, v{x}', f'v_and_b32 v{t0+1}, 0xffff0000, v{x}']
            for r in range(2):
                t0 = T0 + r*2
                early += [f'v_add_f32 v{A0+2*r}, v{A0+2*r}, v{t0}', f'v_fmac_f32 v{A0+2*r+1}, v{t0}, v{t0}',
                          f'v_add_f32 v{A0+2*r}, v{A0+2*r}, v{t0+1}', f'v_fmac_f32 v{A0+2*r+1}, v{t0+1}, v{t0+1}']
        for qp in ('[1,0,3,2]', '[2,3,0,1]'):
            early += [f'v_add_f32_dpp v{A0+i}, v{A0+i}, v{A0+i} quad_perm:{qp} row_mask:0xf bank_mask:0xf' for i in range(4)]
        C0 = V_RAW + 24
        early += [f'v_accvgpr_read_b32 v{C0+i}, a{CSP+4*i}' for i in range(3)]
        early += [f'v_cvt_pk_bf16_f32 v{C0+4+i}, v{C0+i}, v{C0+i}' for i in range(3)]
        early += [f'v_and_b32 v{C0+4+i}, 0xffff0000, v{C0+4+i}' for i in range(3)]
        early += [f'v_sub_f32 v{C0+4+i}, v{C0+i}, v{C0+4+i}' for i in range(3)]
        early += [f'v_cvt_pk_bf16_f32 v{C0+4+i}, v{C0+i}, v{C0+4+i}' for i in range(3)]
    SENT = 252
    sent = []
    if L == 0:
        for LL in range(2):
            for k in range(4):
                g = [f'buffer_store_dwordx4 v[{SENT}:{SENT+3}], v29, s[24:27], s48 offen offset:{k*1024} sc1']
                if k == 0 and LL == 0:
                    g = [f'v_mov_b32 v{SENT+i}, -1' for i in range(4)] + ['v_lshlrev_b32 v29, 4, v2', 's_lshl_b32 s18, s2, 2', 's_add_u32 s18, s18, s20',
                         's_lshl_b32 s18, s18, 12', f's_add_u32 s48, s18, {reg(0, R_PX)}'] + g
                if k == 3 and LL == 0: g += [f's_add_u32 s48, s48, {LAYER_STRIDE}']
                sent.append(g)
        sent.append([f'buffer_store_dwordx2 v[{SENT}:{SENT+1}], v29, s[24:27], s44 offen sc1', f's_add_u32 s44, s44, {LAYER_STRIDE}'])
        sent.append([f'buffer_store_dwordx2 v[{SENT}:{SENT+1}], v29, s[24:27], s44 offen sc1'])
    touch = (L == 0 and opts.get('touch'))
    if touch:
        e(f'''
        s_cmp_lt_u32 s20, 2
        s_cselect_b32 s4, s{P_GATE}, s{P_UP}
        s_cselect_b32 s5, s{P_GATE+1}, s{P_UP+1}
        s_mov_b32 s6, {D*F*2}
        s_mov_b32 s7, 0x00020000
        s_lshl_b32 s18, s2, 1
        s_and_b32 s19, s20, 1
        s_add_u32 s18, s18, s19
        s_mul_i32 s37, s18, {112*128}
        s_lshl_b32 s18, s2, 2
        s_add_u32 s18, s18, s20
        s_lshl_b32 s61, s18, 11
        ''')
    bodies = []
    for u in range(NBODY):
        B = []
        for s in range(2):
            t = 2 * u + s; p = s
            last = (t == NSTEP - 1)
            ms = [mfma(b, tb, p, '0' if t == 0 else None) for b in range(6) for tb in range(4)]
            pre = []; bar = []; rd = []
            if not last:
                if s == 1:
                    pre = [f's_add_u32 s36, s36, {STAGE}', f's_cmp_eq_u32 s36, {STAGE*NS}', 's_cselect_b32 s42, s51, s50',
                           's_cselect_b32 s36, 0, s36', f'v_add_u32 v{V_XRD}, s42, v{V_XRD}'] + \
                          [f'v_add_u32 v{V_WRD+i}, s42, v{V_WRD+i}' for i in range(2)]
                    tags = {f'P1T{u+1}'} | ({'small'} if t == TW else set())
                    if L == 0 and t == 1: tags |= {'xr'}
                    if L == 0 and t == 9: tags |= {'tag', 'hand'}
                    if L == 0 and t == 19: tags |= {'flg'}
                    n = q.wait_for(tags)
                    bar = [f's_waitcnt vmcnt({n})', 's_barrier']
                    if L == 0 and t == 9:
                        bar += m.tag_check(26, 27)
                        bar += m.signal(0, E_S, f's_mov_b32 s18, s{S_MT}\ns_mov_b32 s19, s{S_CI}')
                        bar += m.signal(0, E_CSQ, f's_mov_b32 s18, s{S_CI}\ns_mov_b32 s19, s{S_MT}')
                    if L == 0 and t == 19:
                        bar += m.soft_check(49, 28, 26) + m.soft_check(52, 28, 27)
                else:
                    pre = [f'v_add_u32 v{V_XRD+1}, s42, v{V_XRD+1}']
                rd = reads(p ^ 1, s ^ 1)
            dm = []
            for ins, tag, _ in take(t, opts.get('q', 8) if t < 8 else 6): dm.append(ins); q.issue(tag)
            if L == 0 and t == 6: dm.append(m.tag_load(26, 27)); q.issue('tag')
            if L == 0 and t == 17:
                dm.append(m.soft_load(49, 28, 26)); q.issue('flg'); dm.append(m.soft_load(52, 28, 27)); q.issue('flg')
            if t >= 8 and sent:
                dm.append(sent.pop(0)); q.issue('sent')
            big = (L == 0 or opts.get('lateconst'))
            if small and t >= (21 if big else 25):
                k = max(0, (9 if big else 4) - len(dm))
                for ins in small[:k]: dm.append(ins); q.issue('small')
                small = small[k:]
            if t == TW: assert not small
            if touch and t in (27, 28):
                dm.append(['v_min_u32 v27, 55, v2', 'v_lshlrev_b32 v27, 7, v27', f'buffer_load_dword a{CSL}, v27, s[4:7], s37 offen', f's_add_u32 s37, s37, {56*128}']); q.issue('touch')
            if (touch or (L == 0 and opts.get('wotouch', 1))) and t == opts.get('wot', 27):
                dm.append([f's_mov_b32 s4, s{P_WO}', f's_mov_b32 s5, s{P_WO+1}', f's_mov_b32 s6, {D*D*2}', 's_mov_b32 s7, 0x00020000', 's_lshl_b32 s18, s2, 2', 's_add_u32 s18, s18, s20', 's_lshl_b32 s61, s18, 11', 'v_lshlrev_b32 v27, 7, v30',
                           f'buffer_load_dword a{CSL}, v27, s[4:7], s61 offen']); q.issue('touch')
            ex = []
            if t >= TW and extra:
                k = (len(extra) + NSTEP - 1 - t) // (NSTEP - t)
                ex = extra[:k]; extra = extra[k:]
            if early and 2 <= t <= 6:
                k = (len(early) + 6 - t) // (7 - t)
                ex = early[:k]; early = early[k:]
            if opts.get('nodma') and 8 <= t < 21: dm = []
            if opts.get('noread'): rd = []
            if opts.get('nobar'): bar = bar[:1]
            step = build_step(ms, needs, 16, pre, bar, rd, dm, ex, nb=(3 if s == 1 else 1))
            if L == 0 and t < 2:
                l1 = m.lab('cq'); le = m.lab('cqe')
                step += ['s_cmp_lg_u32 s28, 0', f's_cbranch_scc1 {l1}']
                for wm in range(2):
                    for i in range(3):
                        d = CSP + 4*i; b = 3*wm + i
                        step.append(f'v_mfma_f32_16x16x32_bf16 a[{d}:{d+3}], a[{ONES}:{ONES+3}], v[{wfrag(p,b)}:{wfrag(p,b)+3}], ' + ('0' if t == 0 else f'a[{d}:{d+3}]'))
                    if wm == 0: step += [f's_branch {le}', f'{l1}:']
                step += [f'{le}:']
            if L == 0 and t == 6:
                l1 = m.lab('cw'); le = m.lab('cwe')
                A0 = V_RAW + 16; C0 = V_RAW + 24
                step += ['s_mov_b32 exec_lo, 0x11111111', 's_mov_b32 exec_hi, 0x11111111']
                for r in range(2): step.append(f'buffer_store_dwordx2 v[{A0+2*r}:{A0+2*r+1}], v17, s[24:27], s48 offen offset:{r*16} sc1')
                step += ['s_mov_b64 exec, 0xffff', 's_cmp_lg_u32 s28, 0', f's_cbranch_scc1 {l1}']
                for wm in range(2):
                    for i in range(3):
                        b = 3*wm + i
                        step.append(f'buffer_store_dword v{C0+4+i}, v16, s[24:27], s{[62,63,55][b//2]} offen offset:{(b%2)*256} sc1')
                    if wm == 0: step += [f's_branch {le}', f'{l1}:']
                step += [f'{le}:', 's_mov_b64 exec, -1']
                for i in range(5): q.issue('hand')
            B += step
        bodies.append(B)
    assert not flat and not extra and not small and not early and not sent, (len(flat), len(extra), len(small))
    if opts.get('lst'):
        cuts = opts['lst']
        prev = 0
        for c in cuts + [NBODY]:
            e.ext(loopify(bodies[prev:c], m.lab('p1L'), 38)); prev = c
            if c < NBODY:
                sv = list(q.q); e('s_waitcnt lgkmcnt(0)'); m.stamp(f'p1 b{c}'); q.q = sv
    else:
        e.ext(loopify(bodies, m.lab('p1L'), 38, m.opts.get('unroll', 1)))
    for b in range(6):
        for tb in range(4):
            a = acc(b, tb)
            e(f'v_mfma_f32_16x16x32_bf16 v[{a}:{a+3}], a[{CSA+4*b}:{CSA+4*b+3}], a[{NMB+4*tb}:{NMB+4*tb+3}], v[{a}:{a+3}]')
    e('s_barrier')
    m.stamp('p1 epi')
    e(f's_mov_b32 s44, {f2u(LOG2E):#x}')
    e(f's_mov_b32 s45, {f2u(LOG2E):#x}')
    def bc(r): return (f'v[{r}:{r+1}]', 0) if r % 2 == 0 else (f'v[{r-1}:{r}]', 1)
    for i in range(4): e(f'v_mov_b32 v{24+i}, 0x3f803f80')
    PB = 128; PP = 144; MX = 176; EP = 192; PK = 208
    def feat(mi, part=3):
      e = m.e
      if part & 1:
        for tb in range(4):
            ar, sl = bc(V_A + tb)
            for db in range(2):
                a = acc(2*mi + db, tb)
                for h in range(2):
                    e(f'v_pk_mul_f32 v[{a+2*h}:{a+2*h+1}], v[{a+2*h}:{a+2*h+1}], {ar} op_sel:[0,{sl}] op_sel_hi:[1,{sl}]')
        for tb in range(4):
            for db in range(2):
                a = acc(2*mi + db, tb)
                for h in range(2):
                    e(f'v_cvt_pk_bf16_f32 v{PB+tb*4+db*2+h}, v{a+2*h}, v{a+2*h+1}')
        for tb in range(4):
            for fb in range(2):
                p = PP + tb*8 + fb*4
                e(f'v_mfma_f32_16x16x32_bf16 v[{p}:{p+3}], v[{V_PHI+fb*4}:{V_PHI+fb*4+3}], v[{PB+tb*4}:{PB+tb*4+3}], 0')
        for tb in range(4):
            p = PP + tb*8; mx = MX + 2*tb
            e(f'v_max3_f32 v{mx}, v{p}, v{p+1}, v{p+2}')
            e(f'v_max3_f32 v{mx+1}, -v{p}, -v{p+1}, -v{p+2}')
        for k in (3, 5):
            for tb in range(4):
                p = PP + tb*8; mx = MX + 2*tb
                e(f'v_max3_f32 v{mx}, v{mx}, v{p+k}, v{p+k+1}')
                e(f'v_max3_f32 v{mx+1}, v{mx+1}, -v{p+k}, -v{p+k+1}')
        for tb in range(4):
            p = PP + tb*8; mx = MX + 2*tb
            e(f'v_max_f32 v{mx}, v{mx}, v{p+7}')
            e(f'v_max_f32_e64 v{mx+1}, v{mx+1}, -v{p+7}')
        for tb in range(4): e(f'v_permlane32_swap_b32 v{MX+2*tb}, v{MX+2*tb+1}')
        for tb in range(4): e(f'v_max_f32 v{MX+2*tb}, v{MX+2*tb}, v{MX+2*tb+1}')
        for pr in range(2): e(f'v_permlane16_swap_b32 v{MX+4*pr}, v{MX+4*pr+2}')
        for pr in range(2): e(f'v_max_f32 v{MX+4*pr}, v{MX+4*pr}, v{MX+4*pr+2}')
        for pr in range(2): e(f'v_mul_f32 v{MX+4*pr}, s44, v{MX+4*pr}')
        for pr in range(2): e(f'v_mov_b32 v{MX+4*pr+2}, v{MX+4*pr}')
        for pr in range(2): e(f'v_permlane16_swap_b32 v{MX+4*pr}, v{MX+4*pr+2}')
        for tb in range(4): e(f'v_mov_b32 v{MX+2*tb+1}, v{MX+2*tb}')
        for tb in range(4): e(f'v_permlane32_swap_b32 v{MX+2*tb}, v{MX+2*tb+1}')
      if part & 2:
        for tb in range(4):
            p = PP + tb*8; mx = MX + 2*tb
            for i in range(4):
                e(f'v_pk_fma_f32 v[{EP+2*i}:{EP+2*i+1}], v[{p+2*i}:{p+2*i+1}], s[44:45], v[{mx}:{mx+1}] op_sel:[0,0,0] op_sel_hi:[1,1,0] neg_lo:[0,0,1] neg_hi:[0,0,1]')
            for i in range(4):
                e(f'v_pk_fma_f32 v[{EP+8+2*i}:{EP+8+2*i+1}], v[{p+2*i}:{p+2*i+1}], s[44:45], v[{mx}:{mx+1}] op_sel:[0,0,1] op_sel_hi:[1,1,1] neg_lo:[1,0,1] neg_hi:[1,0,1]')
            for i in range(16): e(f'v_exp_f32 v{EP+i}, v{EP+i}')
            for i in range(8): e(f'v_cvt_pk_bf16_f32 v{PK+tb*8+i}, v{EP+2*i}, v{EP+2*i+1}')
    feat(1, 1)
    if opts.get('fine'): m.stamp('p1 k.a')
    feat(1, 2)
    if opts.get('fine'): m.stamp('p1 k.b')
    SS = 144
    for tb in range(4):
        for sg in range(2):
            r = SS + (tb*2+sg)*4
            e(f'v_mfma_f32_16x16x32_bf16 v[{r}:{r+3}], v[24:27], v[{PK+tb*8+sg*4}:{PK+tb*8+sg*4+3}], 0')
    for tb in range(4):
        for sg in range(2):
            for fb in range(2):
                r = PK + tb*8 + sg*4 + fb*2
                e(f'ds_write_b64 v{V_LW}, v[{r}:{r+1}] offset:{tb*16*ROWB + sg*64 + fb*32}')
    for tb in range(4):
        for sg in range(2):
            r = SS + (tb*2+sg)*4
            e(f'v_rcp_f32 v{r}, v{r}')
    for tb in range(4):
        for sg in range(2):
            r = SS + (tb*2+sg)*4
            e(f'v_mul_f32 v{r+2}, v{r}, v{V_A+tb}')
            e(f'v_cvt_pk_bf16_f32 v{r}, v{r}, 0')
            e(f'v_mov_b32 v{r+1}, 0')
    for tb in range(4):
        for sg in range(2):
            r = SS + (tb*2+sg)*4
            t = 176 + sg*8
            for db in range(2):
                a = acc(4 + db, tb)
                for h in range(2):
                    e(f'v_pk_mul_f32 v[{t+db*4+2*h}:{t+db*4+2*h+1}], v[{a+2*h}:{a+2*h+1}], v[{r+2}:{r+3}] op_sel:[0,0] op_sel_hi:[1,0]')
            o = 192 + (tb % 2) * 8 + sg * 4
            for i in range(4): e(f'v_cvt_pk_bf16_f32 v{o+i}, v{t+2*i}, v{t+2*i+1}')
            for db in range(2):
                e(f'ds_write_b64 v{V_LW}, v[{o+2*db}:{o+2*db+1}] offset:{tb*16*ROWB + 128 + sg*64 + db*32}')
            e(f'ds_write_b64 v{V_LW}, v[{r}:{r+1}] offset:{tb*16*ROWB + 256 + sg*32}')
    if opts.get('fine'): m.stamp('p1 k.lds')
    e('s_waitcnt lgkmcnt(0)')
    e('s_barrier')
    if opts.get('fine'): m.stamp('p1 k.bar')
    e(f's_lshl_b32 s18, s28, 6')
    e(f'v_add_u32 v28, s18, v{V_LR}')
    e(f's_lshl_b32 s18, s28, 5')
    e(f'v_add_u32 v29, s18, v{V_LR}')
    FA = 128
    for ks in range(4):
        f = FA + ks * 20
        for h in range(2):
            ro = (ks*32 + h*16) * ROWB
            for fb in range(2): e(f'ds_read_b64_tr_b16 v[{f+fb*4+2*h}:{f+fb*4+2*h+1}], v28 offset:{ro + fb*32}')
            for db in range(2): e(f'ds_read_b64_tr_b16 v[{f+8+db*4+2*h}:{f+8+db*4+2*h+1}], v28 offset:{ro + 128 + db*32}')
            e(f'ds_read_b64_tr_b16 v[{f+16+2*h}:{f+16+2*h+1}], v29 offset:{ro + 256}')
    KV = acc(2, 0)
    for ks in range(4):
        f = FA + ks * 20
        e(f's_waitcnt lgkmcnt({min(15, (3-ks)*10)})')
        for fb in range(2):
            for bk in range(3):
                d = KV + (fb*3+bk)*4
                e(f'v_mfma_f32_16x16x32_bf16 v[{d}:{d+3}], v[{f+fb*4}:{f+fb*4+3}], v[{f+8+bk*4}:{f+8+bk*4+3}], ' + ('0' if ks == 0 else f'v[{d}:{d+3}]'))
    for fb in range(2):
        for db in range(2):
            d = KV + (fb*3+db)*4
            e(f'buffer_store_dwordx4 v[{d}:{d+3}], v{V_KV}, s[24:27], 0 offen offset:{(fb*2+db)*1024} sc1')
    e('s_mov_b32 exec_lo, 0x00010001')
    e('s_mov_b32 exec_hi, 0x00010001')
    for fb in range(2):
        d = KV + (fb*3+2)*4
        e(f'buffer_store_dwordx4 v[{d}:{d+3}], v{V_KZ}, s[24:27], 0 offen offset:{fb*64} sc1')
    e('s_mov_b64 exec, -1')
    if opts.get('fine'): m.stamp('p1 k.kv')
    feat(0, 1)
    if opts.get('fine'): m.stamp('p1 q.a')
    m.publish(L, E_A1, f's_mov_b32 s18, s{S_CI}\ns_mov_b32 s19, s{S_MT}')
    m.stamp('p1 pubA1')
    pre = Pre(m, next_pre)
    pre.emit_setup()
    keep = m.e; cap = Asm(); m.e = cap; e = cap
    feat(0, 2)
    m.e = keep; e = keep
    pre.weave(cap.L, 8)
    m.stamp('p1 featq')
    m.wait(L, E_A1, f's_mov_b32 s18, s{S_CI}', 16)
    m.stamp('p1 gotA1')
    skip = m.lab('hop'); w1 = m.lab('hopz')
    R0 = 64
    e(f'''
    s_cmp_gt_u32 s20, 1
    s_cbranch_scc1 {skip}
    s_cmp_eq_u32 s20, 1
    s_cbranch_scc1 {w1}
    s_lshr_b32 s18, s{S_MT}, 3
    s_lshl_b32 s19, s{S_CI}, 1
    s_add_u32 s18, s18, s19            ; head
    s_mul_i32 s19, s18, {KVP_HEAD}
    s_add_u32 s19, s19, {reg(L, R_KVP)}
    s_and_b32 s60, s{S_MT}, 7
    s_lshl_b32 s61, s60, 10
    s_add_u32 s19, s19, s61
    v_lshlrev_b32 v1, 4, v2
    ''')
    for i in range(16):
        e(f'buffer_load_dwordx4 v[{R0+4*i}:{R0+4*i+3}], v1, s[24:27], s19 offen sc1')
        if i < 15: e(f's_add_u32 s19, s19, {32*KVP_HEAD}')
    def tree():
        for i in range(1, 16):
            e(f's_waitcnt vmcnt({15-i})')
            e(f'v_pk_add_f32 v[{R0}:{R0+1}], v[{R0}:{R0+1}], v[{R0+4*i}:{R0+4*i+1}]')
            e(f'v_pk_add_f32 v[{R0+2}:{R0+3}], v[{R0+2}:{R0+3}], v[{R0+4*i+2}:{R0+4*i+3}]')
        e(f'v_cvt_pk_bf16_f32 v{R0+4}, v{R0}, v{R0+1}')
        e(f'v_cvt_pk_bf16_f32 v{R0+5}, v{R0+2}, v{R0+3}')
    tree()
    e(f'buffer_store_dwordx2 v[{R0+4}:{R0+5}], v1, s[24:27], s92 offen sc1')
    e(f'''
    s_branch {skip}
    {w1}:
    s_cmp_gt_u32 s{S_MT}, 7
    s_cbranch_scc1 {skip}
    s_lshr_b32 s18, s{S_MT}, 2
    s_lshl_b32 s19, s{S_CI}, 1
    s_add_u32 s18, s18, s19            ; head
    s_mul_i32 s19, s18, {KVP_HEAD}
    s_add_u32 s19, s19, {reg(L, R_KVP) + 8192}
    s_and_b32 s60, s{S_MT}, 3
    s_lshl_b32 s61, s60, 6
    s_add_u32 s19, s19, s61
    v_lshlrev_b32 v1, 4, v31
    ''')
    for i in range(16):
        e(f'buffer_load_dwordx4 v[{R0+4*i}:{R0+4*i+3}], v1, s[24:27], s19 offen sc1')
        if i < 15: e(f's_add_u32 s19, s19, {32*KVP_HEAD}')
    e(f'''
    v_and_b32 v3, 3, v2
    v_cmp_eq_u32 vcc, 0, v3
    v_cmp_eq_u32 s[60:61], 1, v3
    v_cndmask_b32 v3, 0, v24, s[60:61]
    v_lshlrev_b32 v1, 4, v2
    ''')
    tree()
    e(f'v_cndmask_b32 v{R0+4}, v3, v{R0+4}, vcc')
    e(f'v_cndmask_b32 v{R0+5}, v3, v{R0+5}, vcc')
    e(f'buffer_store_dwordx2 v[{R0+4}:{R0+5}], v1, s[24:27], s92 offen sc1')
    e(f'{skip}:')
    m.stamp('p1 hop1')
    KA = 32
    pl = m.lab('kpl'); ok = m.lab('kok')
    e(f'''
    s_mul_i32 s18, s54, 6144
    s_add_u32 s18, s18, {reg(L, R_KVR)}
    s_add_u32 s19, s18, 4096
    v_lshlrev_b32 v1, 4, v2
    s_mov_b32 s44, {f2u(1e-6):#x}
    s_mov_b32 s39, {1 << 16}
    {pl}:
    ''')
    for i in range(6):
        e(f'buffer_load_dwordx4 v[{KA+4*i}:{KA+4*i+3}], v1, s[24:27], s{18 + i//4} offen offset:{(i%4)*1024} sc1')
    for tb in range(4): e(f's_mov_b32 s{60+tb}, {tb*16*2048}')
    e('s_waitcnt vmcnt(0)'); q.clear()
    e(f'v_max3_u32 v3, v{KA}, v{KA+1}, v{KA+2}')
    for k in range(KA+3, KA+23, 2): e(f'v_max3_u32 v3, v3, v{k}, v{k+1}')
    e(f'''
    v_max_u32 v3, v3, v{KA+23}
    v_cmp_eq_u32 vcc, -1, v3
    s_nop 1
    s_cmp_eq_u64 vcc, 0
    s_cbranch_scc1 {ok}
    s_sub_u32 s39, s39, 1
    s_cmp_lg_u32 s39, 0
    s_cbranch_scc1 {pl}
    {ok}:
    ''')
    m.stamp('p1 gotkv')
    o_compute(e, range(4), KA, lambda tb: PK + tb*8, lambda tb: 64 + tb*24, lambda tb: 160 + tb*4)
    for tb in range(4):
        e(f'buffer_store_dwordx4 v[{160+tb*4}:{163+tb*4}], v{V_OS}, s[24:27], s{60+tb} offen sc1')
    if opts.get('fine'): m.stamp('p1 o')
    m.publish(L, E_B, f's_mov_b32 s18, s{S_MT}\ns_mov_b32 s19, s{S_CI}')
    m.stamp('p1 pubB')

def o_compute(e, tbs, KA, EB, NN, OUT):
    for tb in tbs:
        for sg in range(2):
            for bk in range(3):
                d = NN(tb) + (sg*3+bk)*4; a = KA + (sg*3+bk)*4; b = EB(tb) + sg*4
                e(f'v_mfma_f32_16x16x32_bf16 v[{d}:{d+3}], v[{a}:{a+3}], v[{b}:{b+3}], 0')
    for tb in tbs:
        for sg in range(2):
            z = NN(tb) + (sg*3+2)*4
            e(f'v_rcp_f32 v{z+1}, v{z+1}')
    for tb in tbs:
        zp = NN(tb) + 8; zm = NN(tb) + 20
        e(f'v_fma_f32 v{zp+2}, v{zp}, v{zp+1}, s44')
        e(f'v_fma_f32 v{zp+2}, v{zm}, v{zm+1}, v{zp+2}')
    for tb in tbs:
        zp = NN(tb) + 8
        e(f'v_rcp_f32 v{zp+2}, v{zp+2}')
    for tb in tbs:
        zp = NN(tb) + 8; zm = NN(tb) + 20
        e(f'v_mul_f32 v{zp}, v{zp+1}, v{zp+2}')
        e(f'v_mul_f32 v{zm}, v{zm+1}, v{zp+2}')
    for tb in tbs:
        n = NN(tb); zp = n + 8; zm = n + 20
        for i in range(4):
            e(f'v_pk_mul_f32 v[{n+2*i}:{n+2*i+1}], v[{n+2*i}:{n+2*i+1}], v[{zp}:{zp+1}] op_sel:[0,0] op_sel_hi:[1,0]')
        for i in range(4):
            e(f'v_pk_fma_f32 v[{n+2*i}:{n+2*i+1}], v[{n+12+2*i}:{n+12+2*i+1}], v[{zm}:{zm+1}], v[{n+2*i}:{n+2*i+1}] op_sel:[0,0,0] op_sel_hi:[1,0,1]')
    for tb in tbs:
        n = NN(tb); o = OUT(tb)
        for i in range(4): e(f'v_cvt_pk_bf16_f32 v{o+i}, v{n+2*i}, v{n+2*i+1}')
    for tb in tbs:
        o = OUT(tb)
        e(f'v_permlane16_swap_b32 v{o}, v{o+2}')
        e(f'v_permlane16_swap_b32 v{o+1}, v{o+3}')
```

```python
from asmlib import *
from common import *
from mega import *

XT = 16384; WG_ = 8192; STAGE = XT + 2 * WG_; NS = 5
QST = XT + WG_; QNS = 6; QB = 90112; QWRAP = 16384
LDW = 3 * D * 2
NBODY = 16; NSTEP = 32
ROWB = 352; HREG = 128 * ROWB

def acc(blk, tb): return 32 + (blk * 4 + tb) * 4
def xfrag(p, tb): return 128 + p * 32 + tb * 4
def wfrag(p, b): return 128 + p * 32 + 16 + b * 4
V_RAW = 208; V_PHI = 240; V_A = 248
CSA = 0; NMB = 24; PHH = 40; ONES = 48; CSP = 52
V_XOFF = 4; V_WOFF = 8; V_XRD = 12; V_WRD = 14
V_LW = 18; V_LR = 19; V_KV = 20; V_OS = 21; V_KZ = 22

def adv(reg, part):
    if part == 'a': return [f's_add_u32 s{reg}, s{reg}, {STAGE}', f's_cmp_eq_u32 s{reg}, {STAGE*NS}', f's_cselect_b32 s{reg}, 0, s{reg}']
    return [f's_add_u32 s{reg}, s{reg}, {QST}', f's_cmp_eq_u32 s{reg}, 163840', f's_cselect_b32 s{reg}, {QWRAP}, s{reg}']
def dma_x(L, part):
    aux = '' if L == 0 else 'sc1'
    g = []
    for j in range(4):
        ins = [f'buffer_load_dwordx4 v{V_XOFF+(j//2 if L else j)}, s[8:11], s30 offen offset:{j*1024} {aux} lds']
        if j == 0: ins = ['s_add_u32 m0, s34, s40', 's_nop 0'] + ins
        if j == 3: ins += adv(34, part) + [f's_add_u32 s30, s30, {2048 if L else 128}'] + (['s_and_b32 s30, s30, 0x7ff'] if L == 0 else [])
        g.append(ins)
    return g
def dma_w(L, part):
    g = []
    grps = [(32, 41), (33, 43)] if part == 'a' else [(32, 41)]
    first = 2048 if part == 'a' else 0
    for gi, (so, mb) in enumerate(grps):
        for j in range(2):
            ins = [f'buffer_load_dwordx4 v{V_WOFF+j}, s[12:15], s{so} offen offset:{j*1024} lds']
            if j == 0: ins = [f's_add_u32 m0, s35, s{mb}', 's_nop 0'] + ins
            if j == 1 and gi == len(grps) - 1:
                ins += adv(35, part) + [f's_add_u32 s32, s32, {64*LDW}']
                if L == 0: ins += [f's_cmp_eq_u32 s32, {D*LDW + first}', f's_cselect_b32 s32, {first}, s32']
                if part == 'a': ins += ['s_add_u32 s33, s32, 2048']
            g.append(ins)
    return g

def pre_w(m, layer, ntiles=2):
    e = m.e
    srd(e, 12, ptr=P_WQKV, size=D*LDW)
    e(f'''
    s_lshl_b32 s18, s20, 4
    s_lshl_b32 s19, s{S_CI}, 7
    ''')
    w_dma_offsets(e, V_WOFF, 2, 18, LDW, 19)
    e(f'''
    s_mul_i32 s32, s{S_MT}, {64*LDW if layer == 0 else 0}
    s_add_u32 s32, s32, 2048
    s_add_u32 s33, s32, 2048
    s_mov_b32 s35, 0
    s_lshl_b32 s41, s20, 11
    s_add_u32 s41, s41, {XT}
    s_add_u32 s43, s41, {WG_}
    ''')
    for u in range(ntiles):
        for ins in dma_w(layer, 'a'): e.ext(ins); m.q.issue(f'P1T{u}')
    m.p1_w = ntiles

def run(m, layer, next_pre):
    e = m.e; q = m.q; opts = m.opts.get('p1', {})
    L = layer
    if L == 0: srd(e, 8, ptr=P_X, size=S*D*2)
    else: srd(e, 8, ws_off=reg(0, R_X2) - BLK_BIAS, size=S*D*2 + BLK_BIAS)
    e(f'''
    s_lshl_b32 s23, s{S_MT}, 7        ; m0
    s_lshr_b32 s28, s20, 1            ; wm
    s_and_b32 s29, s20, 1             ; wh
    s_lshl_b32 s18, s20, 5
    s_add_u32 s18, s18, s23
    ''')
    x_dma_offsets(e, V_XOFF, 18, 2048, blocked=(L > 0))
    e(f's_mul_i32 s30, s{S_MT}, {128 if L == 0 else 0}\ns_mov_b32 s34, 0\ns_lshl_b32 s40, s20, 12')
    def rest_setup():
        e('s_lshl_b32 s18, s28, 13')
        (x_read_addr if L == 0 else x_read_addr_f)(e, V_XRD, 18)
        e(f's_mov_b32 s18, {XT}\ns_lshl_b32 s19, s29, 2')
        w_read_addr(e, V_WRD, [0, 1], 18, 19)
        e(f'''
        s_lshl_b32 s18, s{S_CI}, 1
        s_add_u32 s54, s18, s29            ; head
        s_lshl_b32 s18, s{S_MT}, 3
        s_lshl_b32 s19, s28, 2
        s_add_u32 s18, s18, s19
        s_lshl_b32 s18, s18, 11
        s_add_u32 s60, s18, {reg(L, R_STA)}
        v_lshlrev_b32 v23, 11, v31
        v_lshl_add_u32 v23, v30, 4, v23
        s_lshl_b32 s18, s54, 5
        v_add_u32 v1, s18, v30
        v_lshlrev_b32 v24, 4, v1
        v_mov_b32 v16, v24
        v_mul_u32_u24 v1, {CS_PLANE}, v31
        v_add_u32 v24, v24, v1
        s_mov_b32 s62, {WS_CS}
        s_mov_b32 s63, {WS_CS + 1024*16}
        s_mov_b32 s55, {WS_CS + 2048*16}
        v_lshlrev_b32 v25, 8, v31
        v_lshl_add_u32 v25, v30, 1, v25
        s_lshl_b32 s45, s54, 11
        s_lshl_b32 s18, s28, 6
        v_add_u32 v1, s18, v30
        v_mul_u32_u24 v1, {ROWB}, v1
        v_lshrrev_b32 v3, 2, v30
        v_xor_b32 v3, v3, v31
        v_lshl_add_u32 v1, v3, 3, v1
        s_mul_i32 s18, s29, {HREG}
        v_add_u32 v{V_LW}, s18, v1
        v_bfe_u32 v1, v2, 2, 2
        v_lshl_add_u32 v1, v31, 2, v1
        v_mul_u32_u24 v1, {ROWB}, v1
        v_and_b32 v3, 3, v2
        v_xor_b32 v3, v3, v31
        v_lshl_add_u32 v1, v3, 3, v1
        v_add_u32 v{V_LR}, s18, v1
        s_lshl_b32 s18, s{S_MT}, 5
        s_add_u32 s18, s18, s54
        s_mul_i32 s18, s18, {KVP_HEAD}
        s_add_u32 s18, s18, {reg(L, R_KVP)}
        s_lshl_b32 s19, s28, 7
        s_add_u32 s19, s19, s18
        s_add_u32 s19, s19, 8192
        v_lshlrev_b32 v1, 4, v31
        v_add_u32 v{V_KZ}, s19, v1
        s_lshl_b32 s19, s28, 12
        s_add_u32 s18, s18, s19
        v_lshlrev_b32 v1, 4, v2
        v_add_u32 v{V_KV}, s18, v1
        s_lshl_b32 s18, s28, 6
        s_add_u32 s18, s18, s23
        s_lshl_b32 s18, s18, 11
        s_lshl_b32 s19, s54, 10
        s_add_u32 s18, s18, s19
        s_add_u32 s18, s18, {reg(L, R_O)}
        ''')
        frag_store_addr(e, V_OS, 18)
        e(f'''
        s_mov_b32 s36, 0
        s_mov_b32 s42, 0
        s_mov_b32 s50, {STAGE}
        s_mov_b32 s51, {(-(NS-1)*STAGE) & 0xffffffff:#x}
        ''')
        srd(e, 56, ptr=P_PHI, size=65536)
        e(f'''
        s_lshr_b32 s18, s{S_MT}, 3
        s_lshl_b32 s19, s{S_CI}, 1
        s_add_u32 s18, s18, s19
        s_mul_i32 s44, s18, 6144
        s_bfe_u32 s18, s{S_MT}, 0x10002
        s_mul_i32 s18, s18, 3072
        s_add_u32 s44, s44, s18
        s_and_b32 s18, s{S_MT}, 1
        s_lshl_b32 s18, s18, 10
        s_add_u32 s44, s44, s18
        s_and_b32 s18, s{S_MT}, 2
        s_lshl_b32 s18, s18, 2
        s_add_u32 s44, s44, s18
        s_lshr_b32 s18, s{S_MT}, 2
        s_add_u32 s18, s18, s19
        s_mul_i32 s39, s18, 6144
        s_bfe_u32 s18, s{S_MT}, 0x10001
        s_mul_i32 s18, s18, 3072
        s_add_u32 s39, s39, s18
        s_and_b32 s18, s{S_MT}, 1
        s_lshl_b32 s18, s18, 3
        s_add_u32 s39, s39, s18
        s_add_u32 s39, s39, 2048
        s_lshr_b32 s18, s{S_MT}, 3
        s_lshl_b32 s18, s18, 2
        s_add_u32 s18, s18, s20
        s_add_u32 s92, s44, {reg(L, R_KVR)}
        s_add_u32 s93, s39, {reg(L, R_KVR)}
        s_cmp_eq_u32 s18, 1
        s_cselect_b32 s44, s93, s92
        ''')
    csld = lambda b, v=24: [f'buffer_load_dwordx4 a[{CSA+4*b}:{CSA+4*b+3}], v{v}, s[24:27], s{[62,63,55][b//2]} offen offset:{(b%2)*256} sc1']
    const = [csld(b) for b in range(2 if L == 0 else 0, 6)]
    for fb in range(2):
        for i in range(8):
            d = (i & 3) + 16 * (i >> 2)
            dst = f'v{V_PHI + fb*4 + i//2}' if i % 2 == 0 else f'a{PHH + fb*4 + i//2}'
            const.append([f'buffer_load_ushort {dst}, v25, s[56:59], s45 offen offset:{d*64 + fb*32}'])
    small = stats_loads(lambda o: f'v[{V_RAW+o}:{V_RAW+o+3}]', 23, 60)
    if L > 0:
        rest_setup()
        for ins in const: e.ext(ins); q.issue('const')
        m.stamp('p1 wait')
        m.wait(L - 1, E_E, f's_mov_b32 s18, s{S_MT}', 16)
    else:
        small = const + small
    m.stamp('p1 go')
    nw = m.p1_w
    flat = []
    for u in range(NBODY):
        xs = [(ins, f'P1T{u}', 2*(u - NS) + 1) for ins in dma_x(L, 'a')]
        ws = [(ins, f'P1T{u}', 2*(u - NS) + 1) for ins in dma_w(L, 'a')] if u >= nw else []
        flat += xs + ws
    def take(step, n):
        out = []
        while flat and len(out) < n and flat[0][2] <= step: out.append(flat.pop(0))
        return out
    n0 = sum(1 for f in flat if int(f[1][3:]) < max(2, min(nw, 4)))
    for ins, tag, _ in take(-1, n0): e.ext(ins); q.issue(tag)
    if L == 0:
        e(f'''
        s_lshl_b32 s18, s{S_CI}, 3
        s_add_u32 s18, s18, s23
        s_lshl_b32 s19, s20, 1
        s_add_u32 s48, s18, s19
        s_lshl_b32 s18, s48, 11
        v_lshlrev_b32 v1, 5, v2
        ''')
        for r in range(2):
            for h in range(2):
                e(f'buffer_load_dwordx4 v[{V_RAW+r*8+h*4}:{V_RAW+r*8+h*4+3}], v1, s[8:11], s18 offen offset:{r*2048 + h*16}'); q.issue('xr')
        if m.opts.get('ctouch', 1): e.ext(m.code_touch('a64')); q.issue('ct')
        for x in m.tag_write(): e(x)
        rest_setup()
        e(f'''
        v_mov_b32 v1, 0x3f803f80
        v_accvgpr_write_b32 a{ONES}, v1
        v_accvgpr_write_b32 a{ONES+1}, v1
        v_accvgpr_write_b32 a{ONES+2}, v1
        v_accvgpr_write_b32 a{ONES+3}, v1
        s_lshr_b32 s18, s{S_MT}, 2
        s_mul_i32 s18, s18, {CS_PLANE}
        s_and_b32 s19, s{S_MT}, 3
        s_lshl_b32 s19, s19, 2
        s_add_u32 s18, s18, s19
        v_add_u32 v16, s18, v16
        s_lshr_b32 s18, s48, 4
        s_lshl_b32 s18, s18, 11
        s_and_b32 s19, s48, 15
        s_lshl_b32 s19, s19, 4
        s_add_u32 s18, s18, s19
        s_add_u32 s48, s18, {reg(0, R_STA)}
        v_lshrrev_b32 v17, 3, v2
        v_lshlrev_b32 v17, 8, v17
        v_bfe_u32 v1, v2, 2, 1
        v_lshl_add_u32 v17, v1, 3, v17
        s_lshl_b32 s49, s{S_MT}, 8
        s_add_u32 s49, s49, {flag_off(0, E_S, 0)}
        s_lshl_b32 s52, s{S_CI}, 8
        s_add_u32 s52, s52, {flag_off(0, E_CSQ, 0)}
        v_lshlrev_b32 v28, 2, v30
        ''')
    def mfma(blk, b, tb, p, c=None):
        a = acc(blk, tb)
        cc = f'v[{a}:{a+3}]' if c is None else c
        return f'v_mfma_f32_16x16x32_bf16 v[{a}:{a+3}], v[{wfrag(p,b)}:{wfrag(p,b)+3}], v[{xfrag(p,tb)}:{xfrag(p,tb)+3}], {cc}'
    def reads(p, s, nbk):
        x = lambda tb: f'ds_read_b128 v[{xfrag(p,tb)}:{xfrag(p,tb)+3}], v{V_XRD+s} offset:{tb*2048}'
        w = lambda b, h: f'ds_read_b64_tr_b16 v[{wfrag(p,b)+2*h}:{wfrag(p,b)+2*h+1}], v{V_WRD+(b&1)} offset:{(b>>1)*WG_ + (32*s+4*h)*128}'
        g = [x(0), w(0, 0), w(0, 1), x(1), x(2), x(3)]
        for b in range(1, nbk): g += [w(b, 0), w(b, 1)]
        return g
    needs = [max(2 if tb == 0 else 2 + tb, 5 + 2*b if b else 0) for b in range(4) for tb in range(4)]
    n = q.wait_for({'P1T0'})
    e(f's_waitcnt vmcnt({n})')
    e('s_barrier')
    m.stamp('p1 main')
    e.ext(reads(0, 0, 4))
    extra = []
    for i in range(8):
        extra.append(f'v_accvgpr_read_b32 v26, a{PHH+i}')
        extra.append(f'v_lshl_or_b32 v{V_PHI+i}, v26, 16, v{V_PHI+i}')
    extra += stats_t(V_RAW, V_A, V_RAW + 8, None)
    for tb in range(4): extra.append(f'v_rcp_f32 v{V_A+tb}, v{V_A+tb}')
    for tb in range(4):
        for i in range(4): extra.append(f'v_accvgpr_write_b32 a{NMB+4*tb+i}, v{V_RAW+8+tb}')
    TW = 27
    def cs_pack(C0, n):
        o = [f'v_accvgpr_read_b32 v{C0+i}, a{CSP+4*i}' for i in range(n)]
        o += [f'v_cvt_pk_bf16_f32 v{C0+4+i}, v{C0+i}, v{C0+i}' for i in range(n)]
        o += [f'v_and_b32 v{C0+4+i}, 0xffff0000, v{C0+4+i}' for i in range(n)]
        o += [f'v_sub_f32 v{C0+4+i}, v{C0+i}, v{C0+4+i}' for i in range(n)]
        o += [f'v_cvt_pk_bf16_f32 v{C0+4+i}, v{C0+i}, v{C0+4+i}' for i in range(n)]
        return o
    early = []
    if L == 0:
        A0 = V_RAW + 16; T0 = V_RAW + 20
        early += [f'v_mov_b32 v{A0+i}, 0' for i in range(4)]
        for d in range(8):
            for r in range(2):
                x = V_RAW + r*8 + d; t0 = T0 + r*2
                early += [f'v_lshlrev_b32 v{t0}, 16, v{x}', f'v_and_b32 v{t0+1}, 0xffff0000, v{x}']
            for r in range(2):
                t0 = T0 + r*2
                early += [f'v_add_f32 v{A0+2*r}, v{A0+2*r}, v{t0}', f'v_fmac_f32 v{A0+2*r+1}, v{t0}, v{t0}',
                          f'v_add_f32 v{A0+2*r}, v{A0+2*r}, v{t0+1}', f'v_fmac_f32 v{A0+2*r+1}, v{t0+1}, v{t0+1}']
        for qp in ('[1,0,3,2]', '[2,3,0,1]'):
            early += [f'v_add_f32_dpp v{A0+i}, v{A0+i}, v{A0+i} quad_perm:{qp} row_mask:0xf bank_mask:0xf' for i in range(4)]
        early += cs_pack(V_RAW + 24, 2)
    SENT = 252
    sent = []
    if L == 0:
        for LL in range(2):
            for k in range(4):
                g = [f'buffer_store_dwordx4 v[{SENT}:{SENT+3}], v29, s[24:27], s48 offen offset:{k*1024} sc1']
                if k == 0 and LL == 0:
                    g = [f'v_mov_b32 v{SENT+i}, -1' for i in range(4)] + ['v_lshlrev_b32 v29, 4, v2', 's_lshl_b32 s18, s2, 2', 's_add_u32 s18, s18, s20',
                         's_lshl_b32 s18, s18, 12', f's_add_u32 s48, s18, {reg(0, R_PX)}'] + g
                if k == 3 and LL == 0: g += [f's_add_u32 s48, s48, {LAYER_STRIDE}']
                sent.append(g)
        sent.append([f'buffer_store_dwordx2 v[{SENT}:{SENT+1}], v29, s[24:27], s44 offen sc1', f's_add_u32 s44, s44, {LAYER_STRIDE}'])
        sent.append([f'buffer_store_dwordx2 v[{SENT}:{SENT+1}], v29, s[24:27], s44 offen sc1'])
    bodies = []
    for u in range(NBODY):
        B = []
        for s in range(2):
            t = 2 * u + s; p = s
            last = (t == NSTEP - 1)
            ms = [mfma(2 + b, b, tb, p, '0' if t == 0 else None) for b in range(4) for tb in range(4)]
            pre = []; bar = []; rd = []
            if not last:
                if s == 1:
                    pre = [f's_add_u32 s36, s36, {STAGE}', f's_cmp_eq_u32 s36, {STAGE*NS}', 's_cselect_b32 s42, s51, s50',
                           's_cselect_b32 s36, 0, s36', f'v_add_u32 v{V_XRD}, s42, v{V_XRD}'] + \
                          [f'v_add_u32 v{V_WRD+i}, s42, v{V_WRD+i}' for i in range(2)]
                    tags = {f'P1T{u+1}'} | ({'small'} if t == TW else set())
                    if L == 0 and t == 1: tags |= {'xr'}
                    if L == 0 and t == 13: tags |= {'tag', 'hand'}
                    if L == 0 and t == 19: tags |= {'flg'}
                    n = q.wait_for(tags)
                    bar = [f's_waitcnt vmcnt({n})', 's_barrier']
                    if L == 0 and t == 13:
                        bar += m.tag_check(26, 27)
                        bar += m.signal(0, E_S, f's_mov_b32 s18, s{S_MT}\ns_mov_b32 s19, s{S_CI}')
                        bar += m.signal(0, E_CSQ, f's_mov_b32 s18, s{S_CI}\ns_mov_b32 s19, s{S_MT}')
                    if L == 0 and t == 19:
                        bar += m.soft_check(49, 28, 26) + m.soft_check(52, 28, 27)
                else:
                    pre = [f'v_add_u32 v{V_XRD+1}, s42, v{V_XRD+1}']
                rd = reads(p ^ 1, s ^ 1, 4)
            dm = []
            for ins, tag, _ in take(t, opts.get('q', 6) if t < 10 else 4): dm.append(ins); q.issue(tag)
            if L == 0 and t == 8: dm.append(m.tag_load(26, 27)); q.issue('tag')
            if L == 0 and t == 17:
                dm.append(m.soft_load(49, 28, 26)); q.issue('flg'); dm.append(m.soft_load(52, 28, 27)); q.issue('flg')
            if t >= 9 and sent:
                dm.append(sent.pop(0)); q.issue('sent')
            if small and t >= (20 if L == 0 else 23):
                k = max(0, (7 if L == 0 else 3) - len(dm))
                for ins in small[:k]: dm.append(ins); q.issue('small')
                small = small[k:]
            if t == TW: assert not small
            ex = []
            if t >= TW and extra:
                k = (len(extra) + NSTEP - 1 - t) // (NSTEP - t)
                ex = extra[:k]; extra = extra[k:]
            if early and 2 <= t <= 8:
                k = (len(early) + 8 - t) // (9 - t)
                ex = early[:k]; early = early[k:]
            if opts.get('nodma') and 8 <= t < 21: dm = []
            if opts.get('noread'): rd = []
            if opts.get('nobar'): bar = bar[:1]
            step = build_step(ms, needs, 12, pre, bar, rd, dm, ex, nb=(3 if s == 1 else 1))
            if L == 0 and t < 2:
                l1 = m.lab('cq'); le = m.lab('cqe')
                step += ['s_cmp_lg_u32 s28, 0', f's_cbranch_scc1 {l1}']
                for wm in range(2):
                    for i in range(2):
                        d = CSP + 4*i; b = 2*wm + i
                        step.append(f'v_mfma_f32_16x16x32_bf16 a[{d}:{d+3}], a[{ONES}:{ONES+3}], v[{wfrag(p,b)}:{wfrag(p,b)+3}], ' + ('0' if t == 0 else f'a[{d}:{d+3}]'))
                    if wm == 0: step += [f's_branch {le}', f'{l1}:']
                step += [f'{le}:']
            if L == 0 and t == 8:
                l1 = m.lab('cw'); le = m.lab('cwe')
                A0 = V_RAW + 16; C0 = V_RAW + 24
                step += ['s_mov_b32 exec_lo, 0x11111111', 's_mov_b32 exec_hi, 0x11111111']
                for r in range(2): step.append(f'buffer_store_dwordx2 v[{A0+2*r}:{A0+2*r+1}], v17, s[24:27], s48 offen offset:{r*16} sc1')
                step += ['s_mov_b64 exec, 0xffff', 's_cmp_lg_u32 s28, 0', f's_cbranch_scc1 {l1}']
                for wm in range(2):
                    for i in range(2):
                        b = 2 + 2*wm + i
                        step.append(f'buffer_store_dword v{C0+4+i}, v16, s[24:27], s{[62,63,55][b//2]} offen offset:{(b%2)*256} sc1')
                    if wm == 0: step += [f's_branch {le}', f'{l1}:']
                step += [f'{le}:', 's_mov_b64 exec, -1']
                for i in range(4): q.issue('hand')
            B += step
        bodies.append(B)
    assert not flat and not extra and not small and not early and not sent, (len(flat), len(extra), len(small))
    if opts.get('lst'):
        cuts = opts['lst']
        prev = 0
        for c in cuts + [NBODY]:
            e.ext(loopify(bodies[prev:c], m.lab('p1L'), 38)); prev = c
            if c < NBODY:
                sv = list(q.q); e('s_waitcnt lgkmcnt(0)'); m.stamp(f'p1 b{c}'); q.q = sv
    else:
        e.ext(loopify(bodies, m.lab('p1L'), 38, m.opts.get('unroll', 1)))
    def corr(blks):
        return [f'v_mfma_f32_16x16x32_bf16 v[{acc(b,tb)}:{acc(b,tb)+3}], a[{CSA+4*b}:{CSA+4*b+3}], a[{NMB+4*tb}:{NMB+4*tb+3}], v[{acc(b,tb)}:{acc(b,tb)+3}]'
                for b in blks for tb in range(4)]
    e.ext(corr(range(2, 6)))
    e('s_barrier')
    m.stamp('p1 epi')
    e(f'''
    s_mul_i32 s30, s{S_MT}, {128 if L == 0 else 0}
    s_mul_i32 s32, s{S_MT}, {64*LDW if L == 0 else 0}
    v_mov_b32 v23, v24
    s_mov_b32 s34, {QB}
    s_mov_b32 s35, {QB}
    s_mov_b32 s36, {QB}
    s_mov_b32 s42, 0
    s_mov_b32 s50, {QST}
    s_mov_b32 s51, {(QWRAP - (163840 - QST)) & 0xffffffff:#x}
    s_lshl_b32 s18, s28, 13
    s_add_u32 s18, s18, {QB}
    ''')
    (x_read_addr if L == 0 else x_read_addr_f)(e, V_XRD, 18)
    e(f's_mov_b32 s18, {XT + QB}\ns_lshl_b32 s19, s29, 2')
    w_read_addr(e, V_WRD, [0, 1], 18, 19)
    qflat = []
    for u in range(NBODY):
        qflat += [(ins, f'Q{u}', 2*(u - QNS) + 1) for ins in dma_x(L, 'b') + dma_w(L, 'b')]
    def weave(lines, every, n):
        k = 0
        for i, l in enumerate(lines):
            e(l)
            if i % every == every - 1 and k < n:
                ins, tag, _ = qflat.pop(0); e.ext(ins); q.issue(tag); k += 1
        while k < n:
            ins, tag, _ = qflat.pop(0); e.ext(ins); q.issue(tag); k += 1
    def capture(fn):
        keep = m.e; cap = Asm(); m.e = cap
        fn()
        m.e = keep
        return cap.L
    e(f's_mov_b32 s44, {f2u(LOG2E):#x}')
    e(f's_mov_b32 s45, {f2u(LOG2E):#x}')
    def bc(r): return (f'v[{r}:{r+1}]', 0) if r % 2 == 0 else (f'v[{r-1}:{r}]', 1)
    for i in range(4): e(f'v_mov_b32 v{24+i}, 0x3f803f80')
    PB = 128; PP = 144; MX = 176; EP = 192; PK = 208
    def feat(mi, part=3):
      e = m.e
      if part & 1:
        for tb in range(4):
            ar, sl = bc(V_A + tb)
            for db in range(2):
                a = acc(2*mi + db, tb)
                for h in range(2):
                    e(f'v_pk_mul_f32 v[{a+2*h}:{a+2*h+1}], v[{a+2*h}:{a+2*h+1}], {ar} op_sel:[0,{sl}] op_sel_hi:[1,{sl}]')
        for tb in range(4):
            for db in range(2):
                a = acc(2*mi + db, tb)
                for h in range(2):
                    e(f'v_cvt_pk_bf16_f32 v{PB+tb*4+db*2+h}, v{a+2*h}, v{a+2*h+1}')
        for tb in range(4):
            for fb in range(2):
                p = PP + tb*8 + fb*4
                e(f'v_mfma_f32_16x16x32_bf16 v[{p}:{p+3}], v[{V_PHI+fb*4}:{V_PHI+fb*4+3}], v[{PB+tb*4}:{PB+tb*4+3}], 0')
        for tb in range(4):
            p = PP + tb*8; mx = MX + 2*tb
            e(f'v_max3_f32 v{mx}, v{p}, v{p+1}, v{p+2}')
            e(f'v_max3_f32 v{mx+1}, -v{p}, -v{p+1}, -v{p+2}')
        for k in (3, 5):
            for tb in range(4):
                p = PP + tb*8; mx = MX + 2*tb
                e(f'v_max3_f32 v{mx}, v{mx}, v{p+k}, v{p+k+1}')
                e(f'v_max3_f32 v{mx+1}, v{mx+1}, -v{p+k}, -v{p+k+1}')
        for tb in range(4):
            p = PP + tb*8; mx = MX + 2*tb
            e(f'v_max_f32 v{mx}, v{mx}, v{p+7}')
            e(f'v_max_f32_e64 v{mx+1}, v{mx+1}, -v{p+7}')
        for tb in range(4): e(f'v_permlane32_swap_b32 v{MX+2*tb}, v{MX+2*tb+1}')
        for tb in range(4): e(f'v_max_f32 v{MX+2*tb}, v{MX+2*tb}, v{MX+2*tb+1}')
        for pr in range(2): e(f'v_permlane16_swap_b32 v{MX+4*pr}, v{MX+4*pr+2}')
        for pr in range(2): e(f'v_max_f32 v{MX+4*pr}, v{MX+4*pr}, v{MX+4*pr+2}')
        for pr in range(2): e(f'v_mul_f32 v{MX+4*pr}, s44, v{MX+4*pr}')
        for pr in range(2): e(f'v_mov_b32 v{MX+4*pr+2}, v{MX+4*pr}')
        for pr in range(2): e(f'v_permlane16_swap_b32 v{MX+4*pr}, v{MX+4*pr+2}')
        for tb in range(4): e(f'v_mov_b32 v{MX+2*tb+1}, v{MX+2*tb}')
        for tb in range(4): e(f'v_permlane32_swap_b32 v{MX+2*tb}, v{MX+2*tb+1}')
      if part & 2:
        for tb in range(4):
            p = PP + tb*8; mx = MX + 2*tb
            for i in range(4):
                e(f'v_pk_fma_f32 v[{EP+2*i}:{EP+2*i+1}], v[{p+2*i}:{p+2*i+1}], s[44:45], v[{mx}:{mx+1}] op_sel:[0,0,0] op_sel_hi:[1,1,0] neg_lo:[0,0,1] neg_hi:[0,0,1]')
            for i in range(4):
                e(f'v_pk_fma_f32 v[{EP+8+2*i}:{EP+8+2*i+1}], v[{p+2*i}:{p+2*i+1}], s[44:45], v[{mx}:{mx+1}] op_sel:[0,0,1] op_sel_hi:[1,1,1] neg_lo:[1,0,1] neg_hi:[1,0,1]')
            for i in range(16): e(f'v_exp_f32 v{EP+i}, v{EP+i}')
            for i in range(8): e(f'v_cvt_pk_bf16_f32 v{PK+tb*8+i}, v{EP+2*i}, v{EP+2*i+1}')
    weave(capture(lambda: feat(1)), 10, 18)
    SS = 144
    for tb in range(4):
        for sg in range(2):
            r = SS + (tb*2+sg)*4
            e(f'v_mfma_f32_16x16x32_bf16 v[{r}:{r+3}], v[24:27], v[{PK+tb*8+sg*4}:{PK+tb*8+sg*4+3}], 0')
    for tb in range(4):
        for sg in range(2):
            for fb in range(2):
                r = PK + tb*8 + sg*4 + fb*2
                e(f'ds_write_b64 v{V_LW}, v[{r}:{r+1}] offset:{tb*16*ROWB + sg*64 + fb*32}')
    for tb in range(4):
        for sg in range(2):
            r = SS + (tb*2+sg)*4
            e(f'v_rcp_f32 v{r}, v{r}')
    for tb in range(4):
        for sg in range(2):
            r = SS + (tb*2+sg)*4
            e(f'v_mul_f32 v{r+2}, v{r}, v{V_A+tb}')
            e(f'v_cvt_pk_bf16_f32 v{r}, v{r}, 0')
            e(f'v_mov_b32 v{r+1}, 0')
    for tb in range(4):
        for sg in range(2):
            r = SS + (tb*2+sg)*4
            t = 176 + sg*8
            for db in range(2):
                a = acc(4 + db, tb)
                for h in range(2):
                    e(f'v_pk_mul_f32 v[{t+db*4+2*h}:{t+db*4+2*h+1}], v[{a+2*h}:{a+2*h+1}], v[{r+2}:{r+3}] op_sel:[0,0] op_sel_hi:[1,0]')
            o = 192 + (tb % 2) * 8 + sg * 4
            for i in range(4): e(f'v_cvt_pk_bf16_f32 v{o+i}, v{t+2*i}, v{t+2*i+1}')
            for db in range(2):
                e(f'ds_write_b64 v{V_LW}, v[{o+2*db}:{o+2*db+1}] offset:{tb*16*ROWB + 128 + sg*64 + db*32}')
            e(f'ds_write_b64 v{V_LW}, v[{r}:{r+1}] offset:{tb*16*ROWB + 256 + sg*32}')
    if opts.get('fine'): m.stamp('p1 k.lds')
    e('s_waitcnt lgkmcnt(0)')
    e('s_barrier')
    if opts.get('fine'): m.stamp('p1 k.bar')
    e(f's_lshl_b32 s18, s28, 6')
    e(f'v_add_u32 v28, s18, v{V_LR}')
    e(f's_lshl_b32 s18, s28, 5')
    e(f'v_add_u32 v29, s18, v{V_LR}')
    FA = 128
    for ks in range(4):
        f = FA + ks * 20
        for h in range(2):
            ro = (ks*32 + h*16) * ROWB
            for fb in range(2): e(f'ds_read_b64_tr_b16 v[{f+fb*4+2*h}:{f+fb*4+2*h+1}], v28 offset:{ro + fb*32}')
            for db in range(2): e(f'ds_read_b64_tr_b16 v[{f+8+db*4+2*h}:{f+8+db*4+2*h+1}], v28 offset:{ro + 128 + db*32}')
            e(f'ds_read_b64_tr_b16 v[{f+16+2*h}:{f+16+2*h+1}], v29 offset:{ro + 256}')
    KV = acc(2, 0)
    kvm = []
    for ks in range(4):
        f = FA + ks * 20
        for fb in range(2):
            for bk in range(3):
                d = KV + (fb*3+bk)*4
                kvm.append(f'v_mfma_f32_16x16x32_bf16 v[{d}:{d+3}], v[{f+fb*4}:{f+fb*4+3}], v[{f+8+bk*4}:{f+8+bk*4+3}], ' + ('0' if ks == 0 else f'v[{d}:{d+3}]'))
    e('s_waitcnt lgkmcnt(15)'); e.ext(kvm[:6])
    e('s_waitcnt lgkmcnt(10)'); e.ext(kvm[6:12])
    e(f's_waitcnt vmcnt({q.wait_for({"Q0"})}) lgkmcnt(0)'); e('s_barrier')
    r0 = reads(0, 0, 2)
    weave([x for i, mm in enumerate(kvm[12:]) for x in ([mm] + r0[i:i+1])], 2, opts.get('qpre', 6))
    for fb in range(2):
        for db in range(2):
            d = KV + (fb*3+db)*4
            e(f'buffer_store_dwordx4 v[{d}:{d+3}], v{V_KV}, s[24:27], 0 offen offset:{(fb*2+db)*1024} sc1')
    e('s_mov_b32 exec_lo, 0x00010001')
    e('s_mov_b32 exec_hi, 0x00010001')
    for fb in range(2):
        d = KV + (fb*3+2)*4
        e(f'buffer_store_dwordx4 v[{d}:{d+3}], v{V_KZ}, s[24:27], 0 offen offset:{fb*64} sc1')
    e('s_mov_b64 exec, -1')
    for i in range(6): q.issue('kvst')
    m.stamp('p1 kvst')
    R0 = 64
    HSET, HOPL, HRED, HST = hop_code(m, L, R0)
    e.ext(HSET)
    e(f's_lshl_b32 s49, s{S_CI}, 8\ns_add_u32 s49, s49, {flag_off(L, E_A1, 0)}\ns_lshl_b32 s52, s{S_CI}, 8\ns_add_u32 s52, s52, {flag_off(0, E_A2, 0)}\nv_lshlrev_b32 v28, 2, v30')
    T_SIG, T_LD, T_CHK, T_RED = opts.get('tq', (9, 15, 21, 26))
    bodies = []
    for u in range(NBODY):
        B = []
        for s in range(2):
            t = 2 * u + s; p = s
            last = (t == NSTEP - 1)
            ms = [mfma(b, b, tb, p, '0' if t == 0 else None) for b in range(2) for tb in range(4)]
            pre = []; bar = []; rd = []; ex = []
            if not last:
                if s == 1:
                    pre = [f'v_add_u32 v{V_XRD}, s42, v{V_XRD}'] + [f'v_add_u32 v{V_WRD+i}, s42, v{V_WRD+i}' for i in range(2)]
                    tags = {f'Q{u+1}'}
                    if t == T_SIG: tags |= {'kvst', 'hq'}
                    if t == T_CHK: tags |= {'flg'}
                    if t == 27: tags |= {'flg2'}
                    if t == 29: tags |= {'csq'}
                    n = q.wait_for(tags)
                    bar = [f's_waitcnt vmcnt({n})', 's_barrier']
                    if t == T_SIG:
                        bar += m.signal(L, E_A1, f's_mov_b32 s18, s{S_CI}\ns_mov_b32 s19, s{S_MT}')
                        if L == 0: bar += m.signal(0, E_A2, f's_mov_b32 s18, s{S_CI}\ns_mov_b32 s19, s{S_MT}')
                    if t == T_CHK:
                        bar += m.soft_check(49, 28, 26)
                    if t == 27 and L == 0: bar += m.soft_check(52, 28, 27)
                else:
                    pre = [f'v_add_u32 v{V_XRD+1}, s42, v{V_XRD+1}']
                    ex = [f's_add_u32 s36, s36, {QST}', 's_cmp_eq_u32 s36, 163840', 's_cselect_b32 s42, s51, s50', f's_cselect_b32 s36, {QWRAP}, s36']
                rd = reads(p ^ 1, s ^ 1, 2)
            dm = []
            k = 0
            if t == T_RED: nhop = q.wait_for({'hop'})
            while qflat and k < (6 if t < 2 else 3) and qflat[0][2] <= t:
                ins, tag, _ = qflat.pop(0); dm.append(ins); q.issue(tag); k += 1
            if t == T_LD: dm.append(m.soft_load(49, 28, 26)); q.issue('flg')
            if t == T_CHK:
                for ins in HOPL: dm.append(ins); q.issue('hop')
            head = []
            if t == T_RED: head = [f's_waitcnt vmcnt({nhop})']
            if t in (T_RED, T_RED + 1): ex = ex + (HRED[:len(HRED)//2] if t == T_RED else HRED[len(HRED)//2:])
            if L == 0 and t == 25: dm.append(m.soft_load(52, 28, 27)); q.issue('flg2')
            if L == 0 and t == 27:
                for b in range(2): dm.append(csld(b, 23)); q.issue('csq')
            if L == 0 and t == 22:
                dm.append([f's_mov_b32 s4, s{P_WO}', f's_mov_b32 s5, s{P_WO+1}', f's_mov_b32 s6, {D*D*2}', 's_mov_b32 s7, 0x00020000', 's_lshl_b32 s39, s2, 2',
                           's_add_u32 s39, s39, s20', 's_lshl_b32 s39, s39, 11', 'v_lshlrev_b32 v0, 7, v30', 'buffer_load_dword a64, v0, s[4:7], s39 offen']); q.issue('touch')
            if L == 0 and t == 3: ex = ex + cs_pack(V_RAW + 24, 1)
            step = head + build_step(ms, needs[:8], 8, pre, bar, rd, dm, ex, nb=(2 if s == 1 else 1))
            if t == T_RED + 1: step += HST; q.issue('hst')
            if L == 0 and t < 2:
                l1 = m.lab('cq'); le = m.lab('cqe')
                step += ['s_cmp_lg_u32 s28, 0', f's_cbranch_scc1 {l1}']
                for wm in range(2):
                    step.append(f'v_mfma_f32_16x16x32_bf16 a[{CSP}:{CSP+3}], a[{ONES}:{ONES+3}], v[{wfrag(p,wm)}:{wfrag(p,wm)+3}], ' + ('0' if t == 0 else f'a[{CSP}:{CSP+3}]'))
                    if wm == 0: step += [f's_branch {le}', f'{l1}:']
                step += [f'{le}:']
            if L == 0 and t == 3:
                step += ['s_lshl_b32 s18, s28, 8', 's_add_u32 s18, s18, s62', 's_mov_b64 exec, 0xffff',
                         f'buffer_store_dword v{V_RAW+28}, v16, s[24:27], s18 offen sc1', 's_mov_b64 exec, -1']
                q.issue('hq')
            B += step
        bodies.append(B)
    assert not qflat
    if opts.get('qlst'):
        for i, bb in enumerate(bodies):
            e.ext(bb)
            if i % 2 == 1:
                sv = list(q.q); e('s_waitcnt lgkmcnt(0)'); m.stamp(f'p1 q{i+1}'); q.q = sv
    else:
        e.ext(loopify(bodies, m.lab('p1Q'), 38, 1))
    e.ext(corr(range(2)))
    e('s_barrier')
    m.stamp('p1 qdone')
    pre = Pre(m, next_pre)
    pre.emit_setup()
    pre.weave(capture(lambda: feat(0)), 12)
    m.stamp('p1 featq')
    KA = 32
    pl = m.lab('kpl'); ok = m.lab('kok')
    e(f'''
    s_mul_i32 s18, s54, 6144
    s_add_u32 s18, s18, {reg(L, R_KVR)}
    s_add_u32 s19, s18, 4096
    v_lshlrev_b32 v1, 4, v2
    s_mov_b32 s44, {f2u(1e-6):#x}
    s_mov_b32 s39, {1 << 16}
    {pl}:
    ''')
    for i in range(6):
        e(f'buffer_load_dwordx4 v[{KA+4*i}:{KA+4*i+3}], v1, s[24:27], s{18 + i//4} offen offset:{(i%4)*1024} sc1')
    for tb in range(4): e(f's_mov_b32 s{60+tb}, {tb*16*2048}')
    e('s_waitcnt vmcnt(0)'); q.clear()
    e(f'v_max3_u32 v3, v{KA}, v{KA+1}, v{KA+2}')
    for k in range(KA+3, KA+23, 2): e(f'v_max3_u32 v3, v3, v{k}, v{k+1}')
    e(f'''
    v_max_u32 v3, v3, v{KA+23}
    v_cmp_eq_u32 vcc, -1, v3
    s_nop 1
    s_cmp_eq_u64 vcc, 0
    s_cbranch_scc1 {ok}
    s_sub_u32 s39, s39, 1
    s_cmp_lg_u32 s39, 0
    s_cbranch_scc1 {pl}
    {ok}:
    ''')
    m.stamp('p1 gotkv')
    o_compute(e, range(4), KA, lambda tb: PK + tb*8, lambda tb: 64 + tb*24, lambda tb: 160 + tb*4)
    for tb in range(4):
        e(f'buffer_store_dwordx4 v[{160+tb*4}:{163+tb*4}], v{V_OS}, s[24:27], s{60+tb} offen sc1')
    if opts.get('fine'): m.stamp('p1 o')
    m.publish(L, E_B, f's_mov_b32 s18, s{S_MT}\ns_mov_b32 s19, s{S_CI}')
    m.stamp('p1 pubB')

def hop_code(m, L, R0):
    ST = 32 * KVP_HEAD
    setup = [f's_lshr_b32 s18, s{S_MT}, 3', f's_lshl_b32 s19, s{S_CI}, 1', 's_add_u32 s18, s18, s19', f's_mul_i32 s60, s18, {KVP_HEAD}',
             f's_and_b32 s18, s{S_MT}, 7', 's_lshl_b32 s18, s18, 10', 's_add_u32 s60, s60, s18', 's_lshl_b32 s18, s20, 8', 's_add_u32 s60, s60, s18',
             f's_add_u32 s60, s60, {reg(L, R_KVP)}',
             f's_bfe_u32 s18, s{S_MT}, 0x10002', 's_add_u32 s18, s18, s19', f's_mul_i32 s61, s18, {KVP_HEAD}', f's_and_b32 s18, s{S_MT}, 3', 's_lshl_b32 s18, s18, 6',
             's_add_u32 s61, s61, s18', f's_add_u32 s61, s61, {reg(L, R_KVP) + 8192}',
             f's_mov_b32 s18, {ST}', 'v_mul_lo_u32 v25, v31, s18', 'v_lshl_add_u32 v25, v30, 4, v25', 'v_mul_lo_u32 v29, v30, s18', 'v_lshl_add_u32 v29, v31, 4, v29']
    A = [[f'buffer_load_dwordx4 v[{R0+4*i}:{R0+4*i+3}], v25, s[24:27], s60 offen sc1'] + ([f's_add_u32 s60, s60, {4*ST}'] if i < 3 else []) for i in range(4)]
    A.append([f'buffer_load_dwordx4 v[{R0+16}:{R0+19}], v29, s[24:27], s61 offen sc1'])
    Z = R0 + 16; T = R0 + 20
    o = []
    for (d, x) in ((0, 4), (8, 12), (0, 8)):
        o += [f'v_add_f32 v{R0+d+h}, v{R0+d+h}, v{R0+x+h}' for h in range(4)]
    for ror in (8, 4, 2, 1):
        o += [f'v_add_f32_dpp v{Z+h}, v{Z+h}, v{Z+h} row_ror:{ror} row_mask:0xf bank_mask:0xf' for h in range(4)]
    for sw in ('v_permlane32_swap_b32', 'v_permlane16_swap_b32'):
        o += [f'v_mov_b32 v{T+h}, v{R0+h}' for h in range(4)]
        o += [f'{sw} v{R0+h}, v{T+h}' for h in range(4)]
        o += [f'v_add_f32 v{R0+h}, v{R0+h}, v{T+h}' for h in range(4)]
    o += [f'v_cvt_pk_bf16_f32 v{R0+4}, v{R0}, v{R0+1}', f'v_cvt_pk_bf16_f32 v{R0+5}, v{R0+2}, v{R0+3}',
          f'v_cvt_pk_bf16_f32 v{R0+6}, v{Z}, v{Z+1}', f'v_cvt_pk_bf16_f32 v{R0+7}, v{Z+2}, v{Z+3}',
          'v_and_b32 v3, 3, v2', 'v_cmp_eq_u32 vcc, 0, v3', 'v_cmp_eq_u32 s[90:91], 1, v3', 'v_lshlrev_b32 v1, 4, v2', 'v_cndmask_b32 v3, 0, v24, s[90:91]',
          f'v_cndmask_b32 v{R0+6}, v3, v{R0+6}, vcc', f'v_cndmask_b32 v{R0+7}, v3, v{R0+7}, vcc', 's_lshl_b32 s18, s20, 8', 's_add_u32 s18, s18, s92']
    sk = m.lab('hz')
    st = ['s_mov_b64 exec, 0xffff', f'buffer_store_dwordx2 v[{R0+4}:{R0+5}], v1, s[24:27], s18 offen sc1', 's_mov_b64 exec, -1',
          f's_lshr_b32 s18, s{S_MT}, 3', 's_lshl_b32 s18, s18, 2', 's_add_u32 s18, s18, s20', 's_cmp_lg_u32 s18, 1', f's_cbranch_scc1 {sk}',
          f'buffer_store_dwordx2 v[{R0+6}:{R0+7}], v1, s[24:27], s93 offen sc1', f'{sk}:']
    return setup, A, o, st

def o_compute(e, tbs, KA, EB, NN, OUT):
    for tb in tbs:
        for sg in range(2):
            for bk in range(3):
                d = NN(tb) + (sg*3+bk)*4; a = KA + (sg*3+bk)*4; b = EB(tb) + sg*4
                e(f'v_mfma_f32_16x16x32_bf16 v[{d}:{d+3}], v[{a}:{a+3}], v[{b}:{b+3}], 0')
    for tb in tbs:
        for sg in range(2):
            z = NN(tb) + (sg*3+2)*4
            e(f'v_rcp_f32 v{z+1}, v{z+1}')
    for tb in tbs:
        zp = NN(tb) + 8; zm = NN(tb) + 20
        e(f'v_fma_f32 v{zp+2}, v{zp}, v{zp+1}, s44')
        e(f'v_fma_f32 v{zp+2}, v{zm}, v{zm+1}, v{zp+2}')
    for tb in tbs:
        zp = NN(tb) + 8
        e(f'v_rcp_f32 v{zp+2}, v{zp+2}')
    for tb in tbs:
        zp = NN(tb) + 8; zm = NN(tb) + 20
        e(f'v_mul_f32 v{zp}, v{zp+1}, v{zp+2}')
        e(f'v_mul_f32 v{zm}, v{zm+1}, v{zp+2}')
    for tb in tbs:
        n = NN(tb); zp = n + 8; zm = n + 20
        for i in range(4):
            e(f'v_pk_mul_f32 v[{n+2*i}:{n+2*i+1}], v[{n+2*i}:{n+2*i+1}], v[{zp}:{zp+1}] op_sel:[0,0] op_sel_hi:[1,0]')
        for i in range(4):
            e(f'v_pk_fma_f32 v[{n+2*i}:{n+2*i+1}], v[{n+12+2*i}:{n+12+2*i+1}], v[{zm}:{zm+1}], v[{n+2*i}:{n+2*i+1}] op_sel:[0,0,0] op_sel_hi:[1,0,1]')
    for tb in tbs:
        n = NN(tb); o = OUT(tb)
        for i in range(4): e(f'v_cvt_pk_bf16_f32 v{o+i}, v{n+2*i}, v{n+2*i+1}')
    for tb in tbs:
        o = OUT(tb)
        e(f'v_permlane16_swap_b32 v{o}, v{o+2}')
        e(f'v_permlane16_swap_b32 v{o+1}, v{o+3}')
```

```python
from asmlib import *
from common import *
from mega import *

XSLOT = 32768; NXS = 3
WREG = 7680; WHALF = 2 * WREG; NWS = 4; WBASE = XSLOT * NXS
LDW = F * 2; NB = 16; NSTEP = 32
WL = [0, 896, 1920, 2816]
def acc(b, tb): return 32 + (b * 4 + tb) * 4
def xfrag(p, tb): return p * 72 + tb * 4
def wfrag(p, b): return p * 72 + 16 + b * 4
CSA = 144; NMB = 200; RAW = 216; ONES = 248; CSP = 216
V_XOFF = 4; V_WOFF = 8; V_XRD = 12; V_WRD = 14; V_ST = 15; V_K = 16

def dma_x(half):
    g = []
    for j in range(4):
        ins = [f'buffer_load_dwordx4 v{V_XOFF+j//2}, s[8:11], s{30+half} offen offset:{j*1024} sc1 lds']
        if j == 0: ins = [f's_add_u32 m0, s34, s{40 if half == 0 else 52}', 's_nop 0'] + ins
        if half == 1 and j == 3: ins += ['s_add_u32 s30, s30, 2048', 's_and_b32 s30, s30, 0x7fff']
        if half == 1 and j == 3: ins += [f's_add_u32 s34, s34, {XSLOT}', f's_cmp_eq_u32 s34, {XSLOT*NXS}', 's_cselect_b32 s34, 0, s34']
        if half == 1 and j == 3: ins += ['s_add_u32 s31, s30, 65536']
        g.append(ins)
    return g
def dma_w(aux=''):
    g = []
    for j in range(4):
        ins = [f'buffer_load_dwordx4 v{V_WOFF+j}, s[12:15], s32 offen offset:{WL[j]} {aux} lds']
        if j == 0: ins = ['s_add_u32 m0, s35, s41', 's_nop 0'] + ins
        if j == 3: ins += [f's_add_u32 s35, s35, {WHALF}', f's_cmp_eq_u32 s35, {WHALF*NWS}', 's_cselect_b32 s35, 0, s35']
        if j == 3: ins += [f's_add_u32 s32, s32, {32*LDW}', f's_cmp_eq_u32 s32, {D*LDW}', 's_cselect_b32 s32, 0, s32']
        g.append(ins)
    return g

def pre_w(m, layer, nh=4):
    e = m.e; opts = m.opts.get('p3', {})
    e(f'''
    s_cmp_lt_u32 s20, 2
    s_cselect_b32 s12, s{P_GATE}, s{P_UP}
    s_cselect_b32 s13, s{P_GATE+1}, s{P_UP+1}
    s_mov_b32 s14, {D*F*2}
    v_mul_u32_u24 v1, 4682, v2
    v_lshrrev_b32 v1, 16, v1
    v_mul_u32_u24 v3, 14, v1
    v_sub_u32 v3, v2, v3
    v_lshlrev_b32 v3, 4, v3
    s_and_b32 s18, s20, 1
    s_lshl_b32 s18, s18, 4
    v_add_u32 v1, s18, v1
    v_mul_u32_u24 v1, {LDW}, v1
    v_add_u32 v1, v1, v3
    s_mul_i32 s19, s{S_NT2}, 224
    v_add_u32 v{V_WOFF}, s19, v1
    ''')
    for j in range(1, 4): e(f'v_add_u32 v{V_WOFF+j}, {j*4*LDW - WL[j]}, v{V_WOFF}')
    rot = 1 if (layer == 0 or opts.get('rot_all')) else 0
    e(f'''
    s_mul_i32 s32, s{S_MT2}, {128*LDW*rot}       ; k rotation
    s_mov_b32 s35, 0
    s_lshr_b32 s18, s20, 1
    s_mul_i32 s41, s18, {WREG}
    s_and_b32 s18, s20, 1
    s_mul_i32 s18, s18, 3840
    s_add_u32 s41, s41, s18
    s_add_u32 s41, s41, {WBASE}
    ''')
    for h in range(nh):
        for ins in dma_w(opts.get('aux0', '') if layer == 0 else ''): e.ext(ins); m.q.issue(f'W{h}')
    m.p3_w = nh

def run(m, layer, next_pre):
    e = m.e; q = m.q; opts = m.opts.get('p3', {}); L = layer
    rot = 1 if (layer == 0 or opts.get('rot_all')) else 0
    srd(e, 8, ws_off=reg(L, R_X1) - BLK_BIAS, size=S*D*2 + BLK_BIAS)
    e(f'''
    s_lshl_b32 s23, s{S_MT2}, 8
    s_lshl_b32 s18, s20, 6
    s_add_u32 s23, s23, s18
    s_mul_i32 s22, s{S_NT2}, 112
    ''')
    x_dma_offsets(e, V_XOFF, 23, 2048, blocked=True)
    e(f'''
    s_mul_i32 s30, s{S_MT2}, {4096*rot}
    s_add_u32 s31, s30, 65536
    s_mov_b32 s34, 0
    s_lshl_b32 s40, s20, 13
    s_add_u32 s52, s40, 4096
    s_mul_i32 s18, s23, {LDW}
    s_mul_i32 s19, s{S_NT2}, 3584
    s_add_u32 s18, s18, s19
    ''')
    frag_store_addr(e, V_ST, 18)
    e(f'''
    s_lshl_b32 s18, s23, 7
    s_add_u32 s60, s18, {reg(L, R_STF)}
    v_lshlrev_b32 v29, 11, v31
    v_lshl_add_u32 v29, v30, 4, v29
    v_add_u32 v1, s22, v30
    v_lshlrev_b32 v28, 4, v1
    v_and_b32 v1, 1, v31
    v_mul_u32_u24 v1, {CS_PLANE}, v1
    v_add_u32 v28, v28, v1
    s_mov_b32 s62, {WS_CS + 3072*16}
    s_mov_b32 s63, {WS_CS + (3072+F)*16}
    ''')
    x_read_addr_f(e, V_XRD, 40)
    e(f'''
    v_mul_u32_u24 v1, 1920, v31
    v_bfe_u32 v3, v2, 2, 2
    v_mul_u32_u24 v3, 224, v3
    v_add_u32 v1, v1, v3
    v_and_b32 v3, 3, v2
    v_lshl_add_u32 v1, v3, 3, v1
    v_add_u32 v{V_WRD}, {WBASE}, v1
    s_mov_b32 s36, 0
    s_mov_b32 s37, 0
    s_mov_b32 s42, 0
    s_mov_b32 s48, {WHALF}
    s_mov_b32 s49, {(-(NWS-1)*WHALF) & 0xffffffff:#x}
    s_mov_b32 s50, {XSLOT}
    s_mov_b32 s51, {(-(NXS-1)*XSLOT) & 0xffffffff:#x}
    ''')
    C1 = -2.0 * 0.7978845608028654 * 1.4426950408889634
    C2 = C1 * 0.044715
    e(f's_mov_b32 s44, {f2u(C1):#x}\ns_mov_b32 s45, {f2u(C2):#x}')
    docs = (L == 0)
    touch = (L == 0 and not opts.get('notouch'))
    if docs:
        e('v_mov_b32 v1, 0x3f803f80')
        for i in range(4): e(f'v_accvgpr_write_b32 a{ONES+i}, v1')
        e(f'''
        s_lshr_b32 s18, s{S_MT2}, 2
        s_mul_i32 s18, s18, {CS_PLANE}
        s_and_b32 s19, s{S_MT2}, 3
        s_lshl_b32 s19, s19, 2
        s_add_u32 s18, s18, s19
        s_add_u32 s54, s18, s62
        s_add_u32 s55, s18, s63
        v_add_u32 v1, s22, v30
        v_lshlrev_b32 v27, 4, v1
        ''')
    if touch:
        srd(e, 4, ptr=P_DOWN, size=F*D*2)
        e('s_mov_b32 s7, 0x00020000')
        e(f's_lshl_b32 s18, s2, 2\ns_add_u32 s18, s18, s20\ns_mul_i32 s33, s18, {56*128}\nv_lshlrev_b32 v26, 7, v31')
    m.stamp('p3 wait')
    m.wait(L, E_C, f's_lshl_b32 s18, s{S_MT2}, 1', 16, nshard=2)
    m.stamp('p3 go')
    pend = []
    for u in range(NB):
        pend.append(('X%d' % u, 'xa', 2*u - 1, 2*(u-3) + 1))
        pend.append(('X%d' % u, 'xb', 2*u - 1, 2*(u-3) + 1))
        for h in (2*u, 2*u + 1):
            if h >= m.p3_w: pend.append(('W%d' % h, 'w', h - 1, h - 4))
    mk = {'xa': lambda: dma_x(0), 'xb': lambda: dma_x(1), 'w': lambda: dma_w(opts.get('auxw', ''))}
    def take(step, maxg):
        out = []
        while len(out) < maxg:
            cand = None; seen = set()
            for g in pend:
                cls = g[1][0]
                if cls in seen: continue
                seen.add(cls)
                if g[3] <= step and (cand is None or g[2] < cand[2]): cand = g
            if cand is None: break
            pend.remove(cand); out.append(cand)
        return out
    ninit = sum(1 for g in pend if g[2] <= 0)
    for g in take(-1, ninit + 2):
        for ins in mk[g[1]](): e.ext(ins); q.issue(g[0])
    small = stats_loads(lambda o: f'a[{RAW+o}:{RAW+o+3}]', 29, 60)
    csl = [[f'buffer_load_dwordx4 a[{CSA+4*b}:{CSA+4*b+3}], v28, s[24:27], s{62 + b//7} offen offset:{(b%7)*256} sc1'] for b in range(14)]
    def fin():
        Lx = [f'v_accvgpr_read_b32 v{4+i}, a{RAW+i}' for i in range(4)]
        for k in range(1, 8):
            Lx += [f'v_accvgpr_read_b32 v{8+i}, a{RAW+4*k+i}' for i in range(4)]
            Lx += [f'v_add_f32 v{4+i}, v{4+i}, v{8+i}' for i in range(4)]
        Lx += ['v_add_f32 v4, v4, v6', 'v_add_f32 v5, v5, v7']
        st = stats_t(4, 24, 8, None)[30:]
        st += [f'v_rcp_f32 v{16+tb}, v{24+tb}' for tb in range(4)]
        st += [f'v_cndmask_b32 v{8+tb}, 0, v{8+tb}, vcc' for tb in range(4)]
        st += [f'v_mul_f32 v{20+tb}, v{16+tb}, v{16+tb}' for tb in range(4)]
        st += [f'v_mul_f32 v{24+tb}, v{24+tb}, v{24+tb}' for tb in range(4)]
        st += [f'v_mul_f32 v{20+tb}, v{20+tb}, v{16+tb}' for tb in range(4)]
        st += [f'v_mul_f32 v{16+tb}, s44, v{16+tb}' for tb in range(4)]
        st += [f'v_mul_f32 v{20+tb}, s45, v{20+tb}' for tb in range(4)]
        st += [f'v_accvgpr_write_b32 a{NMB+4*tb+i}, v{8+tb}' for tb in range(4) for i in range(4)]
        return Lx, st
    def mfma(b, tb, p, c=None):
        a = acc(b, tb)
        cc = f'v[{a}:{a+3}]' if c is None else c
        return f'v_mfma_f32_16x16x32_bf16 v[{a}:{a+3}], a[{wfrag(p,b)}:{wfrag(p,b)+3}], a[{xfrag(p,tb)}:{xfrag(p,tb)+3}], {cc}'
    def reads(p, s):
        x = lambda tb: f'ds_read_b128 a[{xfrag(p,tb)}:{xfrag(p,tb)+3}], v{V_XRD+s} offset:{tb*2048}'
        def w(b, h):
            off = (b // 7) * WREG + 4 * h * 224 + (b % 7) * 32
            return f'ds_read_b64_tr_b16 a[{wfrag(p,b)+2*h}:{wfrag(p,b)+2*h+1}], v{V_WRD} offset:{off}'
        g = [x(0), w(0, 0), w(0, 1), x(1), x(2), x(3)]
        for b in range(1, 14): g += [w(b, 0), w(b, 1)]
        return g
    needs = [max(2 if tb == 0 else 2 + tb, 5 + 2*b if b else 0) for b in range(14) for tb in range(4)]
    pt = m.phase_touch(f'a{ONES+5}') if True else None
    if pt: e.ext(pt); q.issue('pt')
    n = q.wait_for({'X0', 'W0', 'W1'})
    e(f's_waitcnt vmcnt({n})')
    e('s_barrier')
    m.stamp('p3 main')
    e('v_cmp_gt_u32 vcc, 32, v2')
    e.ext(reads(0, 0))
    bodies = []
    for u in range(NB):
        B = []
        for s in range(2):
            t = 2 * u + s; p = s
            ms = [mfma(b, tb, p, '0' if t == 0 else None) for b in range(14) for tb in range(4)]
            last = (t == NSTEP - 1)
            rd = []; pre = []; bar = []
            if not last:
                pre = [f's_add_u32 s37, s37, {WHALF}', f's_cmp_eq_u32 s37, {WHALF*NWS}', 's_cselect_b32 s43, s49, s48',
                       's_cselect_b32 s37, 0, s37', f'v_add_u32 v{V_WRD}, s43, v{V_WRD}']
                if s == 1:
                    pre += [f's_add_u32 s36, s36, {XSLOT}', f's_cmp_eq_u32 s36, {XSLOT*NXS}', 's_cselect_b32 s42, s51, s50',
                            's_cselect_b32 s36, 0, s36', f'v_add_u32 v{V_XRD}, s42, v{V_XRD}']
                else:
                    pre += [f'v_add_u32 v{V_XRD+1}, s42, v{V_XRD+1}']
                rd = reads(p ^ 1, s ^ 1)
            if t > 0 and not last:
                tags = {f'W{t+1}'} | ({f'X{u+1}'} if s == 1 else set())
                if t == NSTEP - 2: tags |= {'small', 'csl'}
                if t == 29: tags |= {'flg'}
                n = q.wait_for(tags)
                bar = [f's_waitcnt vmcnt({n})', 's_barrier']
            dm = []
            for g in take(t, 3 if t < 3 else 2):
                for ins in mk[g[1]](): dm.append(ins); q.issue(g[0])
            if touch and s == 0 and 2 <= u < 16:
                dm.append([f'buffer_load_dword a{ONES+4}, v26, s[4:7], s33 offen', 's_add_u32 s33, s33, 512']); q.issue('touch')
            if t == 28:
                for ins in small: dm.append(ins); q.issue('small')
            if docs and t == 27:
                dm.append([f's_lshl_b32 s53, s{S_NT2}, 8', f's_add_u32 s53, s53, {flag_off(0, E_CS, 0)}', 'v_and_b32 v24, 7, v2', 'v_lshlrev_b32 v24, 2, v24']
                          + m.soft_load(53, 24, 25)); q.issue('flg')
            if t == 29:
                if docs: bar += m.soft_check(53, 24, 25)
                for ins in csl: dm.append(ins); q.issue('csl')
            ex = []
            if t == NSTEP - 2: ex = fin()[0]
            if t == NSTEP - 1: ex = fin()[1]
            if docs and t == 4:
                ex = []
                for i in range(4):
                    ex += [f'v_accvgpr_read_b32 v{16+i}, a{CSP+4*i}']
                for i in range(4):
                    ex += [f'v_cvt_pk_bf16_f32 v{20+i}, v{16+i}, v{16+i}']
                for i in range(4):
                    ex += [f'v_and_b32 v{20+i}, 0xffff0000, v{20+i}']
                for i in range(4):
                    ex += [f'v_sub_f32 v{20+i}, v{16+i}, v{20+i}']
                for i in range(4):
                    ex += [f'v_cvt_pk_bf16_f32 v{20+i}, v{16+i}, v{20+i}']
            step = build_step(ms, needs, 32, pre, bar, rd, dm, ex, nb=4)
            if docs and t < 4:
                ls = [m.lab('cs') for _ in range(4)]; le = m.lab('cse')
                for w in range(4):
                    if w < 3: step += [f's_cmp_lg_u32 s20, {w}', f's_cbranch_scc1 {ls[w+1]}']
                    for i in range(4):
                        b = w + 4*i
                        if b < 14:
                            d = CSP + 4*i
                            step.append(f'v_mfma_f32_16x16x32_bf16 a[{d}:{d+3}], a[{ONES}:{ONES+3}], a[{wfrag(p,b)}:{wfrag(p,b)+3}], ' + ('0' if t == 0 else f'a[{d}:{d+3}]'))
                    if w < 3: step += [f's_branch {le}', f'{ls[w+1]}:']
                step += [f'{le}:']
                if t == 3: step += ['s_nop 7']
            if docs and t == 4:
                ls = [m.lab('cw') for _ in range(4)]; le = m.lab('cwe')
                step += ['s_mov_b64 exec, 0xffff']
                for w in range(4):
                    if w < 3: step += [f's_cmp_lg_u32 s20, {w}', f's_cbranch_scc1 {ls[w+1]}']
                    for i in range(4):
                        b = min(w + 4*i, 13) if w + 4*i >= 14 else w + 4*i
                        src = 20 + i if w + 4*i < 14 else None
                        if src is None:
                            b = w + 4*(i-1); src = 20 + i - 1
                        step.append(f'buffer_store_dword v{src}, v27, s[24:27], s{54 + b//7} offen offset:{(b%7)*256} sc1')
                    if w < 3: step += [f's_branch {le}', f'{ls[w+1]}:']
                step += [f'{le}:', 's_mov_b64 exec, -1']
                for i in range(4): q.issue('csw')
            if docs and t == 9:
                assert 'csw' not in q.q
                step += m.signal(0, E_CS, f's_mov_b32 s18, s{S_NT2}\ns_mov_b32 s19, s{S_MT2}')
            B += step
        bodies.append(B)
    assert not pend
    e.ext(loopify(bodies, m.lab('p3L'), 38, m.opts.get('unroll', 1)))
    e('s_barrier')
    pre = Pre(m, next_pre)
    pre.emit_setup()
    corr = []
    for b in range(14):
        for tb in range(4):
            a = acc(b, tb)
            corr.append(f'v_mfma_f32_16x16x32_bf16 v[{a}:{a+3}], a[{CSA+4*b}:{CSA+4*b+3}], a[{NMB+4*tb}:{NMB+4*tb+3}], v[{a}:{a+3}]')
    if opts.get('late_pre'): e.ext(corr)
    else: pre.weave(corr, opts.get('weave', 3))
    m.stamp('p3 epi')
    srd(e, 56, ws_off=reg(L, R_H), size=S*F*2)
    for tb in range(4): e(f's_mov_b32 s{60+tb}, {tb*16*LDW}')
    e(f'v_and_b32 v1, 1, v31')
    e(f'v_mul_u32_u24 v1, {16*LDW - 512}, v1')
    e(f'v_add_u32 v14, v1, v{V_ST}')
    TP = [4, 6, 12, 28]
    def ep_pair(t1, t2, voff, soff, imm):
        items = []
        for (b, tb) in (t1, t2):
            for h in range(2):
                items.append((acc(b, tb) + 2*h, acc(b + 7, tb) + 2*h, V_K + tb))
        P = lambda i: f'v[{items[i][0]}:{items[i][0]+1}]'
        U = lambda i: f'v[{items[i][1]}:{items[i][1]+1}]'
        Tm = lambda i: f'v[{TP[i]}:{TP[i]+1}]'
        def bc(r): return (f'v[{r}:{r+1}]', 0) if r % 2 == 0 else (f'v[{r-1}:{r}]', 1)
        for i in range(4): e(f'v_pk_mul_f32 {Tm(i)}, {P(i)}, {P(i)}')
        for i in range(4):
            k = items[i][2]; (k2, s2), (k1, s1) = bc(k + 4), bc(k)
            e(f'v_pk_fma_f32 {Tm(i)}, {Tm(i)}, {k2}, {k1} op_sel:[0,{s2},{s1}] op_sel_hi:[1,{s2},{s1}]')
        for i in range(4): e(f'v_pk_mul_f32 {Tm(i)}, {Tm(i)}, {P(i)}')
        for i in range(8): e(f'v_exp_f32 v{TP[i//2]+i%2}, v{TP[i//2]+i%2}')
        for i in range(4): e(f'v_pk_mul_f32 {U(i)}, {U(i)}, {P(i)}')
        for i in range(4):
            k3, s3 = bc(items[i][2] + 8)
            e(f'v_pk_fma_f32 {Tm(i)}, {Tm(i)}, {k3}, {k3} op_sel:[0,{s3},{s3}] op_sel_hi:[1,{s3},{s3}]')
        for i in range(8): e(f'v_rcp_f32 v{TP[i//2]+i%2}, v{TP[i//2]+i%2}')
        for i in range(4): e(f'v_pk_mul_f32 {U(i)}, {U(i)}, {Tm(i)}')
        r = acc(*t1)
        for i in range(4): e(f'v_cvt_pk_bf16_f32 v{r+i}, v{items[i][1]}, v{items[i][1]+1}')
        e(f'v_permlane16_swap_b32 v{r}, v{r+2}')
        e(f'v_permlane16_swap_b32 v{r+1}, v{r+3}')
        e(f'buffer_store_dwordx4 v[{r}:{r+3}], v{voff}, s[56:59], s{soff} offen offset:{imm} sc1')
    for tb in range(4):
        for bp in range(3):
            ep_pair((2*bp, tb), (2*bp+1, tb), V_ST, 60 + tb, bp * 1024)
        if tb % 2 == 1:
            ep_pair((6, tb - 1), (6, tb), 14, 60 + tb - 1, 3072)
    m.stamp('p3 st')
    m.publish(L, E_D, f's_lshl_b32 s18, s{S_MT2}, 1\ns_lshr_b32 s19, s{S_NT2}, 4\ns_add_u32 s18, s18, s19\ns_and_b32 s19, s{S_NT2}, 15')
    m.stamp('p3 pub')
    pre.weave([], 1)
```

```python
from asmlib import *
from common import *
from mega import *

WREG = 7680; WHALF = 2 * WREG; NWS = 10; WBASE = 0
LDW = F * 2; NB = 16; NSTEP = 32; XD = 3
WL = [0, 896, 1920, 2816]
def acc(b, tb): return 32 + (b * 4 + tb) * 4
def xfrag(t, tb): return 112 + (t % 4) * 16 + tb * 4
def wfrag(p, b): return p * 56 + b * 4
CSA = 176; NMB = 232; RAW = 176; ONES = 248; CSP = 176
V_XOFF = 4; V_WOFF = 8; V_WRD = 14; V_ST = 15; V_K = 16

def ld_x(t):
    g = []
    for tb in range(4):
        ins = [f'buffer_load_dwordx4 a[{xfrag(t,tb)}:{xfrag(t,tb)+3}], v{V_XOFF+tb}, s[8:11], s30 offen sc1']
        if tb == 3: ins += ['s_add_u32 s30, s30, 1024', 's_and_b32 s30, s30, 0x7fff']
        g.append(ins)
    return g
def dma_w(aux=''):
    g = []
    for j in range(4):
        ins = [f'buffer_load_dwordx4 v{V_WOFF+j}, s[12:15], s32 offen offset:{WL[j]} {aux} lds']
        if j == 0: ins = ['s_add_u32 m0, s35, s41', 's_nop 0'] + ins
        if j == 3: ins += [f's_add_u32 s35, s35, {WHALF}', f's_cmp_eq_u32 s35, {WHALF*NWS}', 's_cselect_b32 s35, 0, s35']
        if j == 3: ins += [f's_add_u32 s32, s32, {32*LDW}', f's_cmp_eq_u32 s32, {D*LDW}', 's_cselect_b32 s32, 0, s32']
        g.append(ins)
    return g

def pre_w(m, layer, nh=4):
    e = m.e; opts = m.opts.get('p3', {})
    e(f'''
    s_cmp_lt_u32 s20, 2
    s_cselect_b32 s12, s{P_GATE}, s{P_UP}
    s_cselect_b32 s13, s{P_GATE+1}, s{P_UP+1}
    s_mov_b32 s14, {D*F*2}
    v_mul_u32_u24 v1, 4682, v2
    v_lshrrev_b32 v1, 16, v1
    v_mul_u32_u24 v3, 14, v1
    v_sub_u32 v3, v2, v3
    v_lshlrev_b32 v3, 4, v3
    s_and_b32 s18, s20, 1
    s_lshl_b32 s18, s18, 4
    v_add_u32 v1, s18, v1
    v_mul_u32_u24 v1, {LDW}, v1
    v_add_u32 v1, v1, v3
    s_mul_i32 s19, s{S_NT2}, 224
    v_add_u32 v{V_WOFF}, s19, v1
    ''')
    for j in range(1, 4): e(f'v_add_u32 v{V_WOFF+j}, {j*4*LDW - WL[j]}, v{V_WOFF}')
    rot = 1 if (layer == 0 or opts.get('rot_all')) else 0
    e(f'''
    s_mul_i32 s32, s{S_MT2}, {128*LDW*rot}       ; k rotation
    s_mov_b32 s35, 0
    s_lshr_b32 s18, s20, 1
    s_mul_i32 s41, s18, {WREG}
    s_and_b32 s18, s20, 1
    s_mul_i32 s18, s18, 3840
    s_add_u32 s41, s41, s18
    s_add_u32 s41, s41, {WBASE}
    ''')
    for h in range(nh):
        for ins in dma_w(opts.get('aux0', '') if layer == 0 else ''): e.ext(ins); m.q.issue(f'W{h}')
    m.p3_w = nh

def run(m, layer, next_pre):
    e = m.e; q = m.q; opts = m.opts.get('p3', {}); L = layer
    rot = 1 if (layer == 0 or opts.get('rot_all')) else 0
    srd(e, 8, ws_off=reg(L, R_X1) - BLK_BIAS, size=S*D*2 + BLK_BIAS)
    e(f'''
    s_lshl_b32 s23, s{S_MT2}, 8
    s_lshl_b32 s18, s20, 6
    s_add_u32 s23, s23, s18
    s_mul_i32 s22, s{S_NT2}, 112
    ''')
    e(f'''
    s_lshl_b32 s18, s23, 11
    v_lshlrev_b32 v{V_XOFF}, 4, v2
    v_add_u32 v{V_XOFF}, s18, v{V_XOFF}
    v_add_u32 v{V_XOFF+1}, 32768, v{V_XOFF}
    v_add_u32 v{V_XOFF+2}, 65536, v{V_XOFF}
    v_add_u32 v{V_XOFF+3}, 98304, v{V_XOFF}
    ''')
    e(f'''
    s_mul_i32 s30, s{S_MT2}, {4096*rot}
    s_mul_i32 s18, s23, {LDW}
    s_mul_i32 s19, s{S_NT2}, 3584
    s_add_u32 s18, s18, s19
    ''')
    frag_store_addr(e, V_ST, 18)
    e(f'''
    s_lshl_b32 s18, s23, 7
    s_add_u32 s60, s18, {reg(L, R_STF)}
    v_lshlrev_b32 v29, 11, v31
    v_lshl_add_u32 v29, v30, 4, v29
    v_add_u32 v1, s22, v30
    v_lshlrev_b32 v28, 4, v1
    v_and_b32 v1, 1, v31
    v_mul_u32_u24 v1, {CS_PLANE}, v1
    v_add_u32 v28, v28, v1
    s_mov_b32 s62, {WS_CS + 3072*16}
    s_mov_b32 s63, {WS_CS + (3072+F)*16}
    ''')
    e(f'''
    v_mul_u32_u24 v1, 1920, v31
    v_bfe_u32 v3, v2, 2, 2
    v_mul_u32_u24 v3, 224, v3
    v_add_u32 v1, v1, v3
    v_and_b32 v3, 3, v2
    v_lshl_add_u32 v1, v3, 3, v1
    v_add_u32 v{V_WRD}, {WBASE}, v1
    s_mov_b32 s37, 0
    s_mov_b32 s48, {WHALF}
    s_mov_b32 s49, {(-(NWS-1)*WHALF) & 0xffffffff:#x}
    ''')
    C1 = -2.0 * 0.7978845608028654 * 1.4426950408889634
    C2 = C1 * 0.044715
    e(f's_mov_b32 s44, {f2u(C1):#x}\ns_mov_b32 s45, {f2u(C2):#x}')
    docs = (L == 0)
    touch = (L == 0 and not opts.get('notouch'))
    if docs:
        e('v_mov_b32 v1, 0x3f803f80')
        for i in range(4): e(f'v_accvgpr_write_b32 a{ONES+i}, v1')
        e(f'''
        s_lshr_b32 s18, s{S_MT2}, 2
        s_mul_i32 s18, s18, {CS_PLANE}
        s_and_b32 s19, s{S_MT2}, 3
        s_lshl_b32 s19, s19, 2
        s_add_u32 s18, s18, s19
        s_add_u32 s54, s18, s62
        s_add_u32 s55, s18, s63
        v_add_u32 v1, s22, v30
        v_lshlrev_b32 v27, 4, v1
        ''')
    if touch:
        srd(e, 4, ptr=P_DOWN, size=F*D*2)
        e('s_mov_b32 s7, 0x00020000')
        e(f's_lshl_b32 s18, s2, 2\ns_add_u32 s18, s18, s20\ns_mul_i32 s33, s18, {56*128}\nv_lshrrev_b32 v26, 3, v2\nv_lshlrev_b32 v26, 7, v26')
    m.stamp('p3 wait')
    m.wait(L, E_C, f's_lshl_b32 s18, s{S_MT2}, 1', 16, nshard=2)
    m.stamp('p3 go')
    pend = [(h, 2*((h - NWS)//2) + 1) for h in range(m.p3_w, NSTEP)]
    for t in range(XD):
        for ins in ld_x(t): e.ext(ins); q.issue(f'X{t}')
    small = stats_loads(lambda o: f'a[{RAW+o}:{RAW+o+3}]', 29, 60)
    csl = [[f'buffer_load_dwordx4 a[{CSA+4*b}:{CSA+4*b+3}], v28, s[24:27], s{62 + b//7} offen offset:{(b%7)*256} sc1'] for b in range(14)]
    def fin():
        Lx = [f'v_accvgpr_read_b32 v{16+i}, a{RAW+i}' for i in range(4)]
        for k in range(1, 8):
            Lx += [f'v_accvgpr_read_b32 v{20+i}, a{RAW+4*k+i}' for i in range(4)]
            Lx += [f'v_add_f32 v{16+i}, v{16+i}, v{20+i}' for i in range(4)]
        Lx += ['v_add_f32 v16, v16, v18', 'v_add_f32 v17, v17, v19']
        st = stats_t(16, 24, 8, None)[30:]
        st += [f'v_rcp_f32 v{16+tb}, v{24+tb}' for tb in range(4)]
        st += [f'v_cndmask_b32 v{8+tb}, 0, v{8+tb}, vcc' for tb in range(4)]
        st += [f'v_mul_f32 v{20+tb}, v{16+tb}, v{16+tb}' for tb in range(4)]
        st += [f'v_mul_f32 v{24+tb}, v{24+tb}, v{24+tb}' for tb in range(4)]
        st += [f'v_mul_f32 v{20+tb}, v{20+tb}, v{16+tb}' for tb in range(4)]
        st += [f'v_mul_f32 v{16+tb}, s44, v{16+tb}' for tb in range(4)]
        st += [f'v_mul_f32 v{20+tb}, s45, v{20+tb}' for tb in range(4)]
        st += [f'v_accvgpr_write_b32 a{NMB+4*tb+i}, v{8+tb}' for tb in range(4) for i in range(4)]
        return Lx, st
    def mfma(b, tb, t, c=None):
        a = acc(b, tb); p = t & 1
        cc = f'v[{a}:{a+3}]' if c is None else c
        return f'v_mfma_f32_16x16x32_bf16 v[{a}:{a+3}], a[{wfrag(p,b)}:{wfrag(p,b)+3}], a[{xfrag(t,tb)}:{xfrag(t,tb)+3}], {cc}'
    def reads(p):
        def w(b, h):
            off = (b // 7) * WREG + 4 * h * 224 + (b % 7) * 32
            return f'ds_read_b64_tr_b16 a[{wfrag(p,b)+2*h}:{wfrag(p,b)+2*h+1}], v{V_WRD} offset:{off}'
        return [w(b, h) for b in range(14) for h in range(2)]
    needs = [1 + 2*b for b in range(14) for tb in range(4)]
    pt = m.phase_touch(f'a{ONES+5}') if True else None
    if pt: e.ext(pt); q.issue('pt')
    n = q.wait_for({'W0', 'W1'})
    e(f's_waitcnt vmcnt({n})')
    e('s_barrier')
    m.stamp('p3 main')
    e('v_cmp_gt_u32 vcc, 32, v2')
    e.ext(reads(0))
    bodies = []
    blocks = lambda g: [2*g, 2*g+1, 2*g+7, 2*g+8] if g < 3 else [6, 13]
    units = [(g, t) for g in range(4) for t in range(28, 32)]
    def ureads(i):
        g, t = units[i]; base = 16 * (i % 7)
        va, ho = (12, (t - 28) * WHALF) if t < 30 else (13, (t - 30) * WHALF)
        return [f'ds_read_b64_tr_b16 a[{base+4*k+2*h}:{base+4*k+2*h+1}], v{va} offset:{ho + (b // 7) * WREG + 4 * h * 224 + (b % 7) * 32}'
                for k, b in enumerate(blocks(g)) for h in range(2)]
    for u in range(14):
        B = []
        for s in range(2):
            t = 2 * u + s; p = s
            ms = [mfma(b, tb, t, '0' if t == 0 else None) for b in range(14) for tb in range(4)]
            last = (t == NSTEP - 1)
            rd = []; pre = []; bar = []
            head = [f's_waitcnt vmcnt({q.wait_for({f"X{t}"} | ({"small"} if t == 20 else set()))})']
            if not last:
                pre = [f's_add_u32 s37, s37, {WHALF}', f's_cmp_eq_u32 s37, {WHALF*NWS}', 's_cselect_b32 s43, s49, s48',
                       's_cselect_b32 s37, 0, s37', f'v_add_u32 v{V_WRD}, s43, v{V_WRD}']
                rd = reads(p ^ 1)
                if t == 27:
                    pre = [f'v_add_u32 v12, {WHALF}, v{V_WRD}', f'v_subrev_u32 v13, {7*WHALF}, v{V_WRD}']
                    rd = ureads(0) + ureads(1) + ureads(2)
            if s == 1 and not last:
                tags = {f'W{t+1}', f'W{t+2}'}
                if t == 25: tags |= {'flg'}
                if t == 27: tags |= {'W30', 'W31', 'csl'}
                have = any(x in tags for x in q.q)
                n = q.wait_for(tags)
                bar = ([f's_waitcnt vmcnt({n})'] if have else []) + ['s_barrier']
            dm = []
            if t + XD < NSTEP - 1:
                for ins in ld_x(t + XD): dm.append(ins); q.issue(f'X{t+XD}')
            k = 0
            while pend and pend[0][1] <= t and k < (2 if t < opts.get('ramp', 6) else 1):
                h = pend.pop(0)[0]; k += 1
                for ins in dma_w(): dm.append(ins); q.issue(f'W{h}')
            if touch and s == 0 and 1 <= u < 8:
                dm.append([f'buffer_load_dword a{ONES+4}, v26, s[4:7], s33 offen', 's_add_u32 s33, s33, 1024']); q.issue('touch')
            if t in (16, 17):
                for ins in small[(t-16)*4:(t-15)*4]: dm.append(ins); q.issue('small')
            if docs and t == 23:
                dm.append([f's_lshl_b32 s53, s{S_NT2}, 8', f's_add_u32 s53, s53, {flag_off(0, E_CS, 0)}', 'v_and_b32 v24, 7, v2', 'v_lshlrev_b32 v24, 2, v24']
                          + m.soft_load(53, 24, 25)); q.issue('flg')
            if t == 25:
                if docs: bar += m.soft_check(53, 24, 25)
                for ins in csl: dm.append(ins); q.issue('csl')
            ex = []
            if t == 20: ex = fin()[0][:32]
            if t == 21: ex = fin()[0][32:]
            if t == 26: ex = fin()[1]
            if docs and t == 4:
                ex = []
                for i in range(4):
                    ex += [f'v_accvgpr_read_b32 v{16+i}, a{CSP+4*i}']
                for i in range(4):
                    ex += [f'v_cvt_pk_bf16_f32 v{20+i}, v{16+i}, v{16+i}']
                for i in range(4):
                    ex += [f'v_and_b32 v{20+i}, 0xffff0000, v{20+i}']
                for i in range(4):
                    ex += [f'v_sub_f32 v{20+i}, v{16+i}, v{20+i}']
                for i in range(4):
                    ex += [f'v_cvt_pk_bf16_f32 v{20+i}, v{16+i}, v{20+i}']
            step = head + build_step(ms, needs, 28, pre, bar, rd, dm, ex, nb=3)
            if docs and t < 4:
                ls = [m.lab('cs') for _ in range(4)]; le = m.lab('cse')
                for w in range(4):
                    if w < 3: step += [f's_cmp_lg_u32 s20, {w}', f's_cbranch_scc1 {ls[w+1]}']
                    for i in range(4):
                        b = w + 4*i
                        if b < 14:
                            d = CSP + 4*i
                            step.append(f'v_mfma_f32_16x16x32_bf16 a[{d}:{d+3}], a[{ONES}:{ONES+3}], a[{wfrag(p,b)}:{wfrag(p,b)+3}], ' + ('0' if t == 0 else f'a[{d}:{d+3}]'))
                    if w < 3: step += [f's_branch {le}', f'{ls[w+1]}:']
                step += [f'{le}:']
                if t == 3: step += ['s_nop 7']
            if docs and t == 4:
                ls = [m.lab('cw') for _ in range(4)]; le = m.lab('cwe')
                step += ['s_mov_b64 exec, 0xffff']
                for w in range(4):
                    if w < 3: step += [f's_cmp_lg_u32 s20, {w}', f's_cbranch_scc1 {ls[w+1]}']
                    for i in range(4):
                        b = min(w + 4*i, 13) if w + 4*i >= 14 else w + 4*i
                        src = 20 + i if w + 4*i < 14 else None
                        if src is None:
                            b = w + 4*(i-1); src = 20 + i - 1
                        step.append(f'buffer_store_dword v{src}, v27, s[24:27], s{54 + b//7} offen offset:{(b%7)*256} sc1')
                    if w < 3: step += [f's_branch {le}', f'{ls[w+1]}:']
                step += [f'{le}:', 's_mov_b64 exec, -1']
                for i in range(4): q.issue('csw')
            if docs and t == 9:
                assert 'csw' not in q.q
                step += m.signal(0, E_CS, f's_mov_b32 s18, s{S_NT2}\ns_mov_b32 s19, s{S_MT2}')
            B += step
        bodies.append(B)
    assert not pend
    bodies = [bodies[2*i] + bodies[2*i+1] for i in range(7)]
    e.ext(loopify(bodies, m.lab('p3L'), 38, 1))
    m.stamp('p3 tail')
    for ins in ld_x(31): e.ext(ins); q.issue('X31')
    srd(e, 56, ws_off=reg(L, R_H), size=S*F*2)
    for tb in range(4): e(f's_mov_b32 s{60+tb}, {tb*16*LDW}')
    e(f'v_and_b32 v1, 1, v31')
    e(f'v_mul_u32_u24 v1, {16*LDW - 512}, v1')
    e(f'v_add_u32 v14, v1, v{V_ST}')
    TP = [4, 6, 28, 0]
    def ep_pair(t1, t2, voff, soff, imm):
        e = m.e
        items = []
        for (b, tb) in (t1, t2):
            for h in range(2):
                items.append((acc(b, tb) + 2*h, acc(b + 7, tb) + 2*h, V_K + tb))
        P = lambda i: f'v[{items[i][0]}:{items[i][0]+1}]'
        U = lambda i: f'v[{items[i][1]}:{items[i][1]+1}]'
        Tm = lambda i: f'v[{TP[i]}:{TP[i]+1}]'
        def bc(r): return (f'v[{r}:{r+1}]', 0) if r % 2 == 0 else (f'v[{r-1}:{r}]', 1)
        for i in range(4): e(f'v_pk_mul_f32 {Tm(i)}, {P(i)}, {P(i)}')
        for i in range(4):
            k = items[i][2]; (k2, s2), (k1, s1) = bc(k + 4), bc(k)
            e(f'v_pk_fma_f32 {Tm(i)}, {Tm(i)}, {k2}, {k1} op_sel:[0,{s2},{s1}] op_sel_hi:[1,{s2},{s1}]')
        for i in range(4): e(f'v_pk_mul_f32 {Tm(i)}, {Tm(i)}, {P(i)}')
        for i in range(8): e(f'v_exp_f32 v{TP[i//2]+i%2}, v{TP[i//2]+i%2}')
        for i in range(4): e(f'v_pk_mul_f32 {U(i)}, {U(i)}, {P(i)}')
        for i in range(4):
            k3, s3 = bc(items[i][2] + 8)
            e(f'v_pk_fma_f32 {Tm(i)}, {Tm(i)}, {k3}, {k3} op_sel:[0,{s3},{s3}] op_sel_hi:[1,{s3},{s3}]')
        for i in range(8): e(f'v_rcp_f32 v{TP[i//2]+i%2}, v{TP[i//2]+i%2}')
        for i in range(4): e(f'v_pk_mul_f32 {U(i)}, {U(i)}, {Tm(i)}')
        r = acc(*t1)
        for i in range(4): e(f'v_cvt_pk_bf16_f32 v{r+i}, v{items[i][1]}, v{items[i][1]+1}')
        e(f'v_permlane16_swap_b32 v{r}, v{r+2}')
        e(f'v_permlane16_swap_b32 v{r+1}, v{r+3}')
        e(f'buffer_store_dwordx4 v[{r}:{r+3}], v{voff}, s[56:59], s{soff} offen offset:{imm} sc1')
    pre = Pre(m, next_pre)
    nout = {0: 8, 1: 8, 2: 8}
    for i, (g, t) in enumerate(units):
        base = 16 * (i % 7)
        younger = sum(len(ureads(j)) for j in range(i + 1, min(i + 3, 16)))
        if g == 0: e(f's_waitcnt vmcnt({q.wait_for({f"X{t}"})})')
        e(f's_waitcnt lgkmcnt({min(15, younger)})')
        if i == 15: e('s_barrier')
        rd = ureads(i + 3) if i + 3 < 16 else []
        ms = [f'v_mfma_f32_16x16x32_bf16 v[{acc(b,tb)}:{acc(b,tb)+3}], a[{base+4*k}:{base+4*k+3}], a[{xfrag(t,tb)}:{xfrag(t,tb)+3}], v[{acc(b,tb)}:{acc(b,tb)+3}]'
              for k, b in enumerate(blocks(g)) for tb in range(4)]
        for j, x in enumerate(ms):
            e(x)
            if j < len(rd): e(rd[j])
        if t == 31:
            for b in blocks(g):
                for tb in range(4):
                    a = acc(b, tb)
                    e(f'v_mfma_f32_16x16x32_bf16 v[{a}:{a+3}], a[{CSA+4*b}:{CSA+4*b+3}], a[{NMB+4*tb}:{NMB+4*tb+3}], v[{a}:{a+3}]')
            if g < 3:
                for tb in range(4):
                    ep_pair((2*g, tb), (2*g+1, tb), V_ST, 60 + tb, g * 1024); q.issue('hs')
            else:
                pre.emit_setup()
                keep = m.e; cap = Asm(); m.e = cap
                for tb in (1, 3): ep_pair((6, tb - 1), (6, tb), 14, 60 + tb - 1, 3072)
                m.e = keep
                if opts.get('late_pre'): e.ext(cap.L)
                else: pre.weave(cap.L, 6)
    m.stamp('p3 st')
    m.publish(L, E_D, f's_lshl_b32 s18, s{S_MT2}, 1\ns_lshr_b32 s19, s{S_NT2}, 4\ns_add_u32 s18, s18, s19\ns_and_b32 s19, s{S_NT2}, 15')
    m.stamp('p3 pub')
    pre.weave([], 1)
```

```python
from asmlib import *
from common import *
from mega import *

XT = 16384; WT = 8192; STAGE = 2 * XT + 2 * WT; NS = 3
def acc(nb, tb): return 32 + (nb * 4 + tb) * 4
def xfrag(p, tb): return 96 + p * 32 + tb * 4
def wfrag(p, nb): return 96 + p * 32 + 16 + nb * 4
V_RES = 160; V_TMP = 176
V_XOFF = 4; V_WOFF = 8; V_XRD = 12; V_WRD = 14
V_ST = 18; V_SST = 19; V_EX = 20; V_EXR = 21; V_RO = 22

def dma_x(half):
    g = []
    for j in range(4):
        ins = [f'buffer_load_dwordx4 v{V_XOFF+j//2}, s[8:11], s{30+half} offen offset:{j*1024} sc1 lds']
        if j == 0: ins = [f's_add_u32 m0, s34, s{40 if half == 0 else 52}', 's_nop 0'] + ins
        if j == 3 and half == 1: ins += [f's_add_u32 s34, s34, {STAGE}', f's_cmp_eq_u32 s34, {STAGE*NS}', 's_cselect_b32 s34, 0, s34']
        if j == 3: ins += [f's_add_u32 s{30+half}, s{30+half}, 4096']
        g.append(ins)
    return g
def dma_w():
    g = []
    for j in range(4):
        ins = [f'buffer_load_dwordx4 v{V_WOFF+j}, s[12:15], s32 offen offset:{j*1024} lds']
        if j == 0: ins = ['s_add_u32 m0, s35, s41', 's_nop 0'] + ins
        if j == 3: ins += [f's_add_u32 s35, s35, {STAGE}', f's_cmp_eq_u32 s35, {STAGE*NS}', 's_cselect_b32 s35, 0, s35']
        if j == 3: ins += [f's_add_u32 s32, s32, {128*2048}']
        g.append(ins)
    return g

def tail_addr(e, res_blk, out_blk, nt64):
    e(f'''
    s_mov_b32 s60, {16*2048}
    s_lshl_b32 s61, s18, 11
    ''')
    for blk, v, kind in ((res_blk, V_RO, 'r'), (out_blk, V_ST, 'o')):
        if blk:
            e(f's_lshl_b32 s19, {nt64}, 11\ns_add_u32 s19, s19, s61\nv_lshlrev_b32 v{v}, 4, v30')
            if kind == 'r': e(f'v_and_b32 v1, 1, v31\nv_lshl_add_u32 v{v}, v1, 3, v{v}\nv_lshrrev_b32 v1, 1, v31\nv_lshl_add_u32 v{v}, v1, 8, v{v}')
            else: e(f'v_and_b32 v1, 1, v31\nv_lshl_add_u32 v{v}, v1, 9, v{v}\nv_lshrrev_b32 v1, 1, v31\nv_lshl_add_u32 v{v}, v1, 8, v{v}')
        else:
            e(f's_lshl_b32 s19, {nt64}, 7\ns_add_u32 s19, s19, s61\nv_lshlrev_b32 v{v}, 11, v30')
            if kind == 'r': e(f'v_lshl_add_u32 v{v}, v31, 3, v{v}')
            else: e(f'v_and_b32 v1, 1, v31\nv_lshl_add_u32 v{v}, v1, 5, v{v}\nv_lshrrev_b32 v1, 1, v31\nv_lshl_add_u32 v{v}, v1, 4, v{v}')
        e(f'v_add_u32 v{v}, s19, v{v}')
    e(f'''
    s_lshl_b32 s18, s18, 7
    s_lshr_b32 s19, {nt64}, 1
    s_lshl_b32 s19, s19, 8
    s_add_u32 s18, s18, s19
    s_and_b32 s19, {nt64}, 1
    s_lshl_b32 s19, s19, 3
    s_add_u32 s18, s18, s19
    v_lshlrev_b32 v{V_SST}, 4, v30
    v_add_u32 v{V_SST}, s18, v{V_SST}
    ''')

def res_loads(res):
    L = []
    for i in range(2):
        for nb in range(4):
            r = V_RES + (i * 4 + nb) * 2
            L.append([f'buffer_load_dwordx2 v[{r}:{r+1}], v{V_RO}, s[56:59], {"0" if i == 0 else "s60"} offen offset:{nb*(512 if res[0] == "ws" else 32)}' + (' sc1' if res[0] == 'ws' else '')])
    return L

def unpack_res(e):
    for i in range(2):
        for nb in range(4):
            r = V_RES + (i*4+nb)*2; tm = V_TMP + (i*4+nb)*4
            e(f'v_lshlrev_b32 v{tm}, 16, v{r}')
            e(f'v_and_b32 v{tm+1}, 0xffff0000, v{r}')
            e(f'v_lshlrev_b32 v{tm+2}, 16, v{r+1}')
            e(f'v_and_b32 v{tm+3}, 0xffff0000, v{r+1}')

OUT_AUX = ['']
def finalize(e, out, st_off):
    if out[0] == 'ptr': srd(e, 56, ptr=out[1], size=S*D*2)
    else: srd(e, 56, ws_off=out[1], size=S*D*2)
    for i in range(2):
        for nb in range(4):
            r = 96 + (i*4+nb)*4; tm = V_TMP + (i*4+nb)*4
            e(f'v_pk_add_f32 v[{tm}:{tm+1}], v[{tm}:{tm+1}], v[{r}:{r+1}]')
            e(f'v_pk_add_f32 v[{tm+2}:{tm+3}], v[{tm+2}:{tm+3}], v[{r+2}:{r+3}]')
    for i in range(2):
        for nb in range(4):
            tm = V_TMP + (i*4+nb)*4; o = 32 + i*8 + nb*2
            e(f'v_cvt_pk_bf16_f32 v{o}, v{tm}, v{tm+1}')
            e(f'v_cvt_pk_bf16_f32 v{o+1}, v{tm+2}, v{tm+3}')
    if st_off is not None:
        for d in range(16): e(f'v_mov_b32 v{64+d}, v{32+d}')
    blk = out[0] == 'ws'
    for i in range(2):
        for pr in range(2):
            o = 32 + i*8 + pr*4
            e(f'v_permlane16_swap_b32 v{o}, v{o+2}')
            e(f'v_permlane16_swap_b32 v{o+1}, v{o+3}')
            e(f'buffer_store_dwordx4 v[{o}:{o+3}], v{V_ST}, s[56:59], {"0" if i == 0 else "s60"} offen offset:{pr*(1024 if blk else 64)}' + (' sc1' if blk else OUT_AUX[0]))
    if st_off is not None:
        e('s_mov_b32 s18, 0x3f803f80')
        for i in range(2):
            e(f'v_mov_b32 v{48+2*i}, 0'); e(f'v_mov_b32 v{49+2*i}, 0')
        for d in range(8):
            for i in range(2):
                o = 64 + i*8 + d
                e(f'v_dot2_f32_bf16 v{48+2*i}, v{o}, s18, v{48+2*i}')
                e(f'v_dot2_f32_bf16 v{49+2*i}, v{o}, v{o}, v{49+2*i}')
        e('s_nop 2')
        for sw in ('v_permlane32_swap_b32', 'v_permlane16_swap_b32'):
            for j in range(4): e(f'v_mov_b32 v{52+j}, v{48+j}')
            for j in range(4): e(f'{sw} v{48+j}, v{52+j}')
            for j in range(2): e(f'v_pk_add_f32 v[{48+2*j}:{49+2*j}], v[{48+2*j}:{49+2*j}], v[{52+2*j}:{53+2*j}]')
        e(f's_mov_b32 s18, {st_off}')
        e('s_mov_b64 exec, 0xffff')
        e(f'buffer_store_dwordx2 v[48:49], v{V_SST}, s[24:27], s18 offen sc1')
        e(f'buffer_store_dwordx2 v[50:51], v{V_SST}, s[24:27], s18 offen offset:2048 sc1')
        e('s_mov_b64 exec, -1')

def pre_w(m, tag, K, wptr, ntiles=3):
    e = m.e
    srd(e, 12, ptr=wptr, size=K*D*2)
    e(f's_lshl_b32 s18, s20, 5\ns_lshl_b32 s19, s{S_CI}, 7')
    w_dma_offsets(e, V_WOFF, 4, 18, 2048, 19)
    e(f'''
    s_mov_b32 s32, 0
    s_mov_b32 s35, 0
    s_lshl_b32 s41, s20, 12
    s_add_u32 s41, s41, {2*XT}
    ''')
    for u in range(ntiles):
        for ins in dma_w(): e.ext(ins); m.q.issue(f'{tag}T{u}')
    m.pd_w = ntiles

def run(m, tag, K, a_off, res, out, st_off, wait_fn, pub_fn, next_pre, opts):
    e = m.e; q = m.q
    LDA = K * 2; NBODY = K // 128; NSTEP = 2 * NBODY
    srd(e, 8, ws_off=a_off - BLK_BIAS, size=S*LDA + BLK_BIAS)
    if res[0] == 'ptr': srd(e, 56, ptr=res[1], size=S*D*2)
    else: srd(e, 56, ws_off=res[1], size=S*D*2)
    e(f'''
    s_lshl_b32 s23, s{S_MT}, 7
    s_and_b32 s28, s20, 1            ; wm
    s_lshr_b32 s29, s20, 1           ; wk
    s_lshl_b32 s18, s28, 6
    s_add_u32 s33, s23, s18
    s_lshl_b32 s18, s29, 11
    ''')
    x_dma_offsets(e, V_XOFF, 33, LDA, 18, blocked=True)
    e(f'''
    s_mov_b32 s30, 0
    s_mov_b32 s31, {32*LDA}
    s_mov_b32 s34, 0
    s_lshl_b32 s40, s20, 13
    s_add_u32 s52, s40, 4096
    s_lshl_b32 s18, s29, 5
    s_add_u32 s18, s18, s33
    ''')
    tail_addr(e, res[0] == 'ws', out[0] == 'ws', f's{S_CI}')
    e(f'''
    ''')
    x_read_addr_f(e, V_XRD, 40)
    e(f's_lshl_b32 s18, s29, 13\ns_add_u32 s18, s18, {2*XT}')
    w_read_addr(e, V_WRD, [0, 1, 2, 3], 18)
    e(f'''
    v_lshlrev_b32 v{V_EX}, 4, v2
    v_add_u32 v{V_EX}, s40, v{V_EX}
    v_xor_b32 v{V_EXR}, {2 << 13}, v{V_EX}
    s_mov_b32 s36, 0
    s_mov_b32 s42, 0
    s_mov_b32 s50, {STAGE}
    s_mov_b32 s51, {(-(NS-1)*STAGE) & 0xffffffff:#x}
    ''')
    m.stamp(tag + ' wait')
    wait_fn()
    m.stamp(tag + ' go')
    flat = []
    for u in range(NBODY):
        al = 2*(u - NS) + 1
        flat += [(ins, f'{tag}T{u}', al) for ins in dma_x(0) + dma_x(1)]
        if u >= m.pd_w: flat += [(ins, f'{tag}T{u}', al) for ins in dma_w()]
    def take(step, n):
        o = []
        while flat and len(o) < n and flat[0][2] <= step: o.append(flat.pop(0))
        return o
    n0 = sum(1 for f in flat if f[1] in (f'{tag}T0', f'{tag}T1'))
    for ins, tg, _ in take(-1, n0): e.ext(ins); q.issue(tg)
    small = res_loads(res)
    def mfma(nb, tb, p, c=None):
        a = acc(nb, tb)
        cc = f'v[{a}:{a+3}]' if c is None else c
        return f'v_mfma_f32_16x16x32_bf16 v[{a}:{a+3}], v[{wfrag(p,nb)}:{wfrag(p,nb)+3}], v[{xfrag(p,tb)}:{xfrag(p,tb)+3}], {cc}'
    def reads(p, s):
        x = lambda tb: f'ds_read_b128 v[{xfrag(p,tb)}:{xfrag(p,tb)+3}], v{V_XRD+s} offset:{tb*2048}'
        w = lambda nb, h: f'ds_read_b64_tr_b16 v[{wfrag(p,nb)+2*h}:{wfrag(p,nb)+2*h+1}], v{V_WRD+nb} offset:{(32*s+4*h)*128}'
        g = [x(0), w(0, 0), w(0, 1), x(1), x(2), x(3)]
        for nb in range(1, 4): g += [w(nb, 0), w(nb, 1)]
        return g
    needs = [max(2 if tb == 0 else 2 + tb, 5 + 2*b if b else 0) for b in range(4) for tb in range(4)]
    pt = m.phase_touch('v255') if True else None
    if pt: e.ext(pt); q.issue('pt')
    n = q.wait_for({f'{tag}T0'})
    e(f's_waitcnt vmcnt({n})')
    e('s_barrier')
    m.stamp(tag + ' main')
    e.ext(reads(0, 0))
    bodies = []
    for u in range(NBODY):
        B = []
        for s in range(2):
            t = 2 * u + s; p = s
            last = (t == NSTEP - 1)
            ms = [mfma(nb, tb, p, '0' if t == 0 else None) for nb in range(4) for tb in range(4)]
            pre = []; bar = []; rd = []
            if not last:
                if s == 1:
                    pre = [f's_add_u32 s36, s36, {STAGE}', f's_cmp_eq_u32 s36, {STAGE*NS}', 's_cselect_b32 s42, s51, s50',
                           's_cselect_b32 s36, 0, s36', f'v_add_u32 v{V_XRD}, s42, v{V_XRD}'] + \
                          [f'v_add_u32 v{V_WRD+i}, s42, v{V_WRD+i}' for i in range(4)]
                    n = q.wait_for({f'{tag}T{u+1}'})
                    bar = [f's_waitcnt vmcnt({n})', 's_barrier']
                else:
                    pre = [f'v_add_u32 v{V_XRD+1}, s42, v{V_XRD+1}']
                rd = reads(p ^ 1, s ^ 1)
            dm = []
            for ins, tg, _ in take(t, 8 if (s == 1 or t == 0) else 4): dm.append(ins); q.issue(tg)
            if not flat and not dm and small:
                for ins in small[:4]: dm.append(ins); q.issue('res')
                small = small[4:]
            B += build_step(ms, needs, 12, pre, bar, rd, dm, [], nb=(3 if s == 1 else 1))
        bodies.append(B)
    assert not flat and not small
    e.ext(loopify(bodies, m.lab(tag + 'L'), 38, m.opts.get('unroll', 1)))
    e('s_barrier')
    m.stamp(tag + ' epi')
    e('s_nop 7')
    l0 = m.lab('wk0'); lx = m.lab('ex')
    e(f's_cmp_eq_u32 s29, 0\ns_cbranch_scc1 {l0}')
    nres = q.wait_for({'res'})
    def exch(wk):
        keep = [2*wk, 2*wk+1]; send = [2 - 2*wk, 3 - 2*wk]
        for i, tb in enumerate(send):
            for nb in range(4):
                a = acc(nb, tb)
                e(f'ds_write_b128 v{V_EX}, v[{a}:{a+3}] offset:{(i*4+nb)*1024}')
        e(f's_waitcnt vmcnt({nres})')
        unpack_res(e)
        e('s_waitcnt lgkmcnt(0)')
        e('s_barrier')
        for i in range(2):
            for nb in range(4):
                r = 96 + (i*4+nb)*4
                e(f'ds_read_b128 v[{r}:{r+3}], v{V_EXR} offset:{(i*4+nb)*1024}')
        for i, tb in enumerate(keep):
            for nb in range(4):
                a = acc(nb, tb); tm = V_TMP + (i*4+nb)*4
                e(f'v_pk_add_f32 v[{tm}:{tm+1}], v[{tm}:{tm+1}], v[{a}:{a+1}]')
                e(f'v_pk_add_f32 v[{tm+2}:{tm+3}], v[{tm+2}:{tm+3}], v[{a+2}:{a+3}]')
    exch(1)
    e(f's_branch {lx}\n{l0}:')
    exch(0)
    e(f'{lx}:')
    e('s_waitcnt lgkmcnt(0)')
    finalize(e, out, st_off)
    m.stamp(tag + ' st')
    pub_fn(Pre(m, next_pre))
    m.stamp(tag + ' pub')
```

```python
from asmlib import *
from common import *
from mega import *
import pd
from pd import acc, xfrag, wfrag, V_RES, V_TMP, V_XOFF, V_WOFF, V_XRD, V_WRD, V_ST, V_SST, V_EX, V_EXR, V_RO

XT = 16384; WG_ = 8192; STAGE = XT + 2 * WG_; NS = 5
KH = F // 2; NBODY = KH // 64; NSTEP = 2 * NBODY; LDA = F * 2

def dma_x():
    g = []
    for j in range(4):
        ins = [f'buffer_load_dwordx4 v{V_XOFF+j//2}, s[8:11], s30 offen offset:{j*1024} sc1 lds']
        if j == 0: ins = ['s_add_u32 m0, s34, s40', 's_nop 0'] + ins
        if j == 3: ins += [f's_add_u32 s34, s34, {STAGE}', f's_cmp_eq_u32 s34, {STAGE*NS}', 's_cselect_b32 s34, 0, s34']
        if j == 3: ins += ['s_add_u32 s30, s30, 2048']
        g.append(ins)
    return g
def dma_w():
    g = []
    for j in range(4):
        ins = [f'buffer_load_dwordx4 v{V_WOFF+j}, s[12:15], s32 offen offset:{j*1024} lds']
        if j == 0: ins = ['s_add_u32 m0, s35, s41', 's_nop 0'] + ins
        if j == 3: ins += [f's_add_u32 s35, s35, {STAGE}', f's_cmp_eq_u32 s35, {STAGE*NS}', 's_cselect_b32 s35, 0, s35']
        if j == 3: ins += [f's_add_u32 s32, s32, {64*2048}']
        g.append(ins)
    return g

def pre_w(m, ntiles=NS):
    e = m.e
    srd(e, 12, ptr=P_DOWN, size=F*D*2)
    e(f'''
    s_lshr_b32 s18, s20, 1
    s_lshl_b32 s18, s18, 5             ; k row 32*(w>>1)
    s_and_b32 s19, s{S_CI}, 7
    s_lshl_b32 s19, s19, 1
    s_and_b32 s32, s20, 1
    s_add_u32 s19, s19, s32
    s_lshl_b32 s19, s19, 7
    ''')
    w_dma_offsets(e, V_WOFF, 4, 18, 2048, 19)
    e(f'''
    s_lshl_b32 s41, s32, 13
    s_lshl_b32 s18, s18, 7
    s_add_u32 s41, s41, s18
    s_add_u32 s41, s41, {XT}
    s_mul_i32 s32, s{S_PAR}, {KH*2048}
    s_mov_b32 s35, 0
    ''')
    for u in range(ntiles):
        for ins in dma_w(): e.ext(ins); m.q.issue(f'p4T{u}')
    m.ps_w = ntiles

def run(m, L, res, out, st_off, wait_fn, pub_fn, next_pre, opts):
    e = m.e; q = m.q; tag = 'p4'
    srd(e, 8, ws_off=reg(L, R_H) - BLK_BIAS, size=S*LDA + BLK_BIAS)
    srd(e, 56, ws_off=res[1], size=S*D*2)
    e(f'''
    s_lshl_b32 s23, s{S_MT}, 7
    s_lshr_b32 s28, s20, 1           ; wm
    s_and_b32 s29, s20, 1            ; wn
    s_lshl_b32 s18, s20, 5
    s_add_u32 s33, s23, s18
    ''')
    x_dma_offsets(e, V_XOFF, 33, LDA, None, blocked=True)
    e(f'''
    s_mul_i32 s30, s{S_PAR}, {KH*32}
    s_mov_b32 s34, 0
    s_lshl_b32 s40, s20, 12
    s_and_b32 s54, s{S_CI}, 7
    s_lshl_b32 s54, s54, 1
    s_add_u32 s54, s54, s29
    s_lshl_b32 s18, s28, 6
    s_add_u32 s18, s18, s23
    s_lshl_b32 s19, s{S_PAR}, 5
    s_add_u32 s18, s18, s19
    ''')
    pd.tail_addr(e, True, out[0] == 'ws', 's54')
    e('s_lshl_b32 s18, s28, 13')
    x_read_addr_f(e, V_XRD, 18)
    e(f's_lshl_b32 s18, s29, 13\ns_add_u32 s18, s18, {XT}')
    w_read_addr(e, V_WRD, [0, 1, 2, 3], 18)
    e(f'''
    s_lshl_b32 s18, s2, 2
    s_add_u32 s18, s18, s20
    s_xor_b32 s19, s18, 4
    s_lshl_b32 s18, s18, 12
    s_add_u32 s18, s18, {reg(L, R_PX)}
    s_lshl_b32 s19, s19, 12
    s_add_u32 s19, s19, {reg(L, R_PX)}
    v_lshlrev_b32 v1, 4, v2
    v_add_u32 v{V_EX}, s18, v1
    v_add_u32 v{V_EXR}, s19, v1
    s_mov_b32 s55, 4096
    s_mov_b32 s36, 0
    s_mov_b32 s42, 0
    s_mov_b32 s50, {STAGE}
    s_mov_b32 s51, {(-(NS-1)*STAGE) & 0xffffffff:#x}
    ''')
    small = pd.res_loads(res)
    m.stamp(tag + ' wait')
    wait_fn()
    m.stamp(tag + ' go')
    flat = []
    for u in range(NBODY):
        al = 2*(u - NS) + 1
        flat += [(ins, f'{tag}T{u}', al) for ins in dma_x()]
        if u >= m.ps_w: flat += [(ins, f'{tag}T{u}', al) for ins in dma_w()]
    def take(step, n):
        o = []
        while flat and len(o) < n and flat[0][2] <= step: o.append(flat.pop(0))
        return o
    n0 = sum(1 for f in flat if int(f[1][3:]) < opts.get('n0', 3))
    for ins, tg, _ in take(-1, n0): e.ext(ins); q.issue(tg)
    def mfma(nb, tb, p, c=None):
        a = acc(nb, tb)
        cc = f'v[{a}:{a+3}]' if c is None else c
        return f'v_mfma_f32_16x16x32_bf16 v[{a}:{a+3}], v[{wfrag(p,nb)}:{wfrag(p,nb)+3}], v[{xfrag(p,tb)}:{xfrag(p,tb)+3}], {cc}'
    def reads(p, s):
        x = lambda tb: f'ds_read_b128 v[{xfrag(p,tb)}:{xfrag(p,tb)+3}], v{V_XRD+s} offset:{tb*2048}'
        w = lambda nb, h: f'ds_read_b64_tr_b16 v[{wfrag(p,nb)+2*h}:{wfrag(p,nb)+2*h+1}], v{V_WRD+nb} offset:{(32*s+4*h)*128}'
        g = [x(0), w(0, 0), w(0, 1), x(1), x(2), x(3)]
        for nb in range(1, 4): g += [w(nb, 0), w(nb, 1)]
        return g
    needs = [max(2 if tb == 0 else 2 + tb, 5 + 2*b if b else 0) for b in range(4) for tb in range(4)]
    pt = m.phase_touch('v255') if True else None
    if pt: e.ext(pt); q.issue('pt')
    n = q.wait_for({f'{tag}T0'})
    e(f's_waitcnt vmcnt({n})')
    e('s_barrier')
    m.stamp(tag + ' main')
    e.ext(reads(0, 0))
    bodies = []
    for u in range(NBODY):
        B = []
        for s in range(2):
            t = 2 * u + s; p = s
            last = (t == NSTEP - 1)
            ms = [mfma(nb, tb, p, '0' if t == 0 else None) for nb in range(4) for tb in range(4)]
            pre = []; bar = []; rd = []
            adv = [f's_add_u32 s36, s36, {STAGE}', f's_cmp_eq_u32 s36, {STAGE*NS}', 's_cselect_b32 s42, s51, s50', 's_cselect_b32 s36, 0, s36']
            ex = []
            if not last:
                if s == 1:
                    pre = [f'v_add_u32 v{V_XRD}, s42, v{V_XRD}', f'v_add_u32 v{V_WRD}, s42, v{V_WRD}'] + \
                          [f'v_add_u32 v{V_WRD+i}, s42, v{V_WRD+i}' for i in range(1, 4)]
                    n = q.wait_for({f'{tag}T{u+1}'} | ({'res'} if u == NBODY - 2 else set()))
                    bar = [f's_waitcnt vmcnt({n})', 's_barrier']
                else:
                    pre = [f'v_add_u32 v{V_XRD+1}, s42, v{V_XRD+1}']
                    ex = adv
                rd = reads(p ^ 1, s ^ 1)
            dm = []
            for ins, tg, _ in take(t, 4 if t >= 4 else 6): dm.append(ins); q.issue(tg)
            if not flat and not dm and small:
                for ins in small[:4]: dm.append(ins); q.issue('res')
                small = small[4:]
            if opts.get('nodma') and 6 <= t < 44: dm = []
            if opts.get('noread'): rd = []
            if opts.get('nobar'): bar = bar[:1]
            B += build_step(ms, needs, 12, pre, bar, rd, dm, ex, nb=(3 if s == 1 else 1))
        bodies.append(B)
    assert not flat and not small and 'res' not in q.q
    e.ext(loopify(bodies, m.lab(tag + 'L'), 38, m.opts.get('unroll', 2)))
    e('s_barrier')
    m.stamp(tag + ' epi')
    e('s_nop 7')
    l0 = m.lab('ks0'); lx = m.lab('ex')
    e(f's_cmp_eq_u32 s{S_PAR}, 0\ns_cbranch_scc1 {l0}')
    def send(ks):
        keep = [2*ks, 2*ks+1]; snd = [2 - 2*ks, 3 - 2*ks]
        for i, tb in enumerate(snd):
            for nb in range(4):
                a = acc(nb, tb); o = 96 + (i*4+nb)*2
                e(f'v_cvt_pk_bf16_f32 v{o}, v{a}, v{a+1}')
                e(f'v_cvt_pk_bf16_f32 v{o+1}, v{a+2}, v{a+3}')
        for k in range(4):
            e(f'buffer_store_dwordx4 v[{96+4*k}:{99+4*k}], v{V_EX}, s[24:27], 0 offen offset:{k*1024} sc1')
        pd.unpack_res(e)
        for i, tb in enumerate(keep):
            for nb in range(4):
                a = acc(nb, tb); tm = V_TMP + (i*4+nb)*4
                e(f'v_pk_add_f32 v[{tm}:{tm+1}], v[{tm}:{tm+1}], v[{a}:{a+1}]')
                e(f'v_pk_add_f32 v[{tm+2}:{tm+3}], v[{tm+2}:{tm+3}], v[{a+2}:{a+3}]')
    send(1)
    e(f's_branch {lx}\n{l0}:')
    send(0)
    e(f'{lx}:')
    pl = m.lab('xpl'); ok = m.lab('xok')
    e(f's_mov_b32 s39, {1 << 16}\n{pl}:')
    for k in range(4):
        e(f'buffer_load_dwordx4 v[{128+4*k}:{131+4*k}], v{V_EXR}, s[24:27], 0 offen offset:{k*1024} sc1')
    e('s_waitcnt vmcnt(0)'); q.clear()
    e('v_max3_u32 v1, v128, v129, v130')
    for k in range(131, 143, 2): e(f'v_max3_u32 v1, v1, v{k}, v{k+1}')
    e(f'''
    v_max_u32 v1, v1, v143
    v_cmp_eq_u32 vcc, -1, v1
    s_nop 1
    s_cmp_eq_u64 vcc, 0
    s_cbranch_scc1 {ok}
    s_sub_u32 s39, s39, 1
    s_cmp_lg_u32 s39, 0
    s_cbranch_scc1 {pl}
    {ok}:
    ''')
    m.stamp(tag + ' got')
    for k in range(16):
        e(f'v_lshlrev_b32 v{96+2*k}, 16, v{128+k}')
        e(f'v_and_b32 v{97+2*k}, 0xffff0000, v{128+k}')
    pd.finalize(e, out, st_off)
    m.stamp(tag + ' st')
    pub_fn(Pre(m, next_pre))
    m.stamp(tag + ' pub')
```

```python
import sys
import build, p1 as p1old, p1d, pd, p3 as p3old, p3d, ps
from mega import *
from common import *
LDS = 163840
KN = 'interleave_layers__linear_kernel_hedgehog__geglu_ffn__prompt_kernel'
def make(opts=None, info=None):
    opts = opts or {}
    import common
    common.SHARE = opts.get('share', True)
    common.RPACE = opts.get('rpace', 1.6); common.RMARGIN = opts.get('rmargin', 3); common.COARSE = opts.get('coarse', 4)
    p1 = p1d if opts.get('deferq', 1) else p1old
    p3 = p3d if opts.get('newp3') else p3old
    m = M(KN, opts)
    m.prologue()
    m.stamp('start')
    p1d.G1S[0] = opts.get('g1s', 1)
    if p1 is p1d and not opts.get('p1', {}).get('xlate', 1): p1.first_loads(m)
    p1.pre_w(m, 0)
    for L in range(2):
        xin = ('ptr', P_X) if L == 0 else ('ws', reg(0, R_X2))
        p1.run(m, L, lambda: pd.pre_w(m, 'p2', 1024, P_WO))
        pd.run(m, 'p2', 1024, reg(L, R_O), xin, ('ws', reg(L, R_X1)), reg(L, R_STF),
               lambda: m.wait(L, E_B, f's_mov_b32 s18, s{S_MT}', 16),
               lambda pre: m.publish(L, E_C, f's_and_b32 s18, s{S_MT}, 14\ns_add_u32 s18, s18, s{S_PAR}\ns_and_b32 s19, s{S_MT}, 1\ns_lshl_b32 s19, s19, 3\ns_and_b32 s39, s{S_CI}, 7\ns_add_u32 s19, s19, s39', pre, opts.get('nb_c', 0)),
               lambda: p3.pre_w(m, L, opts.get('p3pre', 4)), opts.get('p2', {}))
        p3.run(m, L, lambda: ps.pre_w(m, opts.get('p4pre', 3)))
        last = (L == 1)
        ps.run(m, L, ('ws', reg(L, R_X1)), ('ptr', P_OUT) if last else ('ws', reg(0, R_X2)), None if last else reg(1, R_STA),
               lambda: m.wait(L, E_D, f's_and_b32 s18, s{S_MT}, 14\ns_add_u32 s18, s18, s{S_PAR}', 16),
               (lambda pre: None) if last else (lambda pre: m.publish(L, E_E, f's_mov_b32 s18, s{S_MT}\ns_mov_b32 s19, s{S_CI}', pre, opts.get('nb_e', 0))),
               None if last else (lambda: p1.pre_w(m, 1, opts.get('p1pre', 4))), opts.get('p4', {}))
    if info is not None: info['stamps'] = m.stamp_names
    kt = m.finish()
    return build.assemble_file([(KN, 256, 256, LDS)], [kt], single=opts.get('single', False))
if __name__ == '__main__':
    out = sys.argv[1] if len(sys.argv) > 1 else 'interleave_layers__linear_kernel_hedgehog__geglu_ffn__prompt.s'
    opts = eval(sys.argv[2]) if len(sys.argv) > 2 else {}
    open(out, 'w').write(make(opts))
```

```python
from asmlib import *
from common import *

P_X, P_WQKV, P_PHI, P_WO, P_GATE, P_UP, P_DOWN, P_OUT = 64, 66, 68, 70, 74, 76, 78, 80
S_MT, S_CI, S_MT2, S_NT2, S_PAR = 84, 85, 86, 87, 88
SPIN_LIMIT = 1 << 17

class M:
    def __init__(self, name, opts):
        self.e = Asm(); self.name = name; self.opts = opts; self.nl = 0; self.q = DmaQ(); self.nst = 0
        self.stamp_names = []
    def lab(self, s):
        self.nl += 1
        return f'L{s}{self.nl}'
    def prologue(self):
        e = self.e
        e(f'''
        s_cmp_lt_u32 s2, 256
        s_cbranch_scc1 Lgo
        s_endpgm
        Lgo:
        s_load_dwordx16 s[64:79], s[0:1], 0
        s_load_dwordx4 s[80:83], s[0:1], 64
        s_load_dwordx2 s[16:17], s[0:1], 80
        v_lshrrev_b32 v1, 6, v0
        v_and_b32 v2, 63, v0
        v_readfirstlane_b32 s20, v1
        v_and_b32 v30, 15, v2
        v_lshrrev_b32 v31, 4, v2
        s_and_b32 s21, s2, 7
        s_lshr_b32 s22, s2, 3             ; idx
        s_lshr_b32 s23, s21, 1            ; rg
        s_and_b32 s{S_PAR}, s21, 1
        s_lshl_b32 s18, s23, 2
        s_and_b32 s19, s22, 3
        s_add_u32 s{S_MT}, s18, s19
        s_lshl_b32 s18, s{S_PAR}, 3
        s_lshr_b32 s19, s22, 2
        s_add_u32 s{S_CI}, s18, s19
        ''')
        if self.opts.get('map48', 1):
            e(f'''
            s_lshl_b32 s18, s{S_PAR}, 2
            s_and_b32 s19, s22, 3
            s_add_u32 s{S_MT2}, s18, s19
            s_lshl_b32 s18, s23, 3
            s_lshr_b32 s19, s22, 2
            s_add_u32 s{S_NT2}, s18, s19
            ''')
        else:
            e(f'''
        s_lshl_b32 s18, s23, 1
        s_and_b32 s19, s22, 1
        s_add_u32 s{S_MT2}, s18, s19
        s_lshl_b32 s18, s{S_PAR}, 4
        s_lshr_b32 s19, s22, 1
        s_add_u32 s{S_NT2}, s18, s19
            ''')
        e(f'''
        s_mov_b32 s11, 0x00020000
        s_mov_b32 s15, 0x00020000
        s_mov_b32 s26, {WS_SIZE - self.opts.get('ws0', 0)*MB}
        s_mov_b32 s27, 0x00020000
        s_mov_b32 s59, 0x00020000
        s_mov_b32 s46, {f2u(1.0/1024):#x}
        s_mov_b32 s47, {f2u(1e-5):#x}
        s_lshl_b32 s89, s2, 2
        s_add_u32 s89, s89, s20
        s_lshl_b32 s89, s89, 10
        s_add_u32 s89, s89, {WS_STAMP}
        s_waitcnt lgkmcnt(0)
        s_add_u32 s16, s16, {self.opts.get('ws0', 0)*MB}
        s_addc_u32 s17, s17, 0
        s_mov_b32 s24, s16
        s_mov_b32 s25, s17
        ''')
    def stamp(self, nm):
        if not self.opts.get('stamp'): return
        e = self.e
        i = self.nst; self.nst += 1; self.stamp_names.append(nm)
        e('s_memrealtime s[90:91]')
        e('s_memtime s[96:97]')
        e('s_waitcnt lgkmcnt(0)')
        e('v_mov_b32 v0, s90')
        e('v_mov_b32 v1, s96')
        e('v_mov_b32 v3, 0')
        e('s_mov_b64 exec, 1')
        e(f'buffer_store_dwordx2 v[0:1], v3, s[24:27], s89 offen offset:{8*i}')
        e('s_mov_b64 exec, -1')
        self.q.issue('stamp')
    def code_touch(self, dst):
        CT = self.opts.get('ct', 10)
        return [f's_getpc_b64 s[90:91]', 'Lpc:', f's_sub_u32 s90, s90, Lpc-Lgo', 's_subb_u32 s91, s91, 0',
                's_lshr_b32 s18, s2, 3', 's_lshl_b32 s18, s18, 2', 's_add_u32 s18, s18, s20', f's_mul_i32 s18, s18, {CT*128}',
                f'v_min_u32 v1, {CT-1}, v2', 'v_lshlrev_b32 v1, 7, v1', 'v_add_u32 v1, s18, v1', 's_mov_b32 s18, Lend-Lgo', 'v_min_u32 v1, s18, v1',
                f'global_load_dword {dst}, v1, s[90:91]']
    def phase_touch(self, dst, vt=1, CT=3):
        if not self.opts.get('ptouch', 0): return None
        self.nph = getattr(self, 'nph', 0) + 1
        k = self.nph
        return [f's_getpc_b64 s[90:91]\nLph{k}:\ns_lshr_b32 s18, s2, 3\ns_lshl_b32 s18, s18, 2\ns_add_u32 s18, s18, s20\ns_mul_i32 s18, s18, {CT*128}',
                f'v_min_u32 v{vt}, {CT-1}, v2', f'v_lshlrev_b32 v{vt}, 7, v{vt}', f'v_add_u32 v{vt}, s18, v{vt}', f's_mov_b32 s18, Lend-Lph{k}', f'v_min_u32 v{vt}, s18, v{vt}',
                f'global_load_dword {dst}, v{vt}, s[90:91]']
    def tag_write(self):
        sk = self.lab('tw')
        return [f's_or_b32 s18, s2, s20\ns_cmp_lg_u32 s18, 0\ns_cbranch_scc1 {sk}\ns_memrealtime s[90:91]\ns_waitcnt lgkmcnt(0)\ns_or_b32 s18, s90, 1\n'
                f'v_mov_b32 v1, 0\nv_mov_b32 v3, s18\ns_mov_b64 exec, 1\nglobal_store_dword v1, v3, s[82:83] sc1\ns_mov_b64 exec, -1\n{sk}:']
    def tag_load(self, vz, v):
        return [f'v_mov_b32 v{vz}, 0', f'global_load_dword v{v}, v{vz}, s[82:83] sc1']
    def tag_check(self, vz, v):
        ok = self.lab('tok'); pl = self.lab('tpl')
        return [f's_mov_b32 s39, {SPIN_LIMIT}', f'{pl}:', f'v_readfirstlane_b32 s94, v{v}', 's_nop 0', 's_cmp_lg_u32 s94, 0', f's_cbranch_scc1 {ok}',
                's_sleep 1', f'global_load_dword v{v}, v{vz}, s[82:83] sc1', 's_waitcnt vmcnt(0)',
                's_sub_u32 s39, s39, 1', 's_cmp_lg_u32 s39, 0', f's_cbranch_scc1 {pl}', f'{ok}:']
    def signal(self, layer, edge, expr):
        skip = self.lab('pub')
        return [f's_cmp_lg_u32 s20, 0', f's_cbranch_scc1 {skip}'] + expr.split('\n') + [
            's_lshl_b32 s18, s18, 8', 's_lshl_b32 s19, s19, 2', 's_add_u32 s18, s18, s19', f's_add_u32 s18, s18, {flag_off(layer, edge, 0)}',
            'v_mov_b32 v1, 0', 'v_mov_b32 v3, s94', 's_mov_b64 exec, 1', 'buffer_store_dword v3, v1, s[24:27], s18 offen sc1', 's_mov_b64 exec, -1', f'{skip}:']
    def publish(self, layer, edge, expr, pre=None, nbefore=99):
        e = self.e
        self.q.issue('@')
        if pre is not None:
            pre.emit_setup()
            for _ in range(nbefore): pre.one()
        i = self.q.q.index('@')
        n = len(self.q.q) - 1 - i
        self.q.q = self.q.q[i + 1:]
        e(f's_waitcnt vmcnt({min(n, 63)})')
        e('s_barrier')
        e.ext(self.signal(layer, edge, expr))
        if pre is not None:
            while pre.dmas: pre.one()
    def wait(self, layer, edge, group_expr, n, nshard=1):
        e = self.e
        bar = self.lab('wbar'); poll = self.lab('poll'); got = self.lab('got')
        e(f's_cmp_lg_u32 s20, 0\ns_cbranch_scc1 {bar}')
        e(group_expr)
        assert n == 16
        e(f'''
        s_lshl_b32 s18, s18, 8
        s_add_u32 s18, s18, {flag_off(layer, edge, 0)}
        v_lshlrev_b32 v1, 2, v30
        v_lshl_add_u32 v1, v31, 8, v1
        s_mov_b32 exec_lo, {(1 << (16*nshard)) - 1:#x}
        s_mov_b32 exec_hi, 0
        s_mov_b32 s39, {SPIN_LIMIT}
        ''')
        if self.opts.get('poll2', 0):
            e(f'''
            buffer_load_dword v254, v1, s[24:27], s18 offen sc1
            {poll}:
            s_sleep {self.opts.get('psl', 2)}
            buffer_load_dword v255, v1, s[24:27], s18 offen sc1
            s_waitcnt vmcnt(1)
            v_cmp_ne_u32 vcc, s94, v254
            s_nop 1
            s_cmp_eq_u64 vcc, 0
            s_cbranch_scc1 {got}
            s_sleep {self.opts.get('psl', 2)}
            buffer_load_dword v254, v1, s[24:27], s18 offen sc1
            s_waitcnt vmcnt(1)
            v_cmp_ne_u32 vcc, s94, v255
            s_nop 1
            s_cmp_eq_u64 vcc, 0
            s_cbranch_scc1 {got}
            s_sub_u32 s39, s39, 1
            s_cmp_lg_u32 s39, 0
            s_cbranch_scc1 {poll}
            ''')
        else:
            e(f'''
        {poll}:
        buffer_load_dword v3, v1, s[24:27], s18 offen sc1
        s_waitcnt vmcnt(0)
        v_cmp_ne_u32 vcc, s94, v3
        s_nop 1
        s_cmp_eq_u64 vcc, 0
        s_cbranch_scc1 {got}
        s_sleep 1
        s_sub_u32 s39, s39, 1
        s_cmp_lg_u32 s39, 0
        s_cbranch_scc1 {poll}
            ''')
        e(f'''
        {got}:
        s_mov_b64 exec, -1
        {bar}:
        s_barrier
        ''')
    def soft_load(self, soff, voff, v):
        return [f'buffer_load_dword v{v}, v{voff}, s[24:27], s{soff} offen sc1']
    def soft_check(self, soff, voff, v):
        ok = self.lab('sok'); pl = self.lab('spl')
        return [f's_mov_b32 s39, {SPIN_LIMIT}', f'{pl}:', f'v_cmp_ne_u32 s[90:91], s94, v{v}', 's_nop 1', 's_cmp_eq_u64 s[90:91], 0', f's_cbranch_scc1 {ok}',
                's_sleep 1', f'buffer_load_dword v{v}, v{voff}, s[24:27], s{soff} offen sc1', 's_waitcnt vmcnt(0)',
                's_sub_u32 s39, s39, 1', 's_cmp_lg_u32 s39, 0', f's_cbranch_scc1 {pl}', f'{ok}:']
    def finish(self, vg=256, ag=256):
        e = self.e
        e(f'Lend:')
        e('s_endpgm')
        return kernel_text(self.name, hazard_pass(e.L), vg, ag, sgpr=100)

def srd(e, base, ptr=None, ws_off=None, size=None):
    if ptr is not None: e(f's_mov_b32 s{base}, s{ptr}\ns_mov_b32 s{base+1}, s{ptr+1}')
    else: e(f's_add_u32 s{base}, s16, {ws_off}\ns_addc_u32 s{base+1}, s17, 0')
    e(f's_mov_b32 s{base+2}, {size}')

def x_dma_offsets(e, v, row_sreg, ld, extra_sreg=None, blocked=False):
    if not blocked:
        e(f'''
        v_lshrrev_b32 v3, 3, v2
        v_add_u32 v3, s{row_sreg}, v3
        v_mul_u32_u24 v3, {ld}, v3
        ''')
        if extra_sreg is not None: e(f'v_add_u32 v3, s{extra_sreg}, v3')
        e(f'''
        v_and_b32 v1, 7, v2
        v_xor_b32 v1, v1, v31
        v_lshl_add_u32 v{v}, v1, 4, v3
        v_xor_b32 v1, 4, v1
        v_lshl_add_u32 v{v+1}, v1, 4, v3
        v_add_u32 v{v+1}, {8*ld - 1024}, v{v+1}
        v_add_u32 v{v+2}, {16*ld - 2048}, v{v}
        v_add_u32 v{v+3}, {16*ld - 2048}, v{v+1}
        ''')
    else:
        e(f'''
        s_mul_i32 s19, s{row_sreg}, {ld}
        v_lshlrev_b32 v{v}, 4, v2
        v_add_u32 v{v}, s19, v{v}
        ''')
        if extra_sreg is not None: e(f'v_add_u32 v{v}, s{extra_sreg}, v{v}')
        e(f'v_add_u32 v{v+1}, {16*ld - 2048}, v{v}')
BLK_BIAS = 0


def w_dma_offsets(e, v, n, krow_sreg, ld, col_sreg):
    e(f'''
    v_lshrrev_b32 v3, 3, v2
    v_add_u32 v3, s{krow_sreg}, v3
    v_mul_u32_u24 v3, {ld}, v3
    v_add_u32 v3, s{col_sreg}, v3
    v_and_b32 v1, 1, v31
    v_lshlrev_b32 v1, 1, v1
    v_and_b32 v0, 7, v2
    v_xor_b32 v1, v1, v0
    v_lshl_add_u32 v{v}, v1, 4, v3
    v_xor_b32 v1, 4, v1
    v_lshl_add_u32 v{v+1}, v1, 4, v3
    v_add_u32 v{v+1}, {8*ld - 1024}, v{v+1}
    ''')
    if n == 4:
        e(f'v_add_u32 v{v+2}, {16*ld - 2048}, v{v}\nv_add_u32 v{v+3}, {16*ld - 2048}, v{v+1}')

def x_read_addr_f(e, v, base_sreg):
    e(f'v_lshlrev_b32 v{v}, 4, v2\nv_add_u32 v{v}, s{base_sreg}, v{v}\nv_add_u32 v{v+1}, 1024, v{v}')

def frag_store_addr(e, v, base_sreg):
    e(f'''
    v_lshlrev_b32 v{v}, 4, v30
    v_and_b32 v1, 1, v31
    v_lshl_add_u32 v{v}, v1, 9, v{v}
    v_lshrrev_b32 v1, 1, v31
    v_lshl_add_u32 v{v}, v1, 8, v{v}
    v_add_u32 v{v}, s{base_sreg}, v{v}
    ''')

def x_read_addr(e, v, base_sreg):
    e(f'''
    v_lshrrev_b32 v1, 1, v30
    v_lshlrev_b32 v3, 7, v30
    v_add_u32 v3, s{base_sreg}, v3
    v_xor_b32 v{v}, v31, v1
    v_xor_b32 v{v+1}, 4, v{v}
    v_lshl_add_u32 v{v}, v{v}, 4, v3
    v_lshl_add_u32 v{v+1}, v{v+1}, 4, v3
    ''')

def w_read_addr(e, v, nbs, base_sreg, nb_xor_sreg=None):
    e(f'''
    v_bfe_u32 v1, v2, 2, 2
    v_lshl_add_u32 v3, v31, 3, v1
    v_lshlrev_b32 v3, 7, v3
    v_add_u32 v3, s{base_sreg}, v3
    v_and_b32 v0, 1, v2
    v_lshl_add_u32 v3, v0, 3, v3
    v_and_b32 v1, 2, v1
    v_and_b32 v0, 1, v31
    v_lshl_add_u32 v1, v0, 2, v1
    v_bfe_u32 v0, v2, 1, 1
    v_or_b32 v1, v1, v0
    ''')
    if nb_xor_sreg is not None: e(f'v_xor_b32 v1, s{nb_xor_sreg}, v1')
    for i, nb in enumerate(nbs):
        e(f'v_xor_b32 v0, {2*nb}, v1')
        e(f'v_lshl_add_u32 v{v+i}, v0, 4, v3')

def stats_loads(dst_fmt, voff, soff):
    return [[f'buffer_load_dwordx4 {dst_fmt(i*4)}, v{voff}, s[24:27], s{soff} offen offset:{i*256} sc1'] for i in range(8)]

class Pre:
    def __init__(self, m, fn):
        self.m = m; self.setup = []; self.dmas = []
        if fn is None: return
        keep_e, keep_q = m.e, m.q
        cap = Asm(); m.e = cap
        class Q:
            def __init__(s): s.marks = []
            def issue(s, tag): s.marks.append((len(cap.L), tag))
        m.q = Q()
        fn()
        marks = m.q.marks
        m.e, m.q = keep_e, keep_q
        first = next(i for i, l in enumerate(cap.L) if 'm0' in l)
        self.setup = cap.L[:first]
        prev = first
        for pos, tag in marks:
            self.dmas.append((cap.L[prev:pos], tag)); prev = pos
    def emit_setup(self):
        self.m.e.ext(self.setup); self.setup = []
    def emit_all(self):
        self.emit_setup()
        while self.dmas: self.one()
    def one(self):
        if self.dmas:
            ins, tag = self.dmas.pop(0)
            self.m.e.ext(ins); self.m.q.issue(tag)
    def weave(self, lines, every):
        for i, l in enumerate(lines):
            self.m.e(l)
            if i % every == every - 1: self.one()
        while self.dmas: self.one()
```

```python
from asmlib import *
from common import *
from mega import *

XT = 16384; WG_ = 8192; STAGE = XT + 2 * WG_; NS = 5
QST = XT + WG_; QNS = 6; QB = 90112; QWRAP = 16384
LDW = 3 * D * 2
NBODY = 16; NSTEP = 32
ROWB = 352; HREG = 128 * ROWB

def acc(blk, tb): return 32 + (blk * 4 + tb) * 4
def xfrag(p, tb): return 128 + p * 32 + tb * 4
def wfrag(p, b): return 128 + p * 32 + 16 + b * 4
V_RAW = 208; V_PHI = 240; V_A = 248
CSA = 0; NMB = 24; PHH = 40; ONES = 48; CSP = 52
V_XOFF = 4; V_WOFF = 8; V_XRD = 12; V_WRD = 14
V_LW = 18; V_LR = 19; V_KV = 20; V_OS = 21; V_KZ = 22

G1S = [1]
def adv(reg, part):
    if part == 'a': return [f's_add_u32 s{reg}, s{reg}, {STAGE}', f's_cmp_eq_u32 s{reg}, {STAGE*NS}', f's_cselect_b32 s{reg}, 0, s{reg}']
    return [f's_add_u32 s{reg}, s{reg}, {QST}', f's_cmp_eq_u32 s{reg}, 163840', f's_cselect_b32 s{reg}, {QWRAP}, s{reg}']
def dma_x(L, part):
    aux = '' if L == 0 else 'sc1'
    g = []
    for j in range(4):
        ins = [f'buffer_load_dwordx4 v{V_XOFF+(j//2 if L else j)}, s[8:11], s30 offen offset:{j*1024} {aux} lds']
        if j == 0: ins = ['s_add_u32 m0, s34, s40', 's_nop 0'] + ins
        if j == 3: ins += adv(34, part) + [f's_add_u32 s30, s30, {2048 if L else 128}'] + (['s_and_b32 s30, s30, 0x7ff'] if L == 0 else [])
        g.append(ins)
    return g
def dma_w(L, part):
    g = []
    grps = [(32, 41), (33, 43)] if part == 'a' else [(32, 41)]
    first = 2048 if part == 'a' else 0
    for gi, (so, mb) in enumerate(grps):
        for j in range(2):
            ins = [f'buffer_load_dwordx4 v{V_WOFF+j}, s[12:15], s{so} offen offset:{j*1024} lds']
            if j == 0: ins = [f's_add_u32 m0, s35, s{mb}', 's_nop 0'] + ins
            if j == 1 and gi == len(grps) - 1:
                ins += adv(35, part) + [f's_add_u32 s32, s32, {64*LDW}']
                if L == 0: ins += [f's_cmp_eq_u32 s32, {D*LDW + first}', f's_cselect_b32 s32, {first}, s32']
                if part == 'a': ins += ['s_add_u32 s33, s32, 2048']
            g.append(ins)
    return g

def first_loads(m):
    e = m.e
    srd(e, 8, ptr=P_X, size=S*D*2)
    e(f'''
    s_lshl_b32 s18, s{S_MT}, 7
    s_lshl_b32 s19, s{S_CI}, 3
    s_add_u32 s18, s18, s19
    s_lshl_b32 s19, s20, 1
    s_add_u32 s48, s18, s19
    s_lshl_b32 s18, s48, 11
    v_lshlrev_b32 v1, 5, v2
    ''')
    for r in range(2):
        for h in range(2):
            e(f'buffer_load_dwordx4 v[{V_RAW+r*8+h*4}:{V_RAW+r*8+h*4+3}], v1, s[8:11], s18 offen offset:{r*2048 + h*16}'); m.q.issue('xr')

def pre_w(m, layer, ntiles=2):
    e = m.e
    srd(e, 12, ptr=P_WQKV, size=D*LDW)
    e(f'''
    s_lshl_b32 s18, s20, 4
    s_lshl_b32 s19, s{S_CI}, 7
    ''')
    w_dma_offsets(e, V_WOFF, 2, 18, LDW, 19)
    e(f'''
    s_andn2_b32 s95, s{S_MT}, {(1 << G1S[0]) - 1}
    s_mul_i32 s32, s95, {64*LDW if layer == 0 else 0}
    s_add_u32 s32, s32, 2048
    s_add_u32 s33, s32, 2048
    s_mov_b32 s35, 0
    s_lshl_b32 s41, s20, 11
    s_add_u32 s41, s41, {XT}
    s_add_u32 s43, s41, {WG_}
    ''')
    for u in range(ntiles):
        for ins in dma_w(layer, 'a'): e.ext(ins); m.q.issue(f'P1T{u}')
    m.p1_w = ntiles

def run(m, layer, next_pre):
    e = m.e; q = m.q; opts = m.opts.get('p1', {})
    L = layer
    if L == 0: srd(e, 8, ptr=P_X, size=S*D*2)
    else: srd(e, 8, ws_off=reg(0, R_X2) - BLK_BIAS, size=S*D*2 + BLK_BIAS)
    e(f'''
    s_lshl_b32 s23, s{S_MT}, 7        ; m0
    s_lshr_b32 s28, s20, 1            ; wm
    s_and_b32 s29, s20, 1             ; wh
    s_lshl_b32 s18, s20, 5
    s_add_u32 s18, s18, s23
    ''')
    x_dma_offsets(e, V_XOFF, 18, 2048, blocked=(L > 0))
    e(f's_mul_i32 s30, s95, {128 if L == 0 else 0}\ns_and_b32 s31, s{S_MT}, {(1 << G1S[0]) - 1}\ns_mov_b32 s34, 0\ns_lshl_b32 s40, s20, 12')
    def rest_setup():
        e('s_lshl_b32 s18, s28, 13')
        (x_read_addr if L == 0 else x_read_addr_f)(e, V_XRD, 18)
        e(f's_mov_b32 s18, {XT}\ns_lshl_b32 s19, s29, 2')
        w_read_addr(e, V_WRD, [0, 1], 18, 19)
        e(f'''
        s_lshl_b32 s18, s{S_CI}, 1
        s_add_u32 s54, s18, s29            ; head
        s_lshl_b32 s18, s{S_MT}, 3
        s_lshl_b32 s19, s28, 2
        s_add_u32 s18, s18, s19
        s_lshl_b32 s18, s18, 11
        s_add_u32 s60, s18, {reg(L, R_STA)}
        v_lshlrev_b32 v23, 11, v31
        v_lshl_add_u32 v23, v30, 4, v23
        s_lshl_b32 s18, s54, 5
        v_add_u32 v1, s18, v30
        v_lshlrev_b32 v24, 4, v1
        v_mov_b32 v16, v24
        v_mul_u32_u24 v1, {CS_PLANE}, v31
        v_add_u32 v24, v24, v1
        s_mov_b32 s62, {WS_CS}
        s_mov_b32 s63, {WS_CS + 1024*16}
        s_mov_b32 s55, {WS_CS + 2048*16}
        v_lshlrev_b32 v25, 8, v31
        v_lshl_add_u32 v25, v30, 1, v25
        s_lshl_b32 s45, s54, 11
        s_lshl_b32 s18, s28, 6
        v_add_u32 v1, s18, v30
        v_mul_u32_u24 v1, {ROWB}, v1
        v_lshrrev_b32 v3, 2, v30
        v_xor_b32 v3, v3, v31
        v_lshl_add_u32 v1, v3, 3, v1
        s_mul_i32 s18, s29, {HREG}
        v_add_u32 v{V_LW}, s18, v1
        v_bfe_u32 v1, v2, 2, 2
        v_lshl_add_u32 v1, v31, 2, v1
        v_mul_u32_u24 v1, {ROWB}, v1
        v_and_b32 v3, 3, v2
        v_xor_b32 v3, v3, v31
        v_lshl_add_u32 v1, v3, 3, v1
        v_add_u32 v{V_LR}, s18, v1
        s_lshl_b32 s18, s{S_MT}, 5
        s_add_u32 s18, s18, s54
        s_mul_i32 s18, s18, {KVP_HEAD}
        s_add_u32 s18, s18, {reg(L, R_KVP)}
        s_lshl_b32 s19, s28, 7
        s_add_u32 s19, s19, s18
        s_add_u32 s19, s19, 8192
        v_lshlrev_b32 v1, 4, v31
        v_add_u32 v{V_KZ}, s19, v1
        s_lshl_b32 s19, s28, 12
        s_add_u32 s18, s18, s19
        v_lshlrev_b32 v1, 4, v2
        v_add_u32 v{V_KV}, s18, v1
        s_lshl_b32 s18, s28, 6
        s_add_u32 s18, s18, s23
        s_lshl_b32 s18, s18, 11
        s_lshl_b32 s19, s54, 10
        s_add_u32 s18, s18, s19
        s_add_u32 s18, s18, {reg(L, R_O)}
        ''')
        frag_store_addr(e, V_OS, 18)
        e(f'''
        s_mov_b32 s36, 0
        s_mov_b32 s42, 0
        s_mov_b32 s50, {STAGE}
        s_mov_b32 s51, {(-(NS-1)*STAGE) & 0xffffffff:#x}
        ''')
        srd(e, 56, ptr=P_PHI, size=65536)
        e(f'''
        s_lshr_b32 s18, s{S_MT}, 3
        s_lshl_b32 s19, s{S_CI}, 1
        s_add_u32 s18, s18, s19
        s_mul_i32 s44, s18, 6144
        s_bfe_u32 s18, s{S_MT}, 0x10002
        s_mul_i32 s18, s18, 3072
        s_add_u32 s44, s44, s18
        s_and_b32 s18, s{S_MT}, 1
        s_lshl_b32 s18, s18, 10
        s_add_u32 s44, s44, s18
        s_and_b32 s18, s{S_MT}, 2
        s_lshl_b32 s18, s18, 2
        s_add_u32 s44, s44, s18
        s_lshr_b32 s18, s{S_MT}, 2
        s_add_u32 s18, s18, s19
        s_mul_i32 s39, s18, 6144
        s_bfe_u32 s18, s{S_MT}, 0x10001
        s_mul_i32 s18, s18, 3072
        s_add_u32 s39, s39, s18
        s_and_b32 s18, s{S_MT}, 1
        s_lshl_b32 s18, s18, 3
        s_add_u32 s39, s39, s18
        s_add_u32 s39, s39, 2048
        s_lshr_b32 s18, s{S_MT}, 3
        s_lshl_b32 s18, s18, 2
        s_add_u32 s18, s18, s20
        s_add_u32 s92, s44, {reg(L, R_KVR)}
        s_add_u32 s93, s39, {reg(L, R_KVR)}
        s_cmp_eq_u32 s18, 1
        s_cselect_b32 s44, s93, s92
        ''')
    csld = lambda b, v=24: [f'buffer_load_dwordx4 a[{CSA+4*b}:{CSA+4*b+3}], v{v}, s[24:27], s{[62,63,55][b//2]} offen offset:{(b%2)*256} sc1']
    const = [csld(b) for b in range(2 if L == 0 else 0, 6)]
    for fb in range(2):
        for i in range(8):
            d = (i & 3) + 16 * (i >> 2)
            dst = f'v{V_PHI + fb*4 + i//2}' if i % 2 == 0 else f'a{PHH + fb*4 + i//2}'
            const.append([f'buffer_load_ushort {dst}, v25, s[56:59], s45 offen offset:{d*64 + fb*32}'])
    small = stats_loads(lambda o: f'v[{V_RAW+o}:{V_RAW+o+3}]', 23, 60)
    if L > 0:
        rest_setup()
        for ins in const: e.ext(ins); q.issue('const')
        m.stamp('p1 wait')
        m.wait(L - 1, E_E, f's_mov_b32 s18, s{S_MT}', 16)
    else:
        small = const[4:] + const[:4] + small
    m.stamp('p1 go')
    nw = m.p1_w
    flat = []
    for u in range(NBODY):
        xs = [(ins, f'P1T{u}', 2*(u - NS) + 1) for ins in dma_x(L, 'a')]
        ws = [(ins, f'P1T{u}', 2*(u - NS) + 1) for ins in dma_w(L, 'a')] if u >= nw else []
        flat += xs + ws
    def take(step, n):
        out = []
        while flat and len(out) < n and flat[0][2] <= step: out.append(flat.pop(0))
        return out
    n0 = sum(1 for f in flat if int(f[1][3:]) < max(2, min(nw, 4)))
    for ins, tag, _ in take(-1, n0): e.ext(ins); q.issue(tag)
    if L == 0:
        if opts.get('xlate', 1): first_loads(m)
        if m.opts.get('ctouch', 1): e.ext(m.code_touch('a64')); q.issue('ct')
        for x in m.tag_write(): e(x)
        rest_setup()
        e(f'''
        v_mov_b32 v1, 0x3f803f80
        v_accvgpr_write_b32 a{ONES}, v1
        v_accvgpr_write_b32 a{ONES+1}, v1
        v_accvgpr_write_b32 a{ONES+2}, v1
        v_accvgpr_write_b32 a{ONES+3}, v1
        s_lshr_b32 s18, s{S_MT}, 2
        s_mul_i32 s18, s18, {CS_PLANE}
        s_and_b32 s19, s{S_MT}, 3
        s_lshl_b32 s19, s19, 2
        s_add_u32 s18, s18, s19
        v_add_u32 v16, s18, v16
        s_lshr_b32 s18, s48, 4
        s_lshl_b32 s18, s18, 11
        s_and_b32 s19, s48, 15
        s_lshl_b32 s19, s19, 4
        s_add_u32 s18, s18, s19
        s_add_u32 s48, s18, {reg(0, R_STA)}
        v_lshrrev_b32 v17, 3, v2
        v_lshlrev_b32 v17, 8, v17
        v_bfe_u32 v1, v2, 2, 1
        v_lshl_add_u32 v17, v1, 3, v17
        s_lshl_b32 s49, s{S_MT}, 8
        s_add_u32 s49, s49, {flag_off(0, E_S, 0)}
        s_lshl_b32 s52, s{S_CI}, 8
        s_add_u32 s52, s52, {flag_off(0, E_CSQ, 0)}
        v_lshlrev_b32 v28, 2, v30
        s_cmp_lt_u32 s20, 2
        s_cselect_b32 s4, s{P_GATE}, s{P_UP}
        s_cselect_b32 s5, s{P_GATE+1}, s{P_UP+1}
        s_mov_b32 s6, {D*F*2}
        s_mov_b32 s7, 0x00020000
        s_lshl_b32 s18, s2, 1
        s_and_b32 s19, s20, 1
        s_add_u32 s18, s18, s19
        s_mul_i32 s37, s18, {112*128}
        v_lshlrev_b32 v11, 7, v31
        s_mov_b32 s18, 0x3f803f80
        ''')
        A0 = V_RAW + 16
        xs = [f'v_mov_b32 v{A0+i}, 0' for i in range(4)] + ['s_mov_b32 s18, 0x3f803f80']
        for d in range(8):
            for r in range(2):
                x = V_RAW + r*8 + d
                xs += [f'v_dot2_f32_bf16 v{A0+2*r}, v{x}, s18, v{A0+2*r}', f'v_dot2_f32_bf16 v{A0+2*r+1}, v{x}, v{x}, v{A0+2*r+1}']
        xs += ['s_nop 4']
        for qp in ('[1,0,3,2]', '[2,3,0,1]'):
            xs += [f'v_add_f32_dpp v{A0+i}, v{A0+i}, v{A0+i} quad_perm:{qp} row_mask:0xf bank_mask:0xf' for i in range(4)]
        if not opts.get('xlate', 1):
            e(f's_waitcnt vmcnt({q.wait_for({"xr"})})'); e.ext(xs)
    def mfma(blk, b, tb, p, c=None):
        a = acc(blk, tb)
        cc = f'v[{a}:{a+3}]' if c is None else c
        return f'v_mfma_f32_16x16x32_bf16 v[{a}:{a+3}], v[{wfrag(p,b)}:{wfrag(p,b)+3}], v[{xfrag(p,tb)}:{xfrag(p,tb)+3}], {cc}'
    def reads(p, s, nbk):
        x = lambda tb: f'ds_read_b128 v[{xfrag(p,tb)}:{xfrag(p,tb)+3}], v{V_XRD+s} offset:{tb*2048}'
        w = lambda b, h: f'ds_read_b64_tr_b16 v[{wfrag(p,b)+2*h}:{wfrag(p,b)+2*h+1}], v{V_WRD+(b&1)} offset:{(b>>1)*WG_ + (32*s+4*h)*128}'
        g = [x(0), w(0, 0), w(0, 1), x(1), x(2), x(3)]
        for b in range(1, nbk): g += [w(b, 0), w(b, 1)]
        return g
    needs = [max(2 if tb == 0 else 2 + tb, 5 + 2*b if b else 0) for b in range(4) for tb in range(4)]
    n = q.wait_for({'P1T0'})
    e(f's_waitcnt vmcnt({n})')
    e('s_barrier')
    m.stamp('p1 main')
    e.ext(reads(0, 0, 4))
    extra = []
    for i in range(8):
        extra.append(f'v_accvgpr_read_b32 v26, a{PHH+i}')
        extra.append(f'v_lshl_or_b32 v{V_PHI+i}, v26, 16, v{V_PHI+i}')
    extra += stats_t(V_RAW, V_A, V_RAW + 8, None)
    for tb in range(4): extra.append(f'v_rcp_f32 v{V_A+tb}, v{V_A+tb}')
    for tb in range(4):
        for i in range(4): extra.append(f'v_accvgpr_write_b32 a{NMB+4*tb+i}, v{V_RAW+8+tb}')
    TW = 27
    def cs_pack(C0, n):
        o = [f'v_accvgpr_read_b32 v{C0+i}, a{CSP+4*i}' for i in range(n)]
        o += [f'v_cvt_pk_bf16_f32 v{C0+4+i}, v{C0+i}, v{C0+i}' for i in range(n)]
        o += [f'v_and_b32 v{C0+4+i}, 0xffff0000, v{C0+4+i}' for i in range(n)]
        o += [f'v_sub_f32 v{C0+4+i}, v{C0+i}, v{C0+4+i}' for i in range(n)]
        o += [f'v_cvt_pk_bf16_f32 v{C0+4+i}, v{C0+i}, v{C0+4+i}' for i in range(n)]
        return o
    early = []
    if L == 0:
        early += cs_pack(V_RAW + 24, 2)
    SENT = 252
    sent = [[f'v_mov_b32 v{SENT+i}, -1' for i in range(4)] + ['v_lshlrev_b32 v29, 4, v2', f'buffer_store_dwordx2 v[{SENT}:{SENT+1}], v29, s[24:27], s44 offen sc1']]
    bodies = []
    for u in range(NBODY):
        B = []
        for s in range(2):
            t = 2 * u + s; p = s
            last = (t == NSTEP - 1)
            ms = [mfma(2 + b, b, tb, p, '0' if t == 0 else None) for b in range(4) for tb in range(4)]
            pre = []; bar = []; rd = []
            if not last:
                if s == 1:
                    pre = [f's_add_u32 s36, s36, {STAGE}', f's_cmp_eq_u32 s36, {STAGE*NS}', 's_cselect_b32 s42, s51, s50',
                           's_cselect_b32 s36, 0, s36', f'v_add_u32 v{V_XRD}, s42, v{V_XRD}'] + \
                          [f'v_add_u32 v{V_WRD+i}, s42, v{V_WRD+i}' for i in range(2)]
                    tags = {f'P1T{u+1}'} | ({'small'} if t == TW else set())
                    if L == 0 and t == 13: tags |= {'tag', 'hand'}
                    if L == 0 and t == 23: tags |= {'flg'}
                    if L == 0 and t == 3: tags |= {'xr'}
                    n = q.wait_for(tags)
                    bar = [f's_waitcnt vmcnt({n})', 's_barrier']
                    if L == 0 and t == 3 and opts.get('xlate', 1): bar = [bar[0]] + xs + [bar[1]]
                    if L == 0 and t == 13:
                        bar += m.tag_check(26, 27)
                        bar += m.signal(0, E_S, f's_mov_b32 s18, s{S_MT}\ns_mov_b32 s19, s{S_CI}')
                        bar += m.signal(0, E_CSQ, f's_mov_b32 s18, s{S_CI}\ns_mov_b32 s19, s{S_MT}')
                    if L == 0 and t == 23:
                        bar += m.soft_check(49, 28, 26) + m.soft_check(52, 28, 27)
                else:
                    pre = [f'v_add_u32 v{V_XRD+1}, s42, v{V_XRD+1}']
                rd = reads(p ^ 1, s ^ 1, 4)
            dm = []
            for ins, tag, _ in take(t, opts.get('q', 6) if t < 10 else 4): dm.append(ins); q.issue(tag)
            if L == 0 and t == 5: dm.append(m.tag_load(26, 27)); q.issue('tag')
            if L == 0 and opts.get('gut', 0) and s == 0 and u >= 2:
                dm.append(['buffer_load_dword a65, v11, s[4:7], s37 offen', 's_add_u32 s37, s37, 512']); q.issue('touch')
            if L == 0 and t == 17:
                dm.append(m.soft_load(49, 28, 26)); q.issue('flg'); dm.append(m.soft_load(52, 28, 27)); q.issue('flg')
            if t == 27 and sent:
                dm.append(sent.pop(0)); q.issue('sent')
            if small and t >= (17 if L == 0 else 23):
                k = max(0, (7 if L == 0 else 3) - len(dm))
                if L == 0 and t < 23: k = min(k, len(small) - 12)
                for ins in small[:k]: dm.append(ins); q.issue('small')
                small = small[k:]
            if t == TW: assert not small
            ex = []
            if t >= TW and extra:
                k = (len(extra) + NSTEP - 1 - t) // (NSTEP - t)
                ex = extra[:k]; extra = extra[k:]
            if early and t == (2 << G1S[0]) + 1:
                k = len(early)
                ex = early[:k]; early = early[k:]
            if opts.get('nodma') and 8 <= t < 21: dm = []
            if opts.get('noread'): rd = []
            if opts.get('nobar'): bar = bar[:1]
            step = build_step(ms, needs, 12, pre, bar, rd, dm, ex, nb=(3 if s == 1 else 1))
            if L == 0 and t < (2 << G1S[0]):
                l1 = m.lab('cq'); le = m.lab('cqe')
                step += [f's_cmp_lg_u32 s31, {u}', f's_cbranch_scc1 {le}', 's_cmp_lg_u32 s28, 0', f's_cbranch_scc1 {l1}']
                for wm in range(2):
                    for i in range(2):
                        d = CSP + 4*i; b = 2*wm + i
                        step.append(f'v_mfma_f32_16x16x32_bf16 a[{d}:{d+3}], a[{ONES}:{ONES+3}], v[{wfrag(p,b)}:{wfrag(p,b)+3}], ' + ('0' if s == 0 else f'a[{d}:{d+3}]'))
                    if wm == 0: step += [f's_branch {le}', f'{l1}:']
                step += [f'{le}:']
            if L == 0 and t == (2 << G1S[0]) + 1:
                l1 = m.lab('cw'); le = m.lab('cwe')
                A0 = V_RAW + 16; C0 = V_RAW + 24
                step += ['s_mov_b32 exec_lo, 0x11111111', 's_mov_b32 exec_hi, 0x11111111']
                for r in range(2): step.append(f'buffer_store_dwordx2 v[{A0+2*r}:{A0+2*r+1}], v17, s[24:27], s48 offen offset:{r*16} sc1')
                step += ['s_mov_b64 exec, 0xffff', 's_cmp_lg_u32 s28, 0', f's_cbranch_scc1 {l1}']
                for wm in range(2):
                    for i in range(2):
                        b = 2 + 2*wm + i
                        step.append(f'buffer_store_dword v{C0+4+i}, v16, s[24:27], s{[62,63,55][b//2]} offen offset:{(b%2)*256} sc1')
                    if wm == 0: step += [f's_branch {le}', f'{l1}:']
                step += [f'{le}:', 's_mov_b64 exec, -1']
                for i in range(4): q.issue('hand')
            B += step
        bodies.append(B)
    assert not flat and not extra and not small and not early and not sent, (len(flat), len(extra), len(small))
    if opts.get('lst'):
        cuts = opts['lst']
        prev = 0
        for c in cuts + [NBODY]:
            e.ext(loopify(bodies[prev:c], m.lab('p1L'), 38)); prev = c
            if c < NBODY:
                sv = list(q.q); e('s_waitcnt lgkmcnt(0)'); m.stamp(f'p1 b{c}'); q.q = sv
    else:
        e.ext(loopify(bodies, m.lab('p1L'), 38, m.opts.get('unroll', 1)))
    def corr(blks):
        return [f'v_mfma_f32_16x16x32_bf16 v[{acc(b,tb)}:{acc(b,tb)+3}], a[{CSA+4*b}:{CSA+4*b+3}], a[{NMB+4*tb}:{NMB+4*tb+3}], v[{acc(b,tb)}:{acc(b,tb)+3}]'
                for b in blks for tb in range(4)]
    e.ext(corr(range(2, 6)))
    e('s_barrier')
    m.stamp('p1 epi')
    e(f'''
    s_mul_i32 s30, s95, {128 if L == 0 else 0}
    s_mul_i32 s32, s95, {64*LDW if L == 0 else 0}
    v_mov_b32 v23, v24
    s_mov_b32 s34, {QB}
    s_mov_b32 s35, {QB}
    s_mov_b32 s36, {QB}
    s_mov_b32 s42, 0
    s_mov_b32 s50, {QST}
    s_mov_b32 s51, {(QWRAP - (163840 - QST)) & 0xffffffff:#x}
    s_lshl_b32 s18, s28, 13
    s_add_u32 s18, s18, {QB}
    ''')
    (x_read_addr if L == 0 else x_read_addr_f)(e, V_XRD, 18)
    e(f's_mov_b32 s18, {XT + QB}\ns_lshl_b32 s19, s29, 2')
    w_read_addr(e, V_WRD, [0, 1], 18, 19)
    qflat = []
    for u in range(NBODY):
        qflat += [(ins, f'Q{u}', 2*(u - QNS) + 1) for ins in dma_x(L, 'b') + dma_w(L, 'b')]
    def weave(lines, every, n):
        k = 0
        for i, l in enumerate(lines):
            e(l)
            if i % every == every - 1 and k < n:
                ins, tag, _ = qflat.pop(0); e.ext(ins); q.issue(tag); k += 1
        while k < n:
            ins, tag, _ = qflat.pop(0); e.ext(ins); q.issue(tag); k += 1
    def capture(fn):
        keep = m.e; cap = Asm(); m.e = cap
        fn()
        m.e = keep
        return cap.L
    e(f's_mov_b32 s44, {f2u(LOG2E):#x}')
    e(f's_mov_b32 s45, {f2u(LOG2E):#x}')
    def bc(r): return (f'v[{r}:{r+1}]', 0) if r % 2 == 0 else (f'v[{r-1}:{r}]', 1)
    for i in range(4): e(f'v_mov_b32 v{24+i}, 0x3f803f80')
    PB = 128; PP = 144; MX = 176; EP = 192; PK = 208
    def feat(mi, part=3):
      e = m.e
      if part & 1:
        for tb in range(4):
            ar, sl = bc(V_A + tb)
            for db in range(2):
                a = acc(2*mi + db, tb)
                for h in range(2):
                    e(f'v_pk_mul_f32 v[{a+2*h}:{a+2*h+1}], v[{a+2*h}:{a+2*h+1}], {ar} op_sel:[0,{sl}] op_sel_hi:[1,{sl}]')
        for tb in range(4):
            for db in range(2):
                a = acc(2*mi + db, tb)
                for h in range(2):
                    e(f'v_cvt_pk_bf16_f32 v{PB+tb*4+db*2+h}, v{a+2*h}, v{a+2*h+1}')
        for tb in range(4):
            for fb in range(2):
                p = PP + tb*8 + fb*4
                e(f'v_mfma_f32_16x16x32_bf16 v[{p}:{p+3}], v[{V_PHI+fb*4}:{V_PHI+fb*4+3}], v[{PB+tb*4}:{PB+tb*4+3}], 0')
        for tb in range(4):
            p = PP + tb*8; mx = MX + 2*tb
            e(f'v_max3_f32 v{mx}, v{p}, v{p+1}, v{p+2}')
            e(f'v_max3_f32 v{mx+1}, -v{p}, -v{p+1}, -v{p+2}')
        for k in (3, 5):
            for tb in range(4):
                p = PP + tb*8; mx = MX + 2*tb
                e(f'v_max3_f32 v{mx}, v{mx}, v{p+k}, v{p+k+1}')
                e(f'v_max3_f32 v{mx+1}, v{mx+1}, -v{p+k}, -v{p+k+1}')
        for tb in range(4):
            p = PP + tb*8; mx = MX + 2*tb
            e(f'v_max_f32 v{mx}, v{mx}, v{p+7}')
            e(f'v_max_f32_e64 v{mx+1}, v{mx+1}, -v{p+7}')
        for tb in range(4): e(f'v_permlane32_swap_b32 v{MX+2*tb}, v{MX+2*tb+1}')
        for tb in range(4): e(f'v_max_f32 v{MX+2*tb}, v{MX+2*tb}, v{MX+2*tb+1}')
        for pr in range(2): e(f'v_permlane16_swap_b32 v{MX+4*pr}, v{MX+4*pr+2}')
        for pr in range(2): e(f'v_max_f32 v{MX+4*pr}, v{MX+4*pr}, v{MX+4*pr+2}')
        for pr in range(2): e(f'v_mul_f32 v{MX+4*pr}, s44, v{MX+4*pr}')
        for pr in range(2): e(f'v_mov_b32 v{MX+4*pr+2}, v{MX+4*pr}')
        for pr in range(2): e(f'v_permlane16_swap_b32 v{MX+4*pr}, v{MX+4*pr+2}')
        for tb in range(4): e(f'v_mov_b32 v{MX+2*tb+1}, v{MX+2*tb}')
        for tb in range(4): e(f'v_permlane32_swap_b32 v{MX+2*tb}, v{MX+2*tb+1}')
      if part & 2:
        for tb in range(4):
            p = PP + tb*8; mx = MX + 2*tb
            for i in range(4):
                e(f'v_pk_fma_f32 v[{EP+2*i}:{EP+2*i+1}], v[{p+2*i}:{p+2*i+1}], s[44:45], v[{mx}:{mx+1}] op_sel:[0,0,0] op_sel_hi:[1,1,0] neg_lo:[0,0,1] neg_hi:[0,0,1]')
            for i in range(4):
                e(f'v_pk_fma_f32 v[{EP+8+2*i}:{EP+8+2*i+1}], v[{p+2*i}:{p+2*i+1}], s[44:45], v[{mx}:{mx+1}] op_sel:[0,0,1] op_sel_hi:[1,1,1] neg_lo:[1,0,1] neg_hi:[1,0,1]')
            for i in range(16): e(f'v_exp_f32 v{EP+i}, v{EP+i}')
            for i in range(8): e(f'v_cvt_pk_bf16_f32 v{PK+tb*8+i}, v{EP+2*i}, v{EP+2*i+1}')
    weave(capture(lambda: feat(1)), 10, 18)
    SS = 144
    for tb in range(4):
        for sg in range(2):
            r = SS + (tb*2+sg)*4
            e(f'v_mfma_f32_16x16x32_bf16 v[{r}:{r+3}], v[24:27], v[{PK+tb*8+sg*4}:{PK+tb*8+sg*4+3}], 0')
    for tb in range(4):
        for sg in range(2):
            for fb in range(2):
                r = PK + tb*8 + sg*4 + fb*2
                e(f'ds_write_b64 v{V_LW}, v[{r}:{r+1}] offset:{tb*16*ROWB + sg*64 + fb*32}')
    for tb in range(4):
        for sg in range(2):
            r = SS + (tb*2+sg)*4
            e(f'v_rcp_f32 v{r}, v{r}')
    for tb in range(4):
        for sg in range(2):
            r = SS + (tb*2+sg)*4
            e(f'v_mul_f32 v{r+2}, v{r}, v{V_A+tb}')
            e(f'v_cvt_pk_bf16_f32 v{r}, v{r}, 0')
            e(f'v_mov_b32 v{r+1}, 0')
    for tb in range(4):
        for sg in range(2):
            r = SS + (tb*2+sg)*4
            t = 176 + sg*8
            for db in range(2):
                a = acc(4 + db, tb)
                for h in range(2):
                    e(f'v_pk_mul_f32 v[{t+db*4+2*h}:{t+db*4+2*h+1}], v[{a+2*h}:{a+2*h+1}], v[{r+2}:{r+3}] op_sel:[0,0] op_sel_hi:[1,0]')
            o = 192 + (tb % 2) * 8 + sg * 4
            for i in range(4): e(f'v_cvt_pk_bf16_f32 v{o+i}, v{t+2*i}, v{t+2*i+1}')
            for db in range(2):
                e(f'ds_write_b64 v{V_LW}, v[{o+2*db}:{o+2*db+1}] offset:{tb*16*ROWB + 128 + sg*64 + db*32}')
            e(f'ds_write_b64 v{V_LW}, v[{r}:{r+1}] offset:{tb*16*ROWB + 256 + sg*32}')
    if opts.get('fine'): m.stamp('p1 k.lds')
    e('s_waitcnt lgkmcnt(0)')
    e('s_barrier')
    if opts.get('fine'): m.stamp('p1 k.bar')
    e(f's_lshl_b32 s18, s28, 6')
    e(f'v_add_u32 v28, s18, v{V_LR}')
    e(f's_lshl_b32 s18, s28, 5')
    e(f'v_add_u32 v29, s18, v{V_LR}')
    FA = 128
    for ks in range(4):
        f = FA + ks * 20
        for h in range(2):
            ro = (ks*32 + h*16) * ROWB
            for fb in range(2): e(f'ds_read_b64_tr_b16 v[{f+fb*4+2*h}:{f+fb*4+2*h+1}], v28 offset:{ro + fb*32}')
            for db in range(2): e(f'ds_read_b64_tr_b16 v[{f+8+db*4+2*h}:{f+8+db*4+2*h+1}], v28 offset:{ro + 128 + db*32}')
            e(f'ds_read_b64_tr_b16 v[{f+16+2*h}:{f+16+2*h+1}], v29 offset:{ro + 256}')
    KV = acc(2, 0)
    kvm = []
    for ks in range(4):
        f = FA + ks * 20
        for fb in range(2):
            for bk in range(3):
                d = KV + (fb*3+bk)*4
                kvm.append(f'v_mfma_f32_16x16x32_bf16 v[{d}:{d+3}], v[{f+fb*4}:{f+fb*4+3}], v[{f+8+bk*4}:{f+8+bk*4+3}], ' + ('0' if ks == 0 else f'v[{d}:{d+3}]'))
    e('s_waitcnt lgkmcnt(15)'); e.ext(kvm[:6])
    e('s_waitcnt lgkmcnt(10)'); e.ext(kvm[6:12])
    e(f's_waitcnt vmcnt({q.wait_for({"Q0"})}) lgkmcnt(0)'); e('s_barrier')
    r0 = reads(0, 0, 2)
    weave([x for i, mm in enumerate(kvm[12:]) for x in ([mm] + r0[i:i+1])], 2, opts.get('qpre', 6))
    for fb in range(2):
        for db in range(2):
            d = KV + (fb*3+db)*4
            e(f'buffer_store_dwordx4 v[{d}:{d+3}], v{V_KV}, s[24:27], 0 offen offset:{(fb*2+db)*1024} sc1')
    e('s_mov_b32 exec_lo, 0x00010001')
    e('s_mov_b32 exec_hi, 0x00010001')
    for fb in range(2):
        d = KV + (fb*3+2)*4
        e(f'buffer_store_dwordx4 v[{d}:{d+3}], v{V_KZ}, s[24:27], 0 offen offset:{fb*64} sc1')
    e('s_mov_b64 exec, -1')
    for i in range(6): q.issue('kvst')
    m.stamp('p1 kvst')
    R0 = 64
    HSET, HOPL, HRED, HST = hop_code(m, L, R0)
    e.ext(HSET)
    e(f's_lshl_b32 s49, s{S_CI}, 8\ns_add_u32 s49, s49, {flag_off(L, E_A1, 0)}\ns_lshl_b32 s52, s{S_CI}, 8\ns_add_u32 s52, s52, {flag_off(0, E_A2, 0)}\nv_lshlrev_b32 v28, 2, v30')
    T_SIG, T_LD, T_CHK, T_RED = opts.get('tq', (9, 15, 21, 26))
    bodies = []
    for u in range(NBODY):
        B = []
        for s in range(2):
            t = 2 * u + s; p = s
            last = (t == NSTEP - 1)
            ms = [mfma(b, b, tb, p, '0' if t == 0 else None) for b in range(2) for tb in range(4)]
            pre = []; bar = []; rd = []; ex = []
            if not last:
                if s == 1:
                    pre = [f'v_add_u32 v{V_XRD}, s42, v{V_XRD}'] + [f'v_add_u32 v{V_WRD+i}, s42, v{V_WRD+i}' for i in range(2)]
                    tags = {f'Q{u+1}'}
                    if t == T_SIG: tags |= {'kvst'}
                    if t == 17: tags |= {'hq'}
                    if t == T_CHK: tags |= {'flg'}
                    if t == 27: tags |= {'flg2'}
                    if t == 29: tags |= {'csq'}
                    n = q.wait_for(tags)
                    bar = [f's_waitcnt vmcnt({n})', 's_barrier']
                    if t == T_SIG:
                        bar += m.signal(L, E_A1, f's_mov_b32 s18, s{S_CI}\ns_mov_b32 s19, s{S_MT}')
                    if t == 17 and L == 0: bar += m.signal(0, E_A2, f's_mov_b32 s18, s{S_CI}\ns_mov_b32 s19, s{S_MT}')
                    if t == T_CHK:
                        bar += m.soft_check(49, 28, 26)
                    if t == 27 and L == 0: bar += m.soft_check(52, 28, 27)
                else:
                    pre = [f'v_add_u32 v{V_XRD+1}, s42, v{V_XRD+1}']
                    ex = [f's_add_u32 s36, s36, {QST}', 's_cmp_eq_u32 s36, 163840', 's_cselect_b32 s42, s51, s50', f's_cselect_b32 s36, {QWRAP}, s36']
                rd = reads(p ^ 1, s ^ 1, 2)
            dm = []
            k = 0
            if t == T_RED: nhop = q.wait_for({'hop'})
            while qflat and k < (6 if t < 2 else 3) and qflat[0][2] <= t:
                ins, tag, _ = qflat.pop(0); dm.append(ins); q.issue(tag); k += 1
            if t == T_LD: dm.append(m.soft_load(49, 28, 26)); q.issue('flg')
            if t == T_CHK:
                for ins in HOPL: dm.append(ins); q.issue('hop')
            head = []
            if t == T_RED: head = [f's_waitcnt vmcnt({nhop})']
            if t in (T_RED, T_RED + 1): ex = ex + (HRED[:len(HRED)//2] if t == T_RED else HRED[len(HRED)//2:])
            if L == 0 and t == 23: dm.append(m.soft_load(52, 28, 27)); q.issue('flg2')
            if L == 0 and t == 27:
                for b in range(2): dm.append(csld(b, 23)); q.issue('csq')
            if L == 0 and opts.get('gut', 0) and s == 0 and u < 14:
                dm.append(['buffer_load_dword a65, v11, s[4:7], s37 offen', 's_add_u32 s37, s37, 512']); q.issue('touch')
            if L == 0 and t == 28:
                dm.append([f's_mov_b32 s4, s{P_WO}', f's_mov_b32 s5, s{P_WO+1}', f's_mov_b32 s6, {D*D*2}', 's_mov_b32 s7, 0x00020000', 's_lshl_b32 s39, s2, 2',
                           's_add_u32 s39, s39, s20', 's_lshl_b32 s39, s39, 11', 'v_lshlrev_b32 v0, 7, v30', 'buffer_load_dword a64, v0, s[4:7], s39 offen']); q.issue('touch')
            if L == 0 and t == (2 << G1S[0]) + 1: ex = ex + cs_pack(V_RAW + 24, 1)
            step = head + build_step(ms, needs[:8], 8, pre, bar, rd, dm, ex, nb=(2 if s == 1 else 1))
            if t == T_RED + 1: step += HST; q.issue('hst')
            if L == 0 and t < (2 << G1S[0]):
                l1 = m.lab('cq'); le = m.lab('cqe')
                step += [f's_cmp_lg_u32 s31, {u}', f's_cbranch_scc1 {le}', 's_cmp_lg_u32 s28, 0', f's_cbranch_scc1 {l1}']
                for wm in range(2):
                    step.append(f'v_mfma_f32_16x16x32_bf16 a[{CSP}:{CSP+3}], a[{ONES}:{ONES+3}], v[{wfrag(p,wm)}:{wfrag(p,wm)+3}], ' + ('0' if s == 0 else f'a[{CSP}:{CSP+3}]'))
                    if wm == 0: step += [f's_branch {le}', f'{l1}:']
                step += [f'{le}:']
            if L == 0 and t == (2 << G1S[0]) + 1:
                step += ['s_lshl_b32 s18, s28, 8', 's_add_u32 s18, s18, s62', 's_mov_b64 exec, 0xffff',
                         f'buffer_store_dword v{V_RAW+28}, v16, s[24:27], s18 offen sc1', 's_mov_b64 exec, -1']
                q.issue('hq')
            B += step
        bodies.append(B)
    assert not qflat
    if opts.get('qlst'):
        for i, bb in enumerate(bodies):
            e.ext(bb)
            if i % 2 == 1:
                sv = list(q.q); e('s_waitcnt lgkmcnt(0)'); m.stamp(f'p1 q{i+1}'); q.q = sv
    else:
        e.ext(loopify(bodies, m.lab('p1Q'), 38, 1))
    e.ext(corr(range(2)))
    e('s_barrier')
    m.stamp('p1 qdone')
    pre = Pre(m, next_pre)
    pre.emit_setup()
    e(f's_lshl_b32 s18, s2, 2\ns_add_u32 s18, s18, s20\ns_lshl_b32 s18, s18, 12\ns_add_u32 s18, s18, {reg(L, R_PX)}\nv_lshlrev_b32 v29, 4, v2')
    for k in range(4): e(f'buffer_store_dwordx4 v[{SENT}:{SENT+3}], v29, s[24:27], s18 offen offset:{k*1024} sc1'); q.issue('sent')
    KA = 100
    e(f's_mul_i32 s48, s54, 6144\ns_add_u32 s48, s48, {reg(L, R_KVR)}\ns_add_u32 s49, s48, 4096')
    kal = [f'buffer_load_dwordx4 v[{KA+4*i}:{KA+4*i+3}], v29, s[24:27], s{48 + i//4} offen offset:{(i%4)*1024} sc1' for i in range(6)]
    fq = capture(lambda: feat(0))
    cut = len(fq) - opts.get('kal', 70)
    pre.weave(fq[:cut], 10)
    e.ext(kal)
    e.ext(fq[cut:])
    m.stamp('p1 featq')
    pl = m.lab('kpl'); ok = m.lab('kok')
    e(f's_mov_b32 s44, {f2u(1e-6):#x}\ns_mov_b32 s39, {1 << 16}')
    for tb in range(4): e(f's_mov_b32 s{60+tb}, {tb*16*2048}')
    e(f'{pl}:')
    e('s_waitcnt vmcnt(0)'); q.clear()
    e(f'v_max3_u32 v3, v{KA}, v{KA+1}, v{KA+2}')
    for k in range(KA+3, KA+23, 2): e(f'v_max3_u32 v3, v3, v{k}, v{k+1}')
    e(f'''
    v_max_u32 v3, v3, v{KA+23}
    v_cmp_eq_u32 vcc, -1, v3
    s_nop 1
    s_cmp_eq_u64 vcc, 0
    s_cbranch_scc1 {ok}
    ''')
    e.ext(kal)
    e(f'''
    s_sub_u32 s39, s39, 1
    s_cmp_lg_u32 s39, 0
    s_cbranch_scc1 {pl}
    s_waitcnt vmcnt(0)
    {ok}:
    ''')
    m.stamp('p1 gotkv')
    o_compute(e, range(4), KA, lambda tb: PK + tb*8, lambda tb: [32, 56, 128, 176][tb], lambda tb: 160 + tb*4)
    for tb in range(4):
        e(f'buffer_store_dwordx4 v[{160+tb*4}:{163+tb*4}], v{V_OS}, s[24:27], s{60+tb} offen sc1')
    if opts.get('fine'): m.stamp('p1 o')
    m.publish(L, E_B, f's_mov_b32 s18, s{S_MT}\ns_mov_b32 s19, s{S_CI}')
    m.stamp('p1 pubB')

def hop_code(m, L, R0):
    ST = 32 * KVP_HEAD
    setup = [f's_lshr_b32 s18, s{S_MT}, 3', f's_lshl_b32 s19, s{S_CI}, 1', 's_add_u32 s18, s18, s19', f's_mul_i32 s60, s18, {KVP_HEAD}',
             f's_and_b32 s18, s{S_MT}, 7', 's_lshl_b32 s18, s18, 10', 's_add_u32 s60, s60, s18', 's_lshl_b32 s18, s20, 8', 's_add_u32 s60, s60, s18',
             f's_add_u32 s60, s60, {reg(L, R_KVP)}',
             f's_bfe_u32 s18, s{S_MT}, 0x10002', 's_add_u32 s18, s18, s19', f's_mul_i32 s61, s18, {KVP_HEAD}', f's_and_b32 s18, s{S_MT}, 3', 's_lshl_b32 s18, s18, 6',
             's_add_u32 s61, s61, s18', f's_add_u32 s61, s61, {reg(L, R_KVP) + 8192}',
             f's_mov_b32 s18, {ST}', 'v_mul_lo_u32 v25, v31, s18', 'v_lshl_add_u32 v25, v30, 4, v25', 'v_mul_lo_u32 v29, v30, s18', 'v_lshl_add_u32 v29, v31, 4, v29']
    A = [[f'buffer_load_dwordx4 v[{R0+4*i}:{R0+4*i+3}], v25, s[24:27], s60 offen sc1'] + ([f's_add_u32 s60, s60, {4*ST}'] if i < 3 else []) for i in range(4)]
    A.append([f'buffer_load_dwordx4 v[{R0+16}:{R0+19}], v29, s[24:27], s61 offen sc1'])
    Z = R0 + 16; T = R0 + 20
    o = []
    for (d, x) in ((0, 4), (8, 12), (0, 8)):
        o += [f'v_add_f32 v{R0+d+h}, v{R0+d+h}, v{R0+x+h}' for h in range(4)]
    for ror in (8, 4, 2, 1):
        o += [f'v_add_f32_dpp v{Z+h}, v{Z+h}, v{Z+h} row_ror:{ror} row_mask:0xf bank_mask:0xf' for h in range(4)]
    for sw in ('v_permlane32_swap_b32', 'v_permlane16_swap_b32'):
        o += [f'v_mov_b32 v{T+h}, v{R0+h}' for h in range(4)]
        o += [f'{sw} v{R0+h}, v{T+h}' for h in range(4)]
        o += [f'v_add_f32 v{R0+h}, v{R0+h}, v{T+h}' for h in range(4)]
    o += [f'v_cvt_pk_bf16_f32 v{R0+4}, v{R0}, v{R0+1}', f'v_cvt_pk_bf16_f32 v{R0+5}, v{R0+2}, v{R0+3}',
          f'v_cvt_pk_bf16_f32 v{R0+6}, v{Z}, v{Z+1}', f'v_cvt_pk_bf16_f32 v{R0+7}, v{Z+2}, v{Z+3}',
          'v_and_b32 v3, 3, v2', 'v_cmp_eq_u32 vcc, 0, v3', 'v_cmp_eq_u32 s[90:91], 1, v3', 'v_lshlrev_b32 v1, 4, v2', 'v_cndmask_b32 v3, 0, v24, s[90:91]',
          f'v_cndmask_b32 v{R0+6}, v3, v{R0+6}, vcc', f'v_cndmask_b32 v{R0+7}, v3, v{R0+7}, vcc', 's_lshl_b32 s18, s20, 8', 's_add_u32 s18, s18, s92']
    sk = m.lab('hz')
    st = ['s_mov_b64 exec, 0xffff', f'buffer_store_dwordx2 v[{R0+4}:{R0+5}], v1, s[24:27], s18 offen sc1', 's_mov_b64 exec, -1',
          f's_lshr_b32 s18, s{S_MT}, 3', 's_lshl_b32 s18, s18, 2', 's_add_u32 s18, s18, s20', 's_cmp_lg_u32 s18, 1', f's_cbranch_scc1 {sk}',
          f'buffer_store_dwordx2 v[{R0+6}:{R0+7}], v1, s[24:27], s93 offen sc1', f'{sk}:']
    return setup, A, o, st

def o_compute(e, tbs, KA, EB, NN, OUT):
    for tb in tbs:
        for sg in range(2):
            for bk in range(3):
                d = NN(tb) + (sg*3+bk)*4; a = KA + (sg*3+bk)*4; b = EB(tb) + sg*4
                e(f'v_mfma_f32_16x16x32_bf16 v[{d}:{d+3}], v[{a}:{a+3}], v[{b}:{b+3}], 0')
    for tb in tbs:
        for sg in range(2):
            z = NN(tb) + (sg*3+2)*4
            e(f'v_rcp_f32 v{z+1}, v{z+1}')
    for tb in tbs:
        zp = NN(tb) + 8; zm = NN(tb) + 20
        e(f'v_fma_f32 v{zp+2}, v{zp}, v{zp+1}, s44')
        e(f'v_fma_f32 v{zp+2}, v{zm}, v{zm+1}, v{zp+2}')
    for tb in tbs:
        zp = NN(tb) + 8
        e(f'v_rcp_f32 v{zp+2}, v{zp+2}')
    for tb in tbs:
        zp = NN(tb) + 8; zm = NN(tb) + 20
        e(f'v_mul_f32 v{zp}, v{zp+1}, v{zp+2}')
        e(f'v_mul_f32 v{zm}, v{zm+1}, v{zp+2}')
    for tb in tbs:
        n = NN(tb); zp = n + 8; zm = n + 20
        for i in range(4):
            e(f'v_pk_mul_f32 v[{n+2*i}:{n+2*i+1}], v[{n+2*i}:{n+2*i+1}], v[{zp}:{zp+1}] op_sel:[0,0] op_sel_hi:[1,0]')
        for i in range(4):
            e(f'v_pk_fma_f32 v[{n+2*i}:{n+2*i+1}], v[{n+12+2*i}:{n+12+2*i+1}], v[{zm}:{zm+1}], v[{n+2*i}:{n+2*i+1}] op_sel:[0,0,0] op_sel_hi:[1,0,1]')
    for tb in tbs:
        n = NN(tb); o = OUT(tb)
        for i in range(4): e(f'v_cvt_pk_bf16_f32 v{o+i}, v{n+2*i}, v{n+2*i+1}')
    for tb in tbs:
        o = OUT(tb)
        e(f'v_permlane16_swap_b32 v{o}, v{o+2}')
        e(f'v_permlane16_swap_b32 v{o+1}, v{o+3}')
```

```python
from asmlib import *
from common import *
from mega import *

XSLOT = 32768; NXS = 3
WREG = 7680; WHALF = 2 * WREG; NWS = 4; WBASE = XSLOT * NXS
LDW = F * 2; NB = 16; NSTEP = 32
WL = [0, 896, 1920, 2816]
def acc(b, tb): return 32 + (b * 4 + tb) * 4
def xfrag(p, tb): return p * 72 + tb * 4
def wfrag(p, b): return p * 72 + 16 + b * 4
CSA = 144; NMB = 200; RAW = 216; ONES = 248; CSP = 216
V_XOFF = 4; V_WOFF = 8; V_XRD = 12; V_WRD = 14; V_ST = 15; V_K = 16

def dma_x(half):
    g = []
    for j in range(4):
        ins = [f'buffer_load_dwordx4 v{V_XOFF+j//2}, s[8:11], s{30+half} offen offset:{j*1024} sc1 lds']
        if j == 0: ins = [f's_add_u32 m0, s34, s{40 if half == 0 else 52}', 's_nop 0'] + ins
        if half == 1 and j == 3: ins += ['s_add_u32 s30, s30, 2048', 's_and_b32 s30, s30, 0x7fff']
        if half == 1 and j == 3: ins += [f's_add_u32 s34, s34, {XSLOT}', f's_cmp_eq_u32 s34, {XSLOT*NXS}', 's_cselect_b32 s34, 0, s34']
        if half == 1 and j == 3: ins += ['s_add_u32 s31, s30, 65536']
        g.append(ins)
    return g
def dma_w(aux=''):
    g = []
    for j in range(4):
        ins = [f'buffer_load_dwordx4 v{V_WOFF+j}, s[12:15], s32 offen offset:{WL[j]} {aux} lds']
        if j == 0: ins = ['s_add_u32 m0, s35, s41', 's_nop 0'] + ins
        if j == 3: ins += [f's_add_u32 s35, s35, {WHALF}', f's_cmp_eq_u32 s35, {WHALF*NWS}', 's_cselect_b32 s35, 0, s35']
        if j == 3: ins += [f's_add_u32 s32, s32, {32*LDW}', f's_cmp_eq_u32 s32, {D*LDW}', 's_cselect_b32 s32, 0, s32']
        g.append(ins)
    return g

def GS(opts): return opts.get('gs', 1)
def pre_w(m, layer, nh=4):
    e = m.e; opts = m.opts.get('p3', {})
    e(f'''
    s_cmp_lt_u32 s20, 2
    s_cselect_b32 s12, s{P_GATE}, s{P_UP}
    s_cselect_b32 s13, s{P_GATE+1}, s{P_UP+1}
    s_mov_b32 s14, {D*F*2}
    v_mul_u32_u24 v1, 4682, v2
    v_lshrrev_b32 v1, 16, v1
    v_mul_u32_u24 v3, 14, v1
    v_sub_u32 v3, v2, v3
    v_lshlrev_b32 v3, 4, v3
    s_and_b32 s18, s20, 1
    s_lshl_b32 s18, s18, 4
    v_add_u32 v1, s18, v1
    v_mul_u32_u24 v1, {LDW}, v1
    v_add_u32 v1, v1, v3
    s_mul_i32 s19, s{S_NT2}, 224
    v_add_u32 v{V_WOFF}, s19, v1
    ''')
    for j in range(1, 4): e(f'v_add_u32 v{V_WOFF+j}, {j*4*LDW - WL[j]}, v{V_WOFF}')
    rot = 1 if (layer == 0 or opts.get('rot_all')) else 0
    e(f'''
    s_lshr_b32 s32, s{S_MT2}, {GS(opts)}
    s_mul_i32 s32, s32, {(128*LDW*rot) << GS(opts)}
    s_mov_b32 s35, 0
    s_lshr_b32 s18, s20, 1
    s_mul_i32 s41, s18, {WREG}
    s_and_b32 s18, s20, 1
    s_mul_i32 s18, s18, 3840
    s_add_u32 s41, s41, s18
    s_add_u32 s41, s41, {WBASE}
    ''')
    for h in range(nh):
        for ins in dma_w(opts.get('aux0', '') if layer == 0 else ''): e.ext(ins); m.q.issue(f'W{h}')
    m.p3_w = nh

def run(m, layer, next_pre):
    e = m.e; q = m.q; opts = m.opts.get('p3', {}); L = layer
    rot = 1 if (layer == 0 or opts.get('rot_all')) else 0
    srd(e, 8, ws_off=reg(L, R_X1) - BLK_BIAS, size=S*D*2 + BLK_BIAS)
    e(f'''
    s_lshl_b32 s23, s{S_MT2}, 8
    s_lshl_b32 s18, s20, 6
    s_add_u32 s23, s23, s18
    s_mul_i32 s22, s{S_NT2}, 112
    ''')
    x_dma_offsets(e, V_XOFF, 23, 2048, blocked=True)
    e(f'''
    s_lshr_b32 s30, s{S_MT2}, {GS(opts)}
    s_mul_i32 s30, s30, {(4096*rot) << GS(opts)}
    s_and_b32 s95, s{S_MT2}, {(1 << GS(opts)) - 1}
    s_add_u32 s31, s30, 65536
    s_mov_b32 s34, 0
    s_lshl_b32 s40, s20, 13
    s_add_u32 s52, s40, 4096
    s_mul_i32 s18, s23, {LDW}
    s_mul_i32 s19, s{S_NT2}, 3584
    s_add_u32 s18, s18, s19
    ''')
    frag_store_addr(e, V_ST, 18)
    e(f'''
    s_lshl_b32 s18, s23, 7
    s_add_u32 s60, s18, {reg(L, R_STF)}
    v_lshlrev_b32 v29, 11, v31
    v_lshl_add_u32 v29, v30, 4, v29
    v_add_u32 v1, s22, v30
    v_lshlrev_b32 v28, 4, v1
    v_and_b32 v1, 1, v31
    v_mul_u32_u24 v1, {CS_PLANE}, v1
    v_add_u32 v28, v28, v1
    s_mov_b32 s62, {WS_CS + 3072*16}
    s_mov_b32 s63, {WS_CS + (3072+F)*16}
    ''')
    x_read_addr_f(e, V_XRD, 40)
    e(f'''
    v_mul_u32_u24 v1, 1920, v31
    v_bfe_u32 v3, v2, 2, 2
    v_mul_u32_u24 v3, 224, v3
    v_add_u32 v1, v1, v3
    v_and_b32 v3, 3, v2
    v_lshl_add_u32 v1, v3, 3, v1
    v_add_u32 v{V_WRD}, {WBASE}, v1
    s_mov_b32 s36, 0
    s_mov_b32 s37, 0
    s_mov_b32 s42, 0
    s_mov_b32 s48, {WHALF}
    s_mov_b32 s49, {(-(NWS-1)*WHALF) & 0xffffffff:#x}
    s_mov_b32 s50, {XSLOT}
    s_mov_b32 s51, {(-(NXS-1)*XSLOT) & 0xffffffff:#x}
    ''')
    C1 = -2.0 * 0.7978845608028654 * 1.4426950408889634
    C2 = C1 * 0.044715
    e(f's_mov_b32 s44, {f2u(C1):#x}\ns_mov_b32 s45, {f2u(C2):#x}')
    docs = (L == 0)
    touch = (L == 0 and not opts.get('notouch'))
    if docs:
        e('v_mov_b32 v1, 0x3f803f80')
        for i in range(4): e(f'v_accvgpr_write_b32 a{ONES+i}, v1')
        e(f'''
        s_lshr_b32 s18, s{S_MT2}, 2
        s_mul_i32 s18, s18, {CS_PLANE}
        s_and_b32 s19, s{S_MT2}, 3
        s_lshl_b32 s19, s19, 2
        s_add_u32 s18, s18, s19
        s_add_u32 s54, s18, s62
        s_add_u32 s55, s18, s63
        v_add_u32 v1, s22, v30
        v_lshlrev_b32 v27, 4, v1
        ''')
    if touch:
        srd(e, 4, ptr=P_DOWN, size=F*D*2)
        e('s_mov_b32 s7, 0x00020000')
        e(f's_lshl_b32 s18, s2, 2\ns_add_u32 s18, s18, s20\ns_mul_i32 s33, s18, {56*128}\nv_lshlrev_b32 v26, 7, v31')
    m.stamp('p3 wait')
    m.wait(L, E_C, f's_lshl_b32 s18, s{S_MT2}, 1', 16, nshard=2)
    m.stamp('p3 go')
    pend = []
    for u in range(NB):
        pend.append(('X%d' % u, 'xa', 2*u - 1, 2*(u-3) + 1))
        pend.append(('X%d' % u, 'xb', 2*u - 1, 2*(u-3) + 1))
        for h in (2*u, 2*u + 1):
            if h >= m.p3_w: pend.append(('W%d' % h, 'w', h - 1, h - 4))
    mk = {'xa': lambda: dma_x(0), 'xb': lambda: dma_x(1), 'w': lambda: dma_w(opts.get('auxw', ''))}
    def take(step, maxg):
        out = []
        while len(out) < maxg:
            cand = None; seen = set()
            for g in pend:
                cls = g[1][0]
                if cls in seen: continue
                seen.add(cls)
                if g[3] <= step and (cand is None or g[2] < cand[2]): cand = g
            if cand is None: break
            pend.remove(cand); out.append(cand)
        return out
    ninit = sum(1 for g in pend if g[2] <= 0)
    for g in take(-1, ninit + 2):
        for ins in mk[g[1]](): e.ext(ins); q.issue(g[0])
    small = stats_loads(lambda o: f'a[{RAW+o}:{RAW+o+3}]', 29, 60)
    csl = [[f'buffer_load_dwordx4 a[{CSA+4*b}:{CSA+4*b+3}], v28, s[24:27], s{62 + b//7} offen offset:{(b%7)*256} sc1'] for b in range(14)]
    def fin():
        Lx = [f'v_accvgpr_read_b32 v{4+i}, a{RAW+i}' for i in range(4)]
        for k in range(1, 8):
            Lx += [f'v_accvgpr_read_b32 v{8+i}, a{RAW+4*k+i}' for i in range(4)]
            Lx += [f'v_add_f32 v{4+i}, v{4+i}, v{8+i}' for i in range(4)]
        Lx += ['v_add_f32 v4, v4, v6', 'v_add_f32 v5, v5, v7']
        st = stats_t(4, 24, 8, None)[30:]
        st += [f'v_rcp_f32 v{16+tb}, v{24+tb}' for tb in range(4)]
        st += [f'v_cndmask_b32 v{8+tb}, 0, v{8+tb}, vcc' for tb in range(4)]
        st += [f'v_mul_f32 v{20+tb}, v{16+tb}, v{16+tb}' for tb in range(4)]
        st += [f'v_mul_f32 v{24+tb}, v{24+tb}, v{24+tb}' for tb in range(4)]
        st += [f'v_mul_f32 v{20+tb}, v{20+tb}, v{16+tb}' for tb in range(4)]
        st += [f'v_mul_f32 v{16+tb}, s44, v{16+tb}' for tb in range(4)]
        st += [f'v_mul_f32 v{20+tb}, s45, v{20+tb}' for tb in range(4)]
        st += [f'v_accvgpr_write_b32 a{NMB+4*tb+i}, v{8+tb}' for tb in range(4) for i in range(4)]
        return Lx, st
    def mfma(b, tb, p, c=None):
        a = acc(b, tb)
        cc = f'v[{a}:{a+3}]' if c is None else c
        return f'v_mfma_f32_16x16x32_bf16 v[{a}:{a+3}], a[{wfrag(p,b)}:{wfrag(p,b)+3}], a[{xfrag(p,tb)}:{xfrag(p,tb)+3}], {cc}'
    def reads(p, s):
        x = lambda tb: f'ds_read_b128 a[{xfrag(p,tb)}:{xfrag(p,tb)+3}], v{V_XRD+s} offset:{tb*2048}'
        def w(b, h):
            off = (b // 7) * WREG + 4 * h * 224 + (b % 7) * 32
            return f'ds_read_b64_tr_b16 a[{wfrag(p,b)+2*h}:{wfrag(p,b)+2*h+1}], v{V_WRD} offset:{off}'
        g = [x(0), w(0, 0), w(0, 1), x(1), x(2), x(3)]
        for b in range(1, 14): g += [w(b, 0), w(b, 1)]
        return g
    needs = [max(2 if tb == 0 else 2 + tb, 5 + 2*b if b else 0) for b in range(14) for tb in range(4)]
    pt = m.phase_touch(f'a{ONES+5}') if True else None
    if pt: e.ext(pt); q.issue('pt')
    n = q.wait_for({'X0', 'W0', 'W1'})
    e(f's_waitcnt vmcnt({n})')
    e('s_barrier')
    m.stamp('p3 main')
    e('v_cmp_gt_u32 vcc, 32, v2')
    e.ext(reads(0, 0))
    bodies = []
    for u in range(NB):
        B = []
        for s in range(2):
            t = 2 * u + s; p = s
            ms = [mfma(b, tb, p, '0' if t == 0 else None) for b in range(14) for tb in range(4)]
            last = (t == NSTEP - 1)
            rd = []; pre = []; bar = []
            if not last:
                pre = [f's_add_u32 s37, s37, {WHALF}', f's_cmp_eq_u32 s37, {WHALF*NWS}', 's_cselect_b32 s43, s49, s48',
                       's_cselect_b32 s37, 0, s37', f'v_add_u32 v{V_WRD}, s43, v{V_WRD}']
                if s == 1:
                    pre += [f's_add_u32 s36, s36, {XSLOT}', f's_cmp_eq_u32 s36, {XSLOT*NXS}', 's_cselect_b32 s42, s51, s50',
                            's_cselect_b32 s36, 0, s36', f'v_add_u32 v{V_XRD}, s42, v{V_XRD}']
                else:
                    pre += [f'v_add_u32 v{V_XRD+1}, s42, v{V_XRD+1}']
                rd = reads(p ^ 1, s ^ 1)
            if t > 0 and not last:
                tags = {f'W{t+1}'} | ({f'X{u+1}'} if s == 1 else set())
                if t == NSTEP - 2: tags |= {'small', 'csl'}
                if t == 29: tags |= {'flg'}
                n = q.wait_for(tags)
                bar = [f's_waitcnt vmcnt({n})', 's_barrier']
            dm = []
            for g in take(t, 3 if t < 3 else 2):
                for ins in mk[g[1]](): dm.append(ins); q.issue(g[0])
            if touch and s == 0 and 2 <= u < 16:
                dm.append([f'buffer_load_dword a{ONES+4}, v26, s[4:7], s33 offen', 's_add_u32 s33, s33, 512']); q.issue('touch')
            if t == 28:
                for ins in small: dm.append(ins); q.issue('small')
            if docs and t == 27:
                dm.append([f's_lshl_b32 s53, s{S_NT2}, 8', f's_add_u32 s53, s53, {flag_off(0, E_CS, 0)}', 'v_and_b32 v24, 7, v2', 'v_lshlrev_b32 v24, 2, v24']
                          + m.soft_load(53, 24, 25)); q.issue('flg')
            if t == 29:
                if docs: bar += m.soft_check(53, 24, 25)
                for ins in csl: dm.append(ins); q.issue('csl')
            ex = []
            if t == NSTEP - 2: ex = fin()[0]
            if t == NSTEP - 1: ex = fin()[1]
            TC = 4 << GS(opts); G = 1 << GS(opts)
            if docs and t == TC:
                ex = []
                for i in range(4):
                    ex += [f'v_accvgpr_read_b32 v{16+i}, a{CSP+4*i}']
                for i in range(4):
                    ex += [f'v_cvt_pk_bf16_f32 v{20+i}, v{16+i}, v{16+i}']
                for i in range(4):
                    ex += [f'v_and_b32 v{20+i}, 0xffff0000, v{20+i}']
                for i in range(4):
                    ex += [f'v_sub_f32 v{20+i}, v{16+i}, v{20+i}']
                for i in range(4):
                    ex += [f'v_cvt_pk_bf16_f32 v{20+i}, v{16+i}, v{20+i}']
            step = build_step(ms, needs, 32, pre, bar, rd, dm, ex, nb=4)
            if docs and t < TC:
                ls = [m.lab('cs') for _ in range(4)]; le = m.lab('cse')
                step += [f's_cmp_lg_u32 s95, {t % G}', f's_cbranch_scc1 {le}']
                for w in range(4):
                    if w < 3: step += [f's_cmp_lg_u32 s20, {w}', f's_cbranch_scc1 {ls[w+1]}']
                    for i in range(4):
                        b = w + 4*i
                        if b < 14:
                            d = CSP + 4*i
                            step.append(f'v_mfma_f32_16x16x32_bf16 a[{d}:{d+3}], a[{ONES}:{ONES+3}], a[{wfrag(p,b)}:{wfrag(p,b)+3}], ' + ('0' if t < G else f'a[{d}:{d+3}]'))
                    if w < 3: step += [f's_branch {le}', f'{ls[w+1]}:']
                step += [f'{le}:']
                if t == TC - 1: step += ['s_nop 7']
            if docs and t == TC:
                ls = [m.lab('cw') for _ in range(4)]; le = m.lab('cwe')
                step += ['s_mov_b64 exec, 0xffff']
                for w in range(4):
                    if w < 3: step += [f's_cmp_lg_u32 s20, {w}', f's_cbranch_scc1 {ls[w+1]}']
                    for i in range(4):
                        b = min(w + 4*i, 13) if w + 4*i >= 14 else w + 4*i
                        src = 20 + i if w + 4*i < 14 else None
                        if src is None:
                            b = w + 4*(i-1); src = 20 + i - 1
                        step.append(f'buffer_store_dword v{src}, v27, s[24:27], s{54 + b//7} offen offset:{(b%7)*256} sc1')
                    if w < 3: step += [f's_branch {le}', f'{ls[w+1]}:']
                step += [f'{le}:', 's_mov_b64 exec, -1']
                for i in range(4): q.issue('csw')
            if docs and t == TC + 5:
                assert 'csw' not in q.q
                step += m.signal(0, E_CS, f's_mov_b32 s18, s{S_NT2}\ns_mov_b32 s19, s{S_MT2}')
            B += step
        bodies.append(B)
    assert not pend
    e.ext(loopify(bodies, m.lab('p3L'), 38, m.opts.get('unroll', 1)))
    e('s_barrier')
    pre = Pre(m, next_pre)
    pre.emit_setup()
    corr = []
    for b in range(14):
        for tb in range(4):
            a = acc(b, tb)
            corr.append(f'v_mfma_f32_16x16x32_bf16 v[{a}:{a+3}], a[{CSA+4*b}:{CSA+4*b+3}], a[{NMB+4*tb}:{NMB+4*tb+3}], v[{a}:{a+3}]')
    if opts.get('late_pre'): e.ext(corr)
    else: pre.weave(corr, opts.get('weave', 3))
    m.stamp('p3 epi')
    srd(e, 56, ws_off=reg(L, R_H), size=S*F*2)
    for tb in range(4): e(f's_mov_b32 s{60+tb}, {tb*16*LDW}')
    e(f'v_and_b32 v1, 1, v31')
    e(f'v_mul_u32_u24 v1, {16*LDW - 512}, v1')
    e(f'v_add_u32 v14, v1, v{V_ST}')
    TP = [4, 6, 12, 28]
    def ep_pair(t1, t2, voff, soff, imm):
        items = []
        for (b, tb) in (t1, t2):
            for h in range(2):
                items.append((acc(b, tb) + 2*h, acc(b + 7, tb) + 2*h, V_K + tb))
        P = lambda i: f'v[{items[i][0]}:{items[i][0]+1}]'
        U = lambda i: f'v[{items[i][1]}:{items[i][1]+1}]'
        Tm = lambda i: f'v[{TP[i]}:{TP[i]+1}]'
        def bc(r): return (f'v[{r}:{r+1}]', 0) if r % 2 == 0 else (f'v[{r-1}:{r}]', 1)
        for i in range(4): e(f'v_pk_mul_f32 {Tm(i)}, {P(i)}, {P(i)}')
        for i in range(4):
            k = items[i][2]; (k2, s2), (k1, s1) = bc(k + 4), bc(k)
            e(f'v_pk_fma_f32 {Tm(i)}, {Tm(i)}, {k2}, {k1} op_sel:[0,{s2},{s1}] op_sel_hi:[1,{s2},{s1}]')
        for i in range(4): e(f'v_pk_mul_f32 {Tm(i)}, {Tm(i)}, {P(i)}')
        for i in range(8): e(f'v_exp_f32 v{TP[i//2]+i%2}, v{TP[i//2]+i%2}')
        for i in range(4): e(f'v_pk_mul_f32 {U(i)}, {U(i)}, {P(i)}')
        for i in range(4):
            k3, s3 = bc(items[i][2] + 8)
            e(f'v_pk_fma_f32 {Tm(i)}, {Tm(i)}, {k3}, {k3} op_sel:[0,{s3},{s3}] op_sel_hi:[1,{s3},{s3}]')
        for i in range(8): e(f'v_rcp_f32 v{TP[i//2]+i%2}, v{TP[i//2]+i%2}')
        for i in range(4): e(f'v_pk_mul_f32 {U(i)}, {U(i)}, {Tm(i)}')
        r = acc(*t1)
        for i in range(4): e(f'v_cvt_pk_bf16_f32 v{r+i}, v{items[i][1]}, v{items[i][1]+1}')
        e(f'v_permlane16_swap_b32 v{r}, v{r+2}')
        e(f'v_permlane16_swap_b32 v{r+1}, v{r+3}')
        e(f'buffer_store_dwordx4 v[{r}:{r+3}], v{voff}, s[56:59], s{soff} offen offset:{imm} sc1')
    for tb in range(4):
        for bp in range(3):
            ep_pair((2*bp, tb), (2*bp+1, tb), V_ST, 60 + tb, bp * 1024)
        if tb % 2 == 1:
            ep_pair((6, tb - 1), (6, tb), 14, 60 + tb - 1, 3072)
    m.stamp('p3 st')
    m.publish(L, E_D, f's_lshl_b32 s18, s{S_MT2}, 1\ns_lshr_b32 s19, s{S_NT2}, 4\ns_add_u32 s18, s18, s19\ns_and_b32 s19, s{S_NT2}, 15')
    m.stamp('p3 pub')
    pre.weave([], 1)
```

```python
from asmlib import *
from common import *
from mega import *

WREG = 7680; WHALF = 2 * WREG; NWS = 10; WBASE = 0
LDW = F * 2; NB = 16; NSTEP = 32; XD = 3
WL = [0, 896, 1920, 2816]
def acc(b, tb): return 32 + (b * 4 + tb) * 4
def xfrag(t, tb): return 112 + (t % 4) * 16 + tb * 4
def wfrag(p, b): return p * 56 + b * 4
CSA = 176; NMB = 232; RAW = 176; ONES = 248; CSP = 176
V_XOFF = 4; V_WOFF = 8; V_WRD = 14; V_ST = 15; V_K = 16

def ld_x(t):
    g = []
    for tb in range(4):
        ins = [f'buffer_load_dwordx4 a[{xfrag(t,tb)}:{xfrag(t,tb)+3}], v{V_XOFF+tb}, s[8:11], s30 offen sc1']
        if tb == 3: ins += ['s_add_u32 s30, s30, 1024', 's_and_b32 s30, s30, 0x7fff']
        g.append(ins)
    return g
def dma_w(aux=''):
    g = []
    for j in range(4):
        ins = [f'buffer_load_dwordx4 v{V_WOFF+j}, s[12:15], s32 offen offset:{WL[j]} {aux} lds']
        if j == 0: ins = ['s_add_u32 m0, s35, s41', 's_nop 0'] + ins
        if j == 3: ins += [f's_add_u32 s35, s35, {WHALF}', f's_cmp_eq_u32 s35, {WHALF*NWS}', 's_cselect_b32 s35, 0, s35']
        if j == 3: ins += [f's_add_u32 s32, s32, {32*LDW}', f's_cmp_eq_u32 s32, {D*LDW}', 's_cselect_b32 s32, 0, s32']
        g.append(ins)
    return g

def GS(opts): return opts.get('gs', 1)
def pre_w(m, layer, nh=4):
    e = m.e; opts = m.opts.get('p3', {})
    e(f'''
    s_cmp_lt_u32 s20, 2
    s_cselect_b32 s12, s{P_GATE}, s{P_UP}
    s_cselect_b32 s13, s{P_GATE+1}, s{P_UP+1}
    s_mov_b32 s14, {D*F*2}
    v_mul_u32_u24 v1, 4682, v2
    v_lshrrev_b32 v1, 16, v1
    v_mul_u32_u24 v3, 14, v1
    v_sub_u32 v3, v2, v3
    v_lshlrev_b32 v3, 4, v3
    s_and_b32 s18, s20, 1
    s_lshl_b32 s18, s18, 4
    v_add_u32 v1, s18, v1
    v_mul_u32_u24 v1, {LDW}, v1
    v_add_u32 v1, v1, v3
    s_mul_i32 s19, s{S_NT2}, 224
    v_add_u32 v{V_WOFF}, s19, v1
    ''')
    for j in range(1, 4): e(f'v_add_u32 v{V_WOFF+j}, {j*4*LDW - WL[j]}, v{V_WOFF}')
    rot = 1 if (layer == 0 or opts.get('rot_all')) else 0
    e(f'''
    s_lshr_b32 s32, s{S_MT2}, {GS(opts)}
    s_mul_i32 s32, s32, {(128*LDW*rot) << GS(opts)}
    s_mov_b32 s35, 0
    s_lshr_b32 s18, s20, 1
    s_mul_i32 s41, s18, {WREG}
    s_and_b32 s18, s20, 1
    s_mul_i32 s18, s18, 3840
    s_add_u32 s41, s41, s18
    s_add_u32 s41, s41, {WBASE}
    ''')
    for h in range(nh):
        for ins in dma_w(opts.get('aux0', '') if layer == 0 else ''): e.ext(ins); m.q.issue(f'W{h}')
    m.p3_w = nh

def run(m, layer, next_pre):
    e = m.e; q = m.q; opts = m.opts.get('p3', {}); L = layer
    rot = 1 if (layer == 0 or opts.get('rot_all')) else 0
    srd(e, 8, ws_off=reg(L, R_X1) - BLK_BIAS, size=S*D*2 + BLK_BIAS)
    e(f'''
    s_lshl_b32 s23, s{S_MT2}, 8
    s_lshl_b32 s18, s20, 6
    s_add_u32 s23, s23, s18
    s_mul_i32 s22, s{S_NT2}, 112
    ''')
    e(f'''
    s_lshl_b32 s18, s23, 11
    v_lshlrev_b32 v{V_XOFF}, 4, v2
    v_add_u32 v{V_XOFF}, s18, v{V_XOFF}
    v_add_u32 v{V_XOFF+1}, 32768, v{V_XOFF}
    v_add_u32 v{V_XOFF+2}, 65536, v{V_XOFF}
    v_add_u32 v{V_XOFF+3}, 98304, v{V_XOFF}
    ''')
    e(f'''
    s_lshr_b32 s30, s{S_MT2}, {GS(opts)}
    s_mul_i32 s30, s30, {(4096*rot) << GS(opts)}
    s_and_b32 s95, s{S_MT2}, {(1 << GS(opts)) - 1}
    s_mul_i32 s18, s23, {LDW}
    s_mul_i32 s19, s{S_NT2}, 3584
    s_add_u32 s18, s18, s19
    ''')
    frag_store_addr(e, V_ST, 18)
    e(f'''
    s_lshl_b32 s18, s23, 7
    s_add_u32 s60, s18, {reg(L, R_STF)}
    v_lshlrev_b32 v29, 11, v31
    v_lshl_add_u32 v29, v30, 4, v29
    v_add_u32 v1, s22, v30
    v_lshlrev_b32 v28, 4, v1
    v_and_b32 v1, 1, v31
    v_mul_u32_u24 v1, {CS_PLANE}, v1
    v_add_u32 v28, v28, v1
    s_mov_b32 s62, {WS_CS + 3072*16}
    s_mov_b32 s63, {WS_CS + (3072+F)*16}
    ''')
    e(f'''
    v_mul_u32_u24 v1, 1920, v31
    v_bfe_u32 v3, v2, 2, 2
    v_mul_u32_u24 v3, 224, v3
    v_add_u32 v1, v1, v3
    v_and_b32 v3, 3, v2
    v_lshl_add_u32 v1, v3, 3, v1
    v_add_u32 v{V_WRD}, {WBASE}, v1
    s_mov_b32 s37, 0
    s_mov_b32 s48, {WHALF}
    s_mov_b32 s49, {(-(NWS-1)*WHALF) & 0xffffffff:#x}
    ''')
    C1 = -2.0 * 0.7978845608028654 * 1.4426950408889634
    C2 = C1 * 0.044715
    e(f's_mov_b32 s44, {f2u(C1):#x}\ns_mov_b32 s45, {f2u(C2):#x}')
    docs = (L == 0)
    touch = (L == 0 and not opts.get('notouch'))
    if docs:
        e('v_mov_b32 v1, 0x3f803f80')
        for i in range(4): e(f'v_accvgpr_write_b32 a{ONES+i}, v1')
        e(f'''
        s_lshr_b32 s18, s{S_MT2}, 2
        s_mul_i32 s18, s18, {CS_PLANE}
        s_and_b32 s19, s{S_MT2}, 3
        s_lshl_b32 s19, s19, 2
        s_add_u32 s18, s18, s19
        s_add_u32 s54, s18, s62
        s_add_u32 s55, s18, s63
        v_add_u32 v1, s22, v30
        v_lshlrev_b32 v27, 4, v1
        ''')
    if touch:
        srd(e, 4, ptr=P_DOWN, size=F*D*2)
        e('s_mov_b32 s7, 0x00020000')
        e(f's_lshl_b32 s18, s2, 2\ns_add_u32 s18, s18, s20\ns_mul_i32 s33, s18, {56*128}\nv_lshrrev_b32 v26, 3, v2\nv_lshlrev_b32 v26, 7, v26')
    m.stamp('p3 wait')
    m.wait(L, E_C, f's_lshl_b32 s18, s{S_MT2}, 1', 16, nshard=2)
    m.stamp('p3 go')
    pend = [(h, 2*((h - NWS)//2) + 1) for h in range(m.p3_w, NSTEP)]
    for t in range(XD):
        for ins in ld_x(t): e.ext(ins); q.issue(f'X{t}')
    small = stats_loads(lambda o: f'a[{RAW+o}:{RAW+o+3}]', 29, 60)
    csl = [[f'buffer_load_dwordx4 a[{CSA+4*b}:{CSA+4*b+3}], v28, s[24:27], s{62 + b//7} offen offset:{(b%7)*256} sc1'] for b in range(14)]
    def fin():
        Lx = [f'v_accvgpr_read_b32 v{16+i}, a{RAW+i}' for i in range(4)]
        for k in range(1, 8):
            Lx += [f'v_accvgpr_read_b32 v{20+i}, a{RAW+4*k+i}' for i in range(4)]
            Lx += [f'v_add_f32 v{16+i}, v{16+i}, v{20+i}' for i in range(4)]
        Lx += ['v_add_f32 v16, v16, v18', 'v_add_f32 v17, v17, v19']
        st = stats_t(16, 24, 8, None)[30:]
        st += [f'v_rcp_f32 v{16+tb}, v{24+tb}' for tb in range(4)]
        st += [f'v_cndmask_b32 v{8+tb}, 0, v{8+tb}, vcc' for tb in range(4)]
        st += [f'v_mul_f32 v{20+tb}, v{16+tb}, v{16+tb}' for tb in range(4)]
        st += [f'v_mul_f32 v{24+tb}, v{24+tb}, v{24+tb}' for tb in range(4)]
        st += [f'v_mul_f32 v{20+tb}, v{20+tb}, v{16+tb}' for tb in range(4)]
        st += [f'v_mul_f32 v{16+tb}, s44, v{16+tb}' for tb in range(4)]
        st += [f'v_mul_f32 v{20+tb}, s45, v{20+tb}' for tb in range(4)]
        st += [f'v_accvgpr_write_b32 a{NMB+4*tb+i}, v{8+tb}' for tb in range(4) for i in range(4)]
        return Lx, st
    def mfma(b, tb, t, c=None):
        a = acc(b, tb); p = t & 1
        cc = f'v[{a}:{a+3}]' if c is None else c
        return f'v_mfma_f32_16x16x32_bf16 v[{a}:{a+3}], a[{wfrag(p,b)}:{wfrag(p,b)+3}], a[{xfrag(t,tb)}:{xfrag(t,tb)+3}], {cc}'
    def reads(p):
        def w(b, h):
            off = (b // 7) * WREG + 4 * h * 224 + (b % 7) * 32
            return f'ds_read_b64_tr_b16 a[{wfrag(p,b)+2*h}:{wfrag(p,b)+2*h+1}], v{V_WRD} offset:{off}'
        return [w(b, h) for b in range(14) for h in range(2)]
    needs = [1 + 2*b for b in range(14) for tb in range(4)]
    pt = m.phase_touch(f'a{ONES+5}') if True else None
    if pt: e.ext(pt); q.issue('pt')
    n = q.wait_for({'W0', 'W1'})
    e(f's_waitcnt vmcnt({n})')
    e('s_barrier')
    m.stamp('p3 main')
    e('v_cmp_gt_u32 vcc, 32, v2')
    e.ext(reads(0))
    bodies = []
    blocks = lambda g: [2*g, 2*g+1, 2*g+7, 2*g+8] if g < 3 else [6, 13]
    units = [(g, t) for g in range(4) for t in range(28, 32)]
    def ureads(i):
        g, t = units[i]; base = 16 * (i % 7)
        va, ho = (12, (t - 28) * WHALF) if t < 30 else (13, (t - 30) * WHALF)
        return [f'ds_read_b64_tr_b16 a[{base+4*k+2*h}:{base+4*k+2*h+1}], v{va} offset:{ho + (b // 7) * WREG + 4 * h * 224 + (b % 7) * 32}'
                for k, b in enumerate(blocks(g)) for h in range(2)]
    for u in range(14):
        B = []
        for s in range(2):
            t = 2 * u + s; p = s
            ms = [mfma(b, tb, t, '0' if t == 0 else None) for b in range(14) for tb in range(4)]
            last = (t == NSTEP - 1)
            rd = []; pre = []; bar = []
            head = [f's_waitcnt vmcnt({q.wait_for({f"X{t}"} | ({"small"} if t == 20 else set()))})']
            if not last:
                pre = [f's_add_u32 s37, s37, {WHALF}', f's_cmp_eq_u32 s37, {WHALF*NWS}', 's_cselect_b32 s43, s49, s48',
                       's_cselect_b32 s37, 0, s37', f'v_add_u32 v{V_WRD}, s43, v{V_WRD}']
                rd = reads(p ^ 1)
                if t == 27:
                    pre = [f'v_add_u32 v12, {WHALF}, v{V_WRD}', f'v_subrev_u32 v13, {7*WHALF}, v{V_WRD}']
                    rd = ureads(0) + ureads(1) + ureads(2)
            if s == 1 and not last:
                tags = {f'W{t+1}', f'W{t+2}'}
                if t == 25: tags |= {'flg'}
                if t == 27: tags |= {'W30', 'W31', 'csl'}
                have = any(x in tags for x in q.q)
                n = q.wait_for(tags)
                bar = ([f's_waitcnt vmcnt({n})'] if have else []) + ['s_barrier']
            dm = []
            if t + XD < NSTEP - 1:
                for ins in ld_x(t + XD): dm.append(ins); q.issue(f'X{t+XD}')
            k = 0
            while pend and pend[0][1] <= t and k < (2 if t < opts.get('ramp', 6) else 1):
                h = pend.pop(0)[0]; k += 1
                for ins in dma_w(): dm.append(ins); q.issue(f'W{h}')
            if touch and s == 0 and 1 <= u < 8:
                dm.append([f'buffer_load_dword a{ONES+4}, v26, s[4:7], s33 offen', 's_add_u32 s33, s33, 1024']); q.issue('touch')
            if t in (16, 17):
                for ins in small[(t-16)*4:(t-15)*4]: dm.append(ins); q.issue('small')
            if docs and t == 23:
                dm.append([f's_lshl_b32 s53, s{S_NT2}, 8', f's_add_u32 s53, s53, {flag_off(0, E_CS, 0)}', 'v_and_b32 v24, 7, v2', 'v_lshlrev_b32 v24, 2, v24']
                          + m.soft_load(53, 24, 25)); q.issue('flg')
            if t == 25:
                if docs: bar += m.soft_check(53, 24, 25)
                for ins in csl: dm.append(ins); q.issue('csl')
            ex = []
            if t == 20: ex = fin()[0][:32]
            if t == 21: ex = fin()[0][32:]
            if t == 26: ex = fin()[1]
            TC = 4 << GS(opts); G = 1 << GS(opts)
            if docs and t == TC:
                ex = []
                for i in range(4):
                    ex += [f'v_accvgpr_read_b32 v{16+i}, a{CSP+4*i}']
                for i in range(4):
                    ex += [f'v_cvt_pk_bf16_f32 v{20+i}, v{16+i}, v{16+i}']
                for i in range(4):
                    ex += [f'v_and_b32 v{20+i}, 0xffff0000, v{20+i}']
                for i in range(4):
                    ex += [f'v_sub_f32 v{20+i}, v{16+i}, v{20+i}']
                for i in range(4):
                    ex += [f'v_cvt_pk_bf16_f32 v{20+i}, v{16+i}, v{20+i}']
            step = head + build_step(ms, needs, 28, pre, bar, rd, dm, ex, nb=3)
            if docs and t < TC:
                ls = [m.lab('cs') for _ in range(4)]; le = m.lab('cse')
                step += [f's_cmp_lg_u32 s95, {t % G}', f's_cbranch_scc1 {le}']
                for w in range(4):
                    if w < 3: step += [f's_cmp_lg_u32 s20, {w}', f's_cbranch_scc1 {ls[w+1]}']
                    for i in range(4):
                        b = w + 4*i
                        if b < 14:
                            d = CSP + 4*i
                            step.append(f'v_mfma_f32_16x16x32_bf16 a[{d}:{d+3}], a[{ONES}:{ONES+3}], a[{wfrag(p,b)}:{wfrag(p,b)+3}], ' + ('0' if t < G else f'a[{d}:{d+3}]'))
                    if w < 3: step += [f's_branch {le}', f'{ls[w+1]}:']
                step += [f'{le}:']
                if t == TC - 1: step += ['s_nop 7']
            if docs and t == TC:
                ls = [m.lab('cw') for _ in range(4)]; le = m.lab('cwe')
                step += ['s_mov_b64 exec, 0xffff']
                for w in range(4):
                    if w < 3: step += [f's_cmp_lg_u32 s20, {w}', f's_cbranch_scc1 {ls[w+1]}']
                    for i in range(4):
                        b = min(w + 4*i, 13) if w + 4*i >= 14 else w + 4*i
                        src = 20 + i if w + 4*i < 14 else None
                        if src is None:
                            b = w + 4*(i-1); src = 20 + i - 1
                        step.append(f'buffer_store_dword v{src}, v27, s[24:27], s{54 + b//7} offen offset:{(b%7)*256} sc1')
                    if w < 3: step += [f's_branch {le}', f'{ls[w+1]}:']
                step += [f'{le}:', 's_mov_b64 exec, -1']
                for i in range(4): q.issue('csw')
            if docs and t == TC + 5:
                assert 'csw' not in q.q
                step += m.signal(0, E_CS, f's_mov_b32 s18, s{S_NT2}\ns_mov_b32 s19, s{S_MT2}')
            B += step
        bodies.append(B)
    assert not pend
    bodies = [bodies[2*i] + bodies[2*i+1] for i in range(7)]
    e.ext(loopify(bodies, m.lab('p3L'), 38, 1))
    m.stamp('p3 tail')
    for ins in ld_x(31): e.ext(ins); q.issue('X31')
    srd(e, 56, ws_off=reg(L, R_H), size=S*F*2)
    for tb in range(4): e(f's_mov_b32 s{60+tb}, {tb*16*LDW}')
    e(f'v_and_b32 v1, 1, v31')
    e(f'v_mul_u32_u24 v1, {16*LDW - 512}, v1')
    e(f'v_add_u32 v14, v1, v{V_ST}')
    TP = [4, 6, 28, 0]
    def ep_pair(t1, t2, voff, soff, imm):
        e = m.e
        items = []
        for (b, tb) in (t1, t2):
            for h in range(2):
                items.append((acc(b, tb) + 2*h, acc(b + 7, tb) + 2*h, V_K + tb))
        P = lambda i: f'v[{items[i][0]}:{items[i][0]+1}]'
        U = lambda i: f'v[{items[i][1]}:{items[i][1]+1}]'
        Tm = lambda i: f'v[{TP[i]}:{TP[i]+1}]'
        def bc(r): return (f'v[{r}:{r+1}]', 0) if r % 2 == 0 else (f'v[{r-1}:{r}]', 1)
        for i in range(4): e(f'v_pk_mul_f32 {Tm(i)}, {P(i)}, {P(i)}')
        for i in range(4):
            k = items[i][2]; (k2, s2), (k1, s1) = bc(k + 4), bc(k)
            e(f'v_pk_fma_f32 {Tm(i)}, {Tm(i)}, {k2}, {k1} op_sel:[0,{s2},{s1}] op_sel_hi:[1,{s2},{s1}]')
        for i in range(4): e(f'v_pk_mul_f32 {Tm(i)}, {Tm(i)}, {P(i)}')
        for i in range(8): e(f'v_exp_f32 v{TP[i//2]+i%2}, v{TP[i//2]+i%2}')
        for i in range(4): e(f'v_pk_mul_f32 {U(i)}, {U(i)}, {P(i)}')
        for i in range(4):
            k3, s3 = bc(items[i][2] + 8)
            e(f'v_pk_fma_f32 {Tm(i)}, {Tm(i)}, {k3}, {k3} op_sel:[0,{s3},{s3}] op_sel_hi:[1,{s3},{s3}]')
        for i in range(8): e(f'v_rcp_f32 v{TP[i//2]+i%2}, v{TP[i//2]+i%2}')
        for i in range(4): e(f'v_pk_mul_f32 {U(i)}, {U(i)}, {Tm(i)}')
        r = acc(*t1)
        for i in range(4): e(f'v_cvt_pk_bf16_f32 v{r+i}, v{items[i][1]}, v{items[i][1]+1}')
        e(f'v_permlane16_swap_b32 v{r}, v{r+2}')
        e(f'v_permlane16_swap_b32 v{r+1}, v{r+3}')
        e(f'buffer_store_dwordx4 v[{r}:{r+3}], v{voff}, s[56:59], s{soff} offen offset:{imm} sc1')
    pre = Pre(m, next_pre)
    nout = {0: 8, 1: 8, 2: 8}
    for i, (g, t) in enumerate(units):
        base = 16 * (i % 7)
        younger = sum(len(ureads(j)) for j in range(i + 1, min(i + 3, 16)))
        if g == 0: e(f's_waitcnt vmcnt({q.wait_for({f"X{t}"})})')
        e(f's_waitcnt lgkmcnt({min(15, younger)})')
        if i == 15: e('s_barrier')
        rd = ureads(i + 3) if i + 3 < 16 else []
        ms = [f'v_mfma_f32_16x16x32_bf16 v[{acc(b,tb)}:{acc(b,tb)+3}], a[{base+4*k}:{base+4*k+3}], a[{xfrag(t,tb)}:{xfrag(t,tb)+3}], v[{acc(b,tb)}:{acc(b,tb)+3}]'
              for k, b in enumerate(blocks(g)) for tb in range(4)]
        for j, x in enumerate(ms):
            e(x)
            if j < len(rd): e(rd[j])
        if t == 31:
            for b in blocks(g):
                for tb in range(4):
                    a = acc(b, tb)
                    e(f'v_mfma_f32_16x16x32_bf16 v[{a}:{a+3}], a[{CSA+4*b}:{CSA+4*b+3}], a[{NMB+4*tb}:{NMB+4*tb+3}], v[{a}:{a+3}]')
            if g < 3:
                for tb in range(4):
                    ep_pair((2*g, tb), (2*g+1, tb), V_ST, 60 + tb, g * 1024); q.issue('hs')
            else:
                pre.emit_setup()
                keep = m.e; cap = Asm(); m.e = cap
                for tb in (1, 3): ep_pair((6, tb - 1), (6, tb), 14, 60 + tb - 1, 3072)
                m.e = keep
                if opts.get('late_pre'): e.ext(cap.L)
                else: pre.weave(cap.L, 6)
    m.stamp('p3 st')
    m.publish(L, E_D, f's_lshl_b32 s18, s{S_MT2}, 1\ns_lshr_b32 s19, s{S_NT2}, 4\ns_add_u32 s18, s18, s19\ns_and_b32 s19, s{S_NT2}, 15')
    m.stamp('p3 pub')
    pre.weave([], 1)
```

```python
from asmlib import *
from common import *
from mega import *
import pd
from pd import acc, xfrag, wfrag, V_RES, V_TMP, V_XOFF, V_WOFF, V_XRD, V_WRD, V_ST, V_SST, V_EX, V_EXR, V_RO

XT = 16384; WG_ = 8192; STAGE = XT + 2 * WG_; NS = 5
KH = F // 2; NBODY = KH // 64; NSTEP = 2 * NBODY; LDA = F * 2

def dma_x():
    g = []
    for j in range(4):
        ins = [f'buffer_load_dwordx4 v{V_XOFF+j//2}, s[8:11], s30 offen offset:{j*1024} sc1 lds']
        if j == 0: ins = ['s_add_u32 m0, s34, s40', 's_nop 0'] + ins
        if j == 3: ins += [f's_add_u32 s34, s34, {STAGE}', f's_cmp_eq_u32 s34, {STAGE*NS}', 's_cselect_b32 s34, 0, s34']
        if j == 3: ins += ['s_add_u32 s30, s30, 2048']
        g.append(ins)
    return g
def dma_w():
    g = []
    for j in range(4):
        ins = [f'buffer_load_dwordx4 v{V_WOFF+j}, s[12:15], s32 offen offset:{j*1024} lds']
        if j == 0: ins = ['s_add_u32 m0, s35, s41', 's_nop 0'] + ins
        if j == 3: ins += [f's_add_u32 s35, s35, {STAGE}', f's_cmp_eq_u32 s35, {STAGE*NS}', 's_cselect_b32 s35, 0, s35']
        if j == 3: ins += [f's_add_u32 s32, s32, {64*2048}']
        g.append(ins)
    return g

def pre_w(m, ntiles=NS):
    e = m.e
    srd(e, 12, ptr=P_DOWN, size=F*D*2)
    e(f'''
    s_lshr_b32 s18, s20, 1
    s_lshl_b32 s18, s18, 5             ; k row 32*(w>>1)
    s_and_b32 s19, s{S_CI}, 7
    s_lshl_b32 s19, s19, 1
    s_and_b32 s32, s20, 1
    s_add_u32 s19, s19, s32
    s_lshl_b32 s19, s19, 7
    ''')
    w_dma_offsets(e, V_WOFF, 4, 18, 2048, 19)
    e(f'''
    s_lshl_b32 s41, s32, 13
    s_lshl_b32 s18, s18, 7
    s_add_u32 s41, s41, s18
    s_add_u32 s41, s41, {XT}
    s_mul_i32 s32, s{S_PAR}, {KH*2048}
    s_mov_b32 s35, 0
    ''')
    for u in range(ntiles):
        for ins in dma_w(): e.ext(ins); m.q.issue(f'p4T{u}')
    m.ps_w = ntiles

def run(m, L, res, out, st_off, wait_fn, pub_fn, next_pre, opts):
    e = m.e; q = m.q; tag = 'p4'
    srd(e, 8, ws_off=reg(L, R_H) - BLK_BIAS, size=S*LDA + BLK_BIAS)
    srd(e, 56, ws_off=res[1], size=S*D*2)
    e(f'''
    s_lshl_b32 s23, s{S_MT}, 7
    s_lshr_b32 s28, s20, 1           ; wm
    s_and_b32 s29, s20, 1            ; wn
    s_lshl_b32 s18, s20, 5
    s_add_u32 s33, s23, s18
    ''')
    x_dma_offsets(e, V_XOFF, 33, LDA, None, blocked=True)
    e(f'''
    s_mul_i32 s30, s{S_PAR}, {KH*32}
    s_mov_b32 s34, 0
    s_lshl_b32 s40, s20, 12
    s_and_b32 s54, s{S_CI}, 7
    s_lshl_b32 s54, s54, 1
    s_add_u32 s54, s54, s29
    s_lshl_b32 s18, s28, 6
    s_add_u32 s18, s18, s23
    s_lshl_b32 s19, s{S_PAR}, 5
    s_add_u32 s18, s18, s19
    ''')
    pd.tail_addr(e, True, out[0] == 'ws', 's54')
    e(f'''
    s_lshl_b32 s18, s28, 13
    s_lshl_b32 s19, s{S_PAR}, 12
    v_lshlrev_b32 v1, 4, v2
    v_add_u32 v1, s18, v1
    v_add_u32 v{V_XRD+1}, s19, v1
    s_sub_u32 s19, 4096, s19
    v_add_u32 v{V_XRD}, s19, v1
    ''')
    e(f's_lshl_b32 s18, s29, 13\ns_add_u32 s18, s18, {XT}')
    w_read_addr(e, V_WRD, [0, 1, 2, 3], 18)
    e(f'''
    s_lshl_b32 s18, s2, 2
    s_add_u32 s18, s18, s20
    s_xor_b32 s19, s18, 4
    s_lshl_b32 s18, s18, 12
    s_add_u32 s18, s18, {reg(L, R_PX)}
    s_lshl_b32 s19, s19, 12
    s_add_u32 s19, s19, {reg(L, R_PX)}
    v_lshlrev_b32 v1, 4, v2
    v_add_u32 v{V_EX}, s18, v1
    v_add_u32 v{V_EXR}, s19, v1
    s_mov_b32 s55, 4096
    s_mov_b32 s36, 0
    s_mov_b32 s42, 0
    s_mov_b32 s50, {STAGE}
    s_mov_b32 s51, {(-(NS-1)*STAGE) & 0xffffffff:#x}
    ''')
    small = pd.res_loads(res)
    m.stamp(tag + ' wait')
    wait_fn()
    m.stamp(tag + ' go')
    flat = []
    for u in range(NBODY):
        al = 2*(u - NS) + 1
        flat += [(ins, f'{tag}T{u}', al) for ins in dma_x()]
        if u >= m.ps_w: flat += [(ins, f'{tag}T{u}', al) for ins in dma_w()]
    def take(step, n):
        o = []
        while flat and len(o) < n and flat[0][2] <= step: o.append(flat.pop(0))
        return o
    n0 = sum(1 for f in flat if int(f[1][3:]) < opts.get('n0', 3))
    for ins, tg, _ in take(-1, n0): e.ext(ins); q.issue(tg)
    NT = opts.get('ntail', 10); T0 = NSTEP - NT
    def xr(t, tb):
        if t >= T0 and tb >= 2: r = 24 * (t - T0) + (tb - 2) * 4; return f'a[{r}:{r+3}]'
        r = xfrag(t & 1, tb); return f'v[{r}:{r+3}]'
    def wr(t, nb, h=None):
        f, r = ('a', 24 * (t - T0) + 8 + nb * 4) if t >= T0 else ('v', wfrag(t & 1, nb))
        return f'{f}[{r}:{r+3}]' if h is None else f'{f}[{r+2*h}:{r+2*h+1}]'
    def mfma(nb, tb, t, c=None):
        a = acc(nb, tb)
        cc = f'v[{a}:{a+3}]' if c is None else c
        return f'v_mfma_f32_16x16x32_bf16 v[{a}:{a+3}], {wr(t,nb)}, {xr(t,tb)}, {cc}'
    def reads(t):
        s = t & 1
        x = lambda tb: f'ds_read_b128 {xr(t,tb)}, v{V_XRD + (tb >> 1)} offset:{(tb & 1)*2048 + s*1024}'
        w = lambda nb, h: f'ds_read_b64_tr_b16 {wr(t,nb,h)}, v{V_WRD+nb} offset:{(32*s+4*h)*128}'
        if t >= T0:
            g = [x(0), w(0, 0), w(0, 1), x(1)]
            for nb in range(1, 4): g += [w(nb, 0), w(nb, 1)]
            return g + [x(2), x(3)]
        g = [x(0), w(0, 0), w(0, 1), x(1), x(2), x(3)]
        for nb in range(1, 4): g += [w(nb, 0), w(nb, 1)]
        return g
    needs_t = [max(2 + tb, 3 + 2*b if b else 0) for b in range(4) for tb in range(2)]
    needs = [max(2 if tb == 0 else 2 + tb, 5 + 2*b if b else 0) for b in range(4) for tb in range(4)]
    pt = m.phase_touch('v255') if True else None
    if pt: e.ext(pt); q.issue('pt')
    n = q.wait_for({f'{tag}T0'})
    e(f's_waitcnt vmcnt({n})')
    e('s_barrier')
    m.stamp(tag + ' main')
    e.ext(reads(0))
    bodies = []
    for u in range(NBODY):
        B = []
        for s in range(2):
            t = 2 * u + s; p = s
            last = (t == NSTEP - 1)
            ms = [mfma(nb, tb, t, '0' if t == 0 else None) for nb in range(4) for tb in range(4 if t < T0 else 2)]
            pre = []; bar = []; rd = []
            adv = [f's_add_u32 s36, s36, {STAGE}', f's_cmp_eq_u32 s36, {STAGE*NS}', 's_cselect_b32 s42, s51, s50', 's_cselect_b32 s36, 0, s36']
            ex = []
            if not last:
                if s == 1:
                    pre = [f'v_add_u32 v{V_XRD+i}, s42, v{V_XRD+i}' for i in range(6)]
                    n = q.wait_for({f'{tag}T{u+1}'} | ({'res'} if u == NBODY - 2 else set()))
                    bar = [f's_waitcnt vmcnt({n})', 's_barrier']
                else:
                    ex = adv
                rd = reads(t + 1)
            dm = []
            for ins, tg, _ in take(t, 4 if t >= 4 else 6): dm.append(ins); q.issue(tg)
            if not flat and not dm and small:
                for ins in small[:4]: dm.append(ins); q.issue('res')
                small = small[4:]
            if opts.get('nodma') and 6 <= t < 44: dm = []
            if opts.get('noread'): rd = []
            if opts.get('nobar'): bar = bar[:1]
            B += build_step(ms, needs if t < T0 else needs_t, 12, pre, bar, rd, dm, ex, nb=((3 if t < T0 else 2) if s == 1 else 1))
        bodies.append(B)
    assert not flat and not small and 'res' not in q.q
    e.ext(loopify(bodies, m.lab(tag + 'L'), 38, m.opts.get('unroll', 2)))
    m.stamp(tag + ' epi')
    for i in range(2):
        for nb in range(4):
            a = acc(nb, i); o = 96 + (i*4+nb)*2
            e(f'v_cvt_pk_bf16_f32 v{o}, v{a}, v{a+1}')
            e(f'v_cvt_pk_bf16_f32 v{o+1}, v{a+2}, v{a+3}')
    for k in range(4):
        e(f'buffer_store_dwordx4 v[{96+4*k}:{99+4*k}], v{V_EX}, s[24:27], 0 offen offset:{k*1024} sc1')
    e('s_waitcnt lgkmcnt(0)')
    keep = m.e; cap = Asm(); m.e = cap; pd.unpack_res(cap); m.e = keep
    ur = list(cap.L)
    cnt = 0; ep = max(1, 8*NT - opts.get('epoll', 28))
    pxl = [f'buffer_load_dwordx4 v[{128+4*k}:{131+4*k}], v{V_EXR}, s[24:27], 0 offen offset:{k*1024} sc1' for k in range(4)]
    for t in range(T0, NSTEP):
        for nb in range(4):
            for tb in (2, 3):
                e(mfma(nb, tb, t))
                if ur: e(ur.pop(0))
                cnt += 1
                if 0 <= cnt - ep < 4: e(pxl[cnt - ep])
    e.ext(ur)
    for i in range(2):
        for nb in range(4):
            a = acc(nb, 2 + i); tm = V_TMP + (i*4+nb)*4
            e(f'v_pk_add_f32 v[{tm}:{tm+1}], v[{tm}:{tm+1}], v[{a}:{a+1}]')
            e(f'v_pk_add_f32 v[{tm+2}:{tm+3}], v[{tm+2}:{tm+3}], v[{a+2}:{a+3}]')
    m.stamp(tag + ' p2')
    pl = m.lab('xpl'); ok = m.lab('xok')
    e(f's_mov_b32 s39, {1 << 16}\n{pl}:')
    e('s_waitcnt vmcnt(0)'); q.clear()
    e('v_max3_u32 v1, v128, v129, v130')
    for k in range(131, 143, 2): e(f'v_max3_u32 v1, v1, v{k}, v{k+1}')
    e(f'''
    v_max_u32 v1, v1, v143
    v_cmp_eq_u32 vcc, -1, v1
    s_nop 1
    s_cmp_eq_u64 vcc, 0
    s_cbranch_scc1 {ok}
    ''')
    e.ext(pxl)
    e(f'''
    s_sub_u32 s39, s39, 1
    s_cmp_lg_u32 s39, 0
    s_cbranch_scc1 {pl}
    s_waitcnt vmcnt(0)
    {ok}:
    ''')
    m.stamp(tag + ' got')
    for k in range(16):
        e(f'v_lshlrev_b32 v{96+2*k}, 16, v{128+k}')
        e(f'v_and_b32 v{97+2*k}, 0xffff0000, v{128+k}')
    if out[0] == 'ptr': e('s_barrier')
    pd.finalize(e, out, st_off)
    m.stamp(tag + ' st')
    pub_fn(Pre(m, next_pre))
    m.stamp(tag + ' pub')
```

```python
from asmlib import *
from common import *
from mega import *

XT = 16384; WG_ = 8192; STAGE = XT + 2 * WG_; NS = 5
QST = XT + WG_; QNS = 6; QB = 90112; QWRAP = 16384
LDW = 3 * D * 2
NBODY = 16; NSTEP = 32
ROWB = 352; HREG = 128 * ROWB

def acc(blk, tb): return 32 + (blk * 4 + tb) * 4
def xfrag(p, tb): return 128 + p * 32 + tb * 4
def wfrag(p, b): return 128 + p * 32 + 16 + b * 4
KEEP = 10; TK = NSTEP - KEEP; XK = 68; WK = 228; R2 = 32768; NB2 = NBODY - KEEP // 2
V_RAW = 208; V_PHI = 240; V_A = 248
CSA = 0; NMB = 24; PHH = 40; ONES = 48; CSP = 52
V_XOFF = 4; V_WOFF = 8; V_XRD = 12; V_WRD = 14
V_LW = 18; V_LR = 19; V_KV = 20; V_OS = 21; V_KZ = 22

G1S = [1]
def adv(reg, part):
    if part == 'a': return [f's_add_u32 s{reg}, s{reg}, {STAGE}', f's_cmp_eq_u32 s{reg}, {STAGE*NS}', f's_cselect_b32 s{reg}, 0, s{reg}']
    return [f's_add_u32 s{reg}, s{reg}, {QST}', f's_cmp_eq_u32 s{reg}, 163840', f's_cselect_b32 s{reg}, {QWRAP}, s{reg}']
def dma_x(L, part):
    aux = '' if L == 0 else 'sc1'
    g = []
    for j in range(4):
        ins = [f'buffer_load_dwordx4 v{V_XOFF+(j//2 if L else j)}, s[8:11], s30 offen offset:{j*1024} {aux} lds']
        if j == 0: ins = ['s_add_u32 m0, s34, s40', 's_nop 0'] + ins
        if j == 3: ins += adv(34, part) + [f's_add_u32 s30, s30, {2048 if L else 128}'] + (['s_and_b32 s30, s30, 0x7ff'] if L == 0 else [])
        g.append(ins)
    return g
def dma_w(L, part):
    g = []
    grps = [(32, 41), (33, 43)] if part == 'a' else [(32, 41)]
    first = 2048 if part == 'a' else 0
    for gi, (so, mb) in enumerate(grps):
        for j in range(2):
            ins = [f'buffer_load_dwordx4 v{V_WOFF+j}, s[12:15], s{so} offen offset:{j*1024} lds']
            if j == 0: ins = [f's_add_u32 m0, s35, s{mb}', 's_nop 0'] + ins
            if j == 1 and gi == len(grps) - 1:
                ins += adv(35, part) + [f's_add_u32 s32, s32, {64*LDW}']
                if L == 0: ins += [f's_cmp_eq_u32 s32, {D*LDW + first}', f's_cselect_b32 s32, {first}, s32']
                if part == 'a': ins += ['s_add_u32 s33, s32, 2048']
            g.append(ins)
    return g

def first_loads(m):
    e = m.e
    srd(e, 8, ptr=P_X, size=S*D*2)
    e(f'''
    s_lshl_b32 s18, s{S_MT}, 7
    s_lshl_b32 s19, s{S_CI}, 3
    s_add_u32 s18, s18, s19
    s_lshl_b32 s19, s20, 1
    s_add_u32 s48, s18, s19
    s_lshl_b32 s18, s48, 11
    v_lshlrev_b32 v1, 5, v2
    ''')
    for r in range(2):
        for h in range(2):
            e(f'buffer_load_dwordx4 v[{V_RAW+r*8+h*4}:{V_RAW+r*8+h*4+3}], v1, s[8:11], s18 offen offset:{r*2048 + h*16}'); m.q.issue('xr')

def pre_w(m, layer, ntiles=2):
    e = m.e
    srd(e, 12, ptr=P_WQKV, size=D*LDW)
    e(f'''
    s_lshl_b32 s18, s20, 4
    s_lshl_b32 s19, s{S_CI}, 7
    ''')
    w_dma_offsets(e, V_WOFF, 2, 18, LDW, 19)
    e(f'''
    s_andn2_b32 s95, s{S_MT}, {(1 << G1S[0]) - 1}
    s_mul_i32 s32, s95, {64*LDW if layer == 0 else 0}
    s_add_u32 s32, s32, 2048
    s_add_u32 s33, s32, 2048
    s_mov_b32 s35, 0
    s_lshl_b32 s41, s20, 11
    s_add_u32 s41, s41, {XT}
    s_add_u32 s43, s41, {WG_}
    ''')
    for u in range(ntiles):
        for ins in dma_w(layer, 'a'): e.ext(ins); m.q.issue(f'P1T{u}')
    m.p1_w = ntiles

def run(m, layer, next_pre):
    e = m.e; q = m.q; opts = m.opts.get('p1', {})
    L = layer
    if L == 0: srd(e, 8, ptr=P_X, size=S*D*2)
    else: srd(e, 8, ws_off=reg(0, R_X2) - BLK_BIAS, size=S*D*2 + BLK_BIAS)
    e(f'''
    s_lshl_b32 s23, s{S_MT}, 7        ; m0
    s_lshr_b32 s28, s20, 1            ; wm
    s_and_b32 s29, s20, 1             ; wh
    s_lshl_b32 s18, s20, 5
    s_add_u32 s18, s18, s23
    ''')
    x_dma_offsets(e, V_XOFF, 18, 2048, blocked=(L > 0))
    e(f's_mul_i32 s30, s95, {128 if L == 0 else 0}\ns_and_b32 s31, s{S_MT}, {(1 << G1S[0]) - 1}\ns_mov_b32 s34, 0\ns_lshl_b32 s40, s20, 12')
    def rest_setup():
        e('s_lshl_b32 s18, s28, 13')
        (x_read_addr if L == 0 else x_read_addr_f)(e, V_XRD, 18)
        e(f's_mov_b32 s18, {XT}\ns_lshl_b32 s19, s29, 2')
        w_read_addr(e, V_WRD, [0, 1], 18, 19)
        e(f'''
        s_lshl_b32 s18, s{S_CI}, 1
        s_add_u32 s54, s18, s29            ; head
        s_lshl_b32 s18, s{S_MT}, 3
        s_lshl_b32 s19, s28, 2
        s_add_u32 s18, s18, s19
        s_lshl_b32 s18, s18, 11
        s_add_u32 s60, s18, {reg(L, R_STA)}
        v_lshlrev_b32 v23, 11, v31
        v_lshl_add_u32 v23, v30, 4, v23
        s_lshl_b32 s18, s54, 5
        v_add_u32 v1, s18, v30
        v_lshlrev_b32 v24, 4, v1
        v_mov_b32 v16, v24
        v_mul_u32_u24 v1, {CS_PLANE}, v31
        v_add_u32 v24, v24, v1
        s_mov_b32 s62, {WS_CS}
        s_mov_b32 s63, {WS_CS + 1024*16}
        s_mov_b32 s55, {WS_CS + 2048*16}
        v_lshlrev_b32 v25, 8, v31
        v_lshl_add_u32 v25, v30, 1, v25
        s_lshl_b32 s45, s54, 11
        s_lshl_b32 s18, s28, 6
        v_add_u32 v1, s18, v30
        v_mul_u32_u24 v1, {ROWB}, v1
        v_lshrrev_b32 v3, 2, v30
        v_xor_b32 v3, v3, v31
        v_lshl_add_u32 v1, v3, 3, v1
        s_mul_i32 s18, s29, {HREG}
        v_add_u32 v{V_LW}, s18, v1
        v_bfe_u32 v1, v2, 2, 2
        v_lshl_add_u32 v1, v31, 2, v1
        v_mul_u32_u24 v1, {ROWB}, v1
        v_and_b32 v3, 3, v2
        v_xor_b32 v3, v3, v31
        v_lshl_add_u32 v1, v3, 3, v1
        v_add_u32 v{V_LR}, s18, v1
        s_lshl_b32 s18, s{S_MT}, 5
        s_add_u32 s18, s18, s54
        s_mul_i32 s18, s18, {KVP_HEAD}
        s_add_u32 s18, s18, {reg(L, R_KVP)}
        s_lshl_b32 s19, s28, 7
        s_add_u32 s19, s19, s18
        s_add_u32 s19, s19, 8192
        v_lshlrev_b32 v1, 4, v31
        v_add_u32 v{V_KZ}, s19, v1
        s_lshl_b32 s19, s28, 12
        s_add_u32 s18, s18, s19
        v_lshlrev_b32 v1, 4, v2
        v_add_u32 v{V_KV}, s18, v1
        s_lshl_b32 s18, s28, 6
        s_add_u32 s18, s18, s23
        s_lshl_b32 s18, s18, 11
        s_lshl_b32 s19, s54, 10
        s_add_u32 s18, s18, s19
        s_add_u32 s18, s18, {reg(L, R_O)}
        ''')
        frag_store_addr(e, V_OS, 18)
        e(f'''
        s_mov_b32 s36, 0
        s_mov_b32 s42, 0
        s_mov_b32 s50, {STAGE}
        s_mov_b32 s51, {(-(NS-1)*STAGE) & 0xffffffff:#x}
        ''')
        srd(e, 56, ptr=P_PHI, size=65536)
        e(f'''
        s_lshr_b32 s18, s{S_MT}, 3
        s_lshl_b32 s19, s{S_CI}, 1
        s_add_u32 s18, s18, s19
        s_mul_i32 s44, s18, 6144
        s_bfe_u32 s18, s{S_MT}, 0x10002
        s_mul_i32 s18, s18, 3072
        s_add_u32 s44, s44, s18
        s_and_b32 s18, s{S_MT}, 1
        s_lshl_b32 s18, s18, 10
        s_add_u32 s44, s44, s18
        s_and_b32 s18, s{S_MT}, 2
        s_lshl_b32 s18, s18, 2
        s_add_u32 s44, s44, s18
        s_lshr_b32 s18, s{S_MT}, 2
        s_add_u32 s18, s18, s19
        s_mul_i32 s39, s18, 6144
        s_bfe_u32 s18, s{S_MT}, 0x10001
        s_mul_i32 s18, s18, 3072
        s_add_u32 s39, s39, s18
        s_and_b32 s18, s{S_MT}, 1
        s_lshl_b32 s18, s18, 3
        s_add_u32 s39, s39, s18
        s_add_u32 s39, s39, 2048
        s_lshr_b32 s18, s{S_MT}, 3
        s_lshl_b32 s18, s18, 2
        s_add_u32 s18, s18, s20
        s_add_u32 s92, s44, {reg(L, R_KVR)}
        s_add_u32 s93, s39, {reg(L, R_KVR)}
        s_cmp_eq_u32 s18, 1
        s_cselect_b32 s44, s93, s92
        ''')
    csld = lambda b, v=24: [f'buffer_load_dwordx4 a[{CSA+4*b}:{CSA+4*b+3}], v{v}, s[24:27], s{[62,63,55][b//2]} offen offset:{(b%2)*256} sc1']
    const = [csld(b) for b in range(2 if L == 0 else 0, 6)]
    for fb in range(2):
        for i in range(8):
            d = (i & 3) + 16 * (i >> 2)
            dst = f'v{V_PHI + fb*4 + i//2}' if i % 2 == 0 else f'a{PHH + fb*4 + i//2}'
            const.append([f'buffer_load_ushort {dst}, v25, s[56:59], s45 offen offset:{d*64 + fb*32}'])
    small = stats_loads(lambda o: f'v[{V_RAW+o}:{V_RAW+o+3}]', 23, 60)
    if L > 0:
        rest_setup()
        for ins in const: e.ext(ins); q.issue('const')
        m.stamp('p1 wait')
        m.wait(L - 1, E_E, f's_mov_b32 s18, s{S_MT}', 16)
    else:
        small = const[4:] + const[:4] + small
    m.stamp('p1 go')
    nw = m.p1_w
    flat = []
    for u in range(NBODY):
        xs = [(ins, f'P1T{u}', 2*(u - NS) + 1) for ins in dma_x(L, 'a')]
        ws = [(ins, f'P1T{u}', 2*(u - NS) + 1) for ins in dma_w(L, 'a')] if u >= nw else []
        flat += xs + ws
    def take(step, n):
        out = []
        while flat and len(out) < n and flat[0][2] <= step: out.append(flat.pop(0))
        return out
    n0 = sum(1 for f in flat if int(f[1][3:]) < max(2, min(nw, 4)))
    for ins, tag, _ in take(-1, n0): e.ext(ins); q.issue(tag)
    if L == 0:
        if opts.get('xlate', 1): first_loads(m)
        if m.opts.get('ctouch', 1): e.ext(m.code_touch('a64')); q.issue('ct')
        if m.opts.get('tlb', 0): e.ext(m.tlb_touch('a65')); q.issue('ct'); q.issue('ct')
        for x in m.tag_write(): e(x)
        rest_setup()
        e(f'''
        v_mov_b32 v1, 0x3f803f80
        v_accvgpr_write_b32 a{ONES}, v1
        v_accvgpr_write_b32 a{ONES+1}, v1
        v_accvgpr_write_b32 a{ONES+2}, v1
        v_accvgpr_write_b32 a{ONES+3}, v1
        s_lshr_b32 s18, s{S_MT}, 2
        s_mul_i32 s18, s18, {CS_PLANE}
        s_and_b32 s19, s{S_MT}, 3
        s_lshl_b32 s19, s19, 2
        s_add_u32 s18, s18, s19
        v_add_u32 v16, s18, v16
        s_lshr_b32 s18, s48, 4
        s_lshl_b32 s18, s18, 11
        s_and_b32 s19, s48, 15
        s_lshl_b32 s19, s19, 4
        s_add_u32 s18, s18, s19
        s_add_u32 s48, s18, {reg(0, R_STA)}
        v_lshrrev_b32 v17, 3, v2
        v_lshlrev_b32 v17, 8, v17
        v_bfe_u32 v1, v2, 2, 1
        v_lshl_add_u32 v17, v1, 3, v17
        s_lshl_b32 s49, s{S_MT}, 8
        s_add_u32 s49, s49, {flag_off(0, E_S, 0)}
        s_lshl_b32 s52, s{S_CI}, 8
        s_add_u32 s52, s52, {flag_off(0, E_CSQ, 0)}
        v_lshlrev_b32 v28, 2, v30
        s_cmp_lt_u32 s20, 2
        s_cselect_b32 s4, s{P_GATE}, s{P_UP}
        s_cselect_b32 s5, s{P_GATE+1}, s{P_UP+1}
        s_mov_b32 s6, {D*F*2}
        s_mov_b32 s7, 0x00020000
        s_lshl_b32 s18, s2, 1
        s_and_b32 s19, s20, 1
        s_add_u32 s18, s18, s19
        s_mul_i32 s37, s18, {112*128}
        v_lshlrev_b32 v11, 7, v31
        s_mov_b32 s18, 0x3f803f80
        ''')
        A0 = V_RAW + 16
        xs = [f'v_mov_b32 v{A0+i}, 0' for i in range(4)] + ['s_mov_b32 s18, 0x3f803f80']
        for d in range(8):
            for r in range(2):
                x = V_RAW + r*8 + d
                xs += [f'v_dot2_f32_bf16 v{A0+2*r}, v{x}, s18, v{A0+2*r}', f'v_dot2_f32_bf16 v{A0+2*r+1}, v{x}, v{x}, v{A0+2*r+1}']
        xs += ['s_nop 4']
        for qp in ('[1,0,3,2]', '[2,3,0,1]'):
            xs += [f'v_add_f32_dpp v{A0+i}, v{A0+i}, v{A0+i} quad_perm:{qp} row_mask:0xf bank_mask:0xf' for i in range(4)]
        if not opts.get('xlate', 1):
            e(f's_waitcnt vmcnt({q.wait_for({"xr"})})'); e.ext(xs)
    def xr(p, tb, t=-1):
        if t >= TK: r = XK + (t - TK) * 16 + tb * 4; return f'a[{r}:{r+3}]'
        return f'v[{xfrag(p,tb)}:{xfrag(p,tb)+3}]'
    def mfma(blk, b, tb, p, c=None, t=-1):
        a = acc(blk, tb)
        cc = f'v[{a}:{a+3}]' if c is None else c
        return f'v_mfma_f32_16x16x32_bf16 v[{a}:{a+3}], v[{wfrag(p,b)}:{wfrag(p,b)+3}], {xr(p,tb,t)}, {cc}'
    def reads(p, s, nbk, t=-1):
        x = lambda tb: f'ds_read_b128 {xr(p,tb,t)}, v{V_XRD+s} offset:{tb*2048}'
        w = lambda b, h: f'ds_read_b64_tr_b16 v[{wfrag(p,b)+2*h}:{wfrag(p,b)+2*h+1}], v{V_WRD+(b&1)} offset:{(b>>1)*WG_ + (32*s+4*h)*128}'
        g = [x(0), w(0, 0), w(0, 1), x(1), x(2), x(3)]
        for b in range(1, nbk): g += [w(b, 0), w(b, 1)]
        return g
    needs = [max(2 if tb == 0 else 2 + tb, 5 + 2*b if b else 0) for b in range(4) for tb in range(4)]
    pt = m.phase_touch('a64') if L > 0 else None
    if pt: e.ext(pt); q.issue('pt')
    n = q.wait_for({'P1T0'})
    e(f's_waitcnt vmcnt({n})')
    e('s_barrier')
    m.stamp('p1 main')
    e.ext(reads(0, 0, 4))
    extra = []
    for i in range(8):
        extra.append(f'v_accvgpr_read_b32 v26, a{PHH+i}')
        extra.append(f'v_lshl_or_b32 v{V_PHI+i}, v26, 16, v{V_PHI+i}')
    extra += stats_t(V_RAW, V_A, V_RAW + 8, None)
    for tb in range(4): extra.append(f'v_rcp_f32 v{V_A+tb}, v{V_A+tb}')
    for tb in range(4):
        for i in range(4): extra.append(f'v_accvgpr_write_b32 a{NMB+4*tb+i}, v{V_RAW+8+tb}')
    TW = 27
    def cs_pack(C0, n):
        o = [f'v_accvgpr_read_b32 v{C0+i}, a{CSP+4*i}' for i in range(n)]
        o += [f'v_cvt_pk_bf16_f32 v{C0+4+i}, v{C0+i}, v{C0+i}' for i in range(n)]
        o += [f'v_and_b32 v{C0+4+i}, 0xffff0000, v{C0+4+i}' for i in range(n)]
        o += [f'v_sub_f32 v{C0+4+i}, v{C0+i}, v{C0+4+i}' for i in range(n)]
        o += [f'v_cvt_pk_bf16_f32 v{C0+4+i}, v{C0+i}, v{C0+4+i}' for i in range(n)]
        return o
    early = []
    if L == 0:
        early += cs_pack(V_RAW + 24, 2)
    kw = []
    for i in range(KEEP // 2):
        kw.append(([f's_add_u32 s31, s95, {NB2}', 's_and_b32 s31, s31, 15'] + ([] if L == 0 else [f's_mov_b32 s31, {NB2}']) + [f's_mul_i32 s31, s31, {64*LDW}',
                   's_lshl_b32 s53, s20, 11', f's_add_u32 s53, s53, {R2}'] if i == 0 else []) +
                  [f's_add_u32 m0, s53, {i*8192}', f'buffer_load_dwordx4 v{V_WOFF}, s[12:15], s31 offen lds'])
        kw.append([f'buffer_load_dwordx4 v{V_WOFF+1}, s[12:15], s31 offen offset:1024 lds', f's_add_u32 s31, s31, {64*LDW}',
                   f's_cmp_eq_u32 s31, {D*LDW}', 's_cselect_b32 s31, 0, s31'])
    SENT = 252
    sent = [[f'v_mov_b32 v{SENT+i}, -1' for i in range(4)] + ['v_lshlrev_b32 v29, 4, v2', f'buffer_store_dwordx2 v[{SENT}:{SENT+1}], v29, s[24:27], s44 offen sc1']]
    bodies = []
    for u in range(NBODY):
        B = []
        for s in range(2):
            t = 2 * u + s; p = s
            last = (t == NSTEP - 1)
            ms = [mfma(2 + b, b, tb, p, '0' if t == 0 else None, t) for b in range(4) for tb in range(4)]
            pre = []; bar = []; rd = []
            if not last:
                if s == 1:
                    pre = [f's_add_u32 s36, s36, {STAGE}', f's_cmp_eq_u32 s36, {STAGE*NS}', 's_cselect_b32 s42, s51, s50',
                           's_cselect_b32 s36, 0, s36', f'v_add_u32 v{V_XRD}, s42, v{V_XRD}'] + \
                          [f'v_add_u32 v{V_WRD+i}, s42, v{V_WRD+i}' for i in range(2)]
                    tags = {f'P1T{u+1}'} | ({'small'} if t == TW else set())
                    if L == 0 and t == 13: tags |= {'tag', 'hand'}
                    if L == 0 and t == 23: tags |= {'flg'}
                    if L == 0 and t == 3: tags |= {'xr'}
                    n = q.wait_for(tags)
                    bar = [f's_waitcnt vmcnt({n})', 's_barrier']
                    if L == 0 and t == 3 and opts.get('xlate', 1): bar = [bar[0]] + xs + [bar[1]]
                    if L == 0 and t == 13:
                        bar += m.tag_check(26, 27)
                        bar += m.signal(0, E_S, f's_mov_b32 s18, s{S_MT}\ns_mov_b32 s19, s{S_CI}')
                        bar += m.signal(0, E_CSQ, f's_mov_b32 s18, s{S_CI}\ns_mov_b32 s19, s{S_MT}')
                    if L == 0 and t == 23:
                        bar += m.soft_check(49, 28, 26) + m.soft_check(52, 28, 27)
                else:
                    pre = [f'v_add_u32 v{V_XRD+1}, s42, v{V_XRD+1}']
                rd = reads(p ^ 1, s ^ 1, 4, t + 1)
            dm = []
            for ins, tag, _ in take(t, opts.get('q', 6) if t < 10 else 4): dm.append(ins); q.issue(tag)
            if L == 0 and t == 5: dm.append(m.tag_load(26, 27)); q.issue('tag')
            if L == 0 and opts.get('gut', 0) and s == 0 and u >= 2:
                dm.append(['buffer_load_dword a65, v11, s[4:7], s37 offen', 's_add_u32 s37, s37, 512']); q.issue('touch')
            if L == 0 and t == 17:
                dm.append(m.soft_load(49, 28, 26)); q.issue('flg'); dm.append(m.soft_load(52, 28, 27)); q.issue('flg')
            if t >= 27 and kw:
                for ins in kw[:4]: dm.append(ins); q.issue('KW')
                kw = kw[4:]
            if t == 27 and sent:
                dm.append(sent.pop(0)); q.issue('sent')
            if small and t >= (17 if L == 0 else 23):
                k = max(0, (7 if L == 0 else 3) - len(dm))
                if L == 0 and t < 23: k = min(k, len(small) - 12)
                for ins in small[:k]: dm.append(ins); q.issue('small')
                small = small[k:]
            if t == TW: assert not small
            ex = []
            if t >= TW and extra:
                k = (len(extra) + NSTEP - 1 - t) // (NSTEP - t)
                ex = extra[:k]; extra = extra[k:]
            if early and t == (2 << G1S[0]) + 1:
                k = len(early)
                ex = early[:k]; early = early[k:]
            if opts.get('nodma') and 8 <= t < 21: dm = []
            if opts.get('noread'): rd = []
            if opts.get('nobar'): bar = bar[:1]
            step = build_step(ms, needs, 12, pre, bar, rd, dm, ex, nb=(3 if s == 1 else 1))
            if L == 0 and t < (2 << G1S[0]):
                l1 = m.lab('cq'); le = m.lab('cqe')
                step += [f's_cmp_lg_u32 s31, {u}', f's_cbranch_scc1 {le}', 's_cmp_lg_u32 s28, 0', f's_cbranch_scc1 {l1}']
                for wm in range(2):
                    for i in range(2):
                        d = CSP + 4*i; b = 2*wm + i
                        step.append(f'v_mfma_f32_16x16x32_bf16 a[{d}:{d+3}], a[{ONES}:{ONES+3}], v[{wfrag(p,b)}:{wfrag(p,b)+3}], ' + ('0' if s == 0 else f'a[{d}:{d+3}]'))
                    if wm == 0: step += [f's_branch {le}', f'{l1}:']
                step += [f'{le}:']
            if L == 0 and t == (2 << G1S[0]) + 1:
                l1 = m.lab('cw'); le = m.lab('cwe')
                A0 = V_RAW + 16; C0 = V_RAW + 24
                step += ['s_mov_b32 exec_lo, 0x11111111', 's_mov_b32 exec_hi, 0x11111111']
                for r in range(2): step.append(f'buffer_store_dwordx2 v[{A0+2*r}:{A0+2*r+1}], v17, s[24:27], s48 offen offset:{r*16} sc1')
                step += ['s_mov_b64 exec, 0xffff', 's_cmp_lg_u32 s28, 0', f's_cbranch_scc1 {l1}']
                for wm in range(2):
                    for i in range(2):
                        b = 2 + 2*wm + i
                        step.append(f'buffer_store_dword v{C0+4+i}, v16, s[24:27], s{[62,63,55][b//2]} offen offset:{(b%2)*256} sc1')
                    if wm == 0: step += [f's_branch {le}', f'{l1}:']
                step += [f'{le}:', 's_mov_b64 exec, -1']
                for i in range(4): q.issue('hand')
            B += step
        bodies.append(B)
    assert not flat and not extra and not small and not early and not sent, (len(flat), len(extra), len(small))
    if opts.get('lst'):
        cuts = opts['lst']
        prev = 0
        for c in cuts + [NBODY]:
            e.ext(loopify(bodies[prev:c], m.lab('p1L'), 38)); prev = c
            if c < NBODY:
                sv = list(q.q); e('s_waitcnt lgkmcnt(0)'); m.stamp(f'p1 b{c}'); q.q = sv
    else:
        e.ext(loopify(bodies, m.lab('p1L'), 38, m.opts.get('unroll', 1)))
    def corr(blks):
        return [f'v_mfma_f32_16x16x32_bf16 v[{acc(b,tb)}:{acc(b,tb)+3}], a[{CSA+4*b}:{CSA+4*b+3}], a[{NMB+4*tb}:{NMB+4*tb+3}], v[{acc(b,tb)}:{acc(b,tb)+3}]'
                for b in blks for tb in range(4)]
    e.ext(corr(range(2, 6)))
    e(f's_waitcnt vmcnt({q.wait_for({"KW"})})')
    e('s_barrier')
    m.stamp('p1 epi')
    e(f'''
    s_mul_i32 s30, s95, {128 if L == 0 else 0}
    s_mul_i32 s32, s95, {64*LDW if L == 0 else 0}
    v_mov_b32 v23, v24
    s_and_b32 s31, s{S_MT}, {(1 << G1S[0]) - 1}
    s_mov_b32 s34, {QB}
    s_mov_b32 s35, {QB}
    s_mov_b32 s36, {QB}
    s_mov_b32 s42, 0
    s_mov_b32 s50, {QST}
    s_mov_b32 s51, {(QWRAP - (163840 - QST)) & 0xffffffff:#x}
    s_lshl_b32 s18, s28, 13
    s_add_u32 s18, s18, {QB}
    ''')
    (x_read_addr if L == 0 else x_read_addr_f)(e, V_XRD, 18)
    e(f's_mov_b32 s18, {XT + QB}\ns_lshl_b32 s19, s29, 2')
    w_read_addr(e, V_WRD, [0, 1], 18, 19)
    qflat = []
    for u in range(NB2):
        qflat += [(ins, f'Q{u}', 2*(u - QNS) + 1) for ins in dma_x(L, 'b') + dma_w(L, 'b')]
    def weave(lines, every, n):
        k = 0
        for i, l in enumerate(lines):
            e(l)
            if i % every == every - 1 and k < n:
                ins, tag, _ = qflat.pop(0); e.ext(ins); q.issue(tag); k += 1
        while k < n:
            ins, tag, _ = qflat.pop(0); e.ext(ins); q.issue(tag); k += 1
    def capture(fn):
        keep = m.e; cap = Asm(); m.e = cap
        fn()
        m.e = keep
        return cap.L
    e(f's_mov_b32 s44, {f2u(LOG2E):#x}')
    e(f's_mov_b32 s45, {f2u(LOG2E):#x}')
    def bc(r): return (f'v[{r}:{r+1}]', 0) if r % 2 == 0 else (f'v[{r-1}:{r}]', 1)
    for i in range(4): e(f'v_mov_b32 v{24+i}, 0x3f803f80')
    PB = 128; PP = 144; MX = 176; EP = 192; PK = 208
    def feat(mi, part=3):
      e = m.e
      if part & 1:
        for tb in range(4):
            ar, sl = bc(V_A + tb)
            for db in range(2):
                a = acc(2*mi + db, tb)
                for h in range(2):
                    e(f'v_pk_mul_f32 v[{a+2*h}:{a+2*h+1}], v[{a+2*h}:{a+2*h+1}], {ar} op_sel:[0,{sl}] op_sel_hi:[1,{sl}]')
        for tb in range(4):
            for db in range(2):
                a = acc(2*mi + db, tb)
                for h in range(2):
                    e(f'v_cvt_pk_bf16_f32 v{PB+tb*4+db*2+h}, v{a+2*h}, v{a+2*h+1}')
        for tb in range(4):
            for fb in range(2):
                p = PP + tb*8 + fb*4
                e(f'v_mfma_f32_16x16x32_bf16 v[{p}:{p+3}], v[{V_PHI+fb*4}:{V_PHI+fb*4+3}], v[{PB+tb*4}:{PB+tb*4+3}], 0')
        for tb in range(4):
            p = PP + tb*8; mx = MX + 2*tb
            e(f'v_max3_f32 v{mx}, v{p}, v{p+1}, v{p+2}')
            e(f'v_max3_f32 v{mx+1}, -v{p}, -v{p+1}, -v{p+2}')
        for k in (3, 5):
            for tb in range(4):
                p = PP + tb*8; mx = MX + 2*tb
                e(f'v_max3_f32 v{mx}, v{mx}, v{p+k}, v{p+k+1}')
                e(f'v_max3_f32 v{mx+1}, v{mx+1}, -v{p+k}, -v{p+k+1}')
        for tb in range(4):
            p = PP + tb*8; mx = MX + 2*tb
            e(f'v_max_f32 v{mx}, v{mx}, v{p+7}')
            e(f'v_max_f32_e64 v{mx+1}, v{mx+1}, -v{p+7}')
        for tb in range(4): e(f'v_permlane32_swap_b32 v{MX+2*tb}, v{MX+2*tb+1}')
        for tb in range(4): e(f'v_max_f32 v{MX+2*tb}, v{MX+2*tb}, v{MX+2*tb+1}')
        for pr in range(2): e(f'v_permlane16_swap_b32 v{MX+4*pr}, v{MX+4*pr+2}')
        for pr in range(2): e(f'v_max_f32 v{MX+4*pr}, v{MX+4*pr}, v{MX+4*pr+2}')
        for pr in range(2): e(f'v_mul_f32 v{MX+4*pr}, s44, v{MX+4*pr}')
        for pr in range(2): e(f'v_mov_b32 v{MX+4*pr+2}, v{MX+4*pr}')
        for pr in range(2): e(f'v_permlane16_swap_b32 v{MX+4*pr}, v{MX+4*pr+2}')
        for tb in range(4): e(f'v_mov_b32 v{MX+2*tb+1}, v{MX+2*tb}')
        for tb in range(4): e(f'v_permlane32_swap_b32 v{MX+2*tb}, v{MX+2*tb+1}')
      if part & 2:
        for tb in range(4):
            p = PP + tb*8; mx = MX + 2*tb
            for i in range(4):
                e(f'v_pk_fma_f32 v[{EP+2*i}:{EP+2*i+1}], v[{p+2*i}:{p+2*i+1}], s[44:45], v[{mx}:{mx+1}] op_sel:[0,0,0] op_sel_hi:[1,1,0] neg_lo:[0,0,1] neg_hi:[0,0,1]')
            for i in range(4):
                e(f'v_pk_fma_f32 v[{EP+8+2*i}:{EP+8+2*i+1}], v[{p+2*i}:{p+2*i+1}], s[44:45], v[{mx}:{mx+1}] op_sel:[0,0,1] op_sel_hi:[1,1,1] neg_lo:[1,0,1] neg_hi:[1,0,1]')
            for i in range(16): e(f'v_exp_f32 v{EP+i}, v{EP+i}')
            for i in range(8): e(f'v_cvt_pk_bf16_f32 v{PK+tb*8+i}, v{EP+2*i}, v{EP+2*i+1}')
    weave(capture(lambda: feat(1, 1)), 8, 12)
    if opts.get('fine'): m.stamp('p1 k.a')
    e(f'v_subrev_u32 v0, {QB + XT - R2}, v{V_WRD}\nv_subrev_u32 v1, {QB + XT - R2}, v{V_WRD+1}')
    def kread(i):
        return [f'ds_read_b64_tr_b16 a[{WK+(i&1)*8+b*4+2*h}:{WK+(i&1)*8+b*4+2*h+1}], v{b} offset:{(i//2)*8192 + (32*(i&1)+4*h)*128}'
                for b in range(2) for h in range(2)]
    def kmfma(j):
        i = j // 8; b = (j % 8) // 4; tb = j % 4; a = acc(b, tb)
        o = ['s_waitcnt lgkmcnt(0)'] if j % 8 == 0 else []
        o.append(f'v_mfma_f32_16x16x32_bf16 v[{a}:{a+3}], a[{WK+(i&1)*8+b*4}:{WK+(i&1)*8+b*4+3}], {xr(0, tb, TK + i)}, ' + ('0' if i == 0 else f'v[{a}:{a+3}]'))
        if j % 8 < 4 and i + 1 < KEEP: o.append(kread(i + 1)[j % 8])
        return o
    e.ext(kread(0))
    j = 0; ncv = 0
    for l in capture(lambda: feat(1, 2)):
        if l.startswith('v_exp'): e.ext(kmfma(j)); j += 1
        if l.startswith('v_cvt'):
            if ncv % 2 == 0: e.ext(kmfma(j)); j += 1
            ncv += 1
        e(l)
    assert j == 8 * KEEP
    e('s_barrier')
    if opts.get('fine'): m.stamp('p1 k.b')
    weave([], 1, 6)
    SS = 144
    for tb in range(4):
        for sg in range(2):
            r = SS + (tb*2+sg)*4
            e(f'v_mfma_f32_16x16x32_bf16 v[{r}:{r+3}], v[24:27], v[{PK+tb*8+sg*4}:{PK+tb*8+sg*4+3}], 0')
    for tb in range(4):
        for sg in range(2):
            for fb in range(2):
                r = PK + tb*8 + sg*4 + fb*2
                e(f'ds_write_b64 v{V_LW}, v[{r}:{r+1}] offset:{tb*16*ROWB + sg*64 + fb*32}')
    for tb in range(4):
        for sg in range(2):
            r = SS + (tb*2+sg)*4
            e(f'v_rcp_f32 v{r}, v{r}')
    for tb in range(4):
        for sg in range(2):
            r = SS + (tb*2+sg)*4
            e(f'v_mul_f32 v{r+2}, v{r}, v{V_A+tb}')
            e(f'v_cvt_pk_bf16_f32 v{r}, v{r}, 0')
            e(f'v_mov_b32 v{r+1}, 0')
    for tb in range(4):
        for sg in range(2):
            r = SS + (tb*2+sg)*4
            t = 176 + sg*8
            for db in range(2):
                a = acc(4 + db, tb)
                for h in range(2):
                    e(f'v_pk_mul_f32 v[{t+db*4+2*h}:{t+db*4+2*h+1}], v[{a+2*h}:{a+2*h+1}], v[{r+2}:{r+3}] op_sel:[0,0] op_sel_hi:[1,0]')
            o = 192 + (tb % 2) * 8 + sg * 4
            for i in range(4): e(f'v_cvt_pk_bf16_f32 v{o+i}, v{t+2*i}, v{t+2*i+1}')
            for db in range(2):
                e(f'ds_write_b64 v{V_LW}, v[{o+2*db}:{o+2*db+1}] offset:{tb*16*ROWB + 128 + sg*64 + db*32}')
            e(f'ds_write_b64 v{V_LW}, v[{r}:{r+1}] offset:{tb*16*ROWB + 256 + sg*32}')
    if opts.get('fine'): m.stamp('p1 k.lds')
    e('s_waitcnt lgkmcnt(0)')
    e('s_barrier')
    if opts.get('fine'): m.stamp('p1 k.bar')
    e(f's_lshl_b32 s18, s28, 6')
    e(f'v_add_u32 v28, s18, v{V_LR}')
    e(f's_lshl_b32 s18, s28, 5')
    e(f'v_add_u32 v29, s18, v{V_LR}')
    FA = 128
    trs = []
    for ks in range(4):
        f = FA + ks * 20
        for h in range(2):
            ro = (ks*32 + h*16) * ROWB
            trs += [f'ds_read_b64_tr_b16 v[{f+fb*4+2*h}:{f+fb*4+2*h+1}], v28 offset:{ro + fb*32}' for fb in range(2)]
            trs += [f'ds_read_b64_tr_b16 v[{f+8+db*4+2*h}:{f+8+db*4+2*h+1}], v28 offset:{ro + 128 + db*32}' for db in range(2)]
            trs += [f'ds_read_b64_tr_b16 v[{f+16+2*h}:{f+16+2*h+1}], v29 offset:{ro + 256}']
    e.ext(trs)
    KV = acc(2, 0)
    kvm = []
    for ks in range(4):
        f = FA + ks * 20
        for fb in range(2):
            for bk in range(3):
                d = KV + (fb*3+bk)*4
                kvm.append(f'v_mfma_f32_16x16x32_bf16 v[{d}:{d+3}], v[{f+fb*4}:{f+fb*4+3}], v[{f+8+bk*4}:{f+8+bk*4+3}], ' + ('0' if ks == 0 else f'v[{d}:{d+3}]'))
    e('s_waitcnt lgkmcnt(15)'); e.ext(kvm[:6])
    e('s_waitcnt lgkmcnt(10)'); e.ext(kvm[6:12])
    e(f's_waitcnt vmcnt({q.wait_for({"Q0"})}) lgkmcnt(0)'); e('s_barrier')
    r0 = reads(0, 0, 2)
    weave([x for i, mm in enumerate(kvm[12:]) for x in ([mm] + r0[i:i+1])], 2, opts.get('qpre', 6))
    for fb in range(2):
        for db in range(2):
            d = KV + (fb*3+db)*4
            e(f'buffer_store_dwordx4 v[{d}:{d+3}], v{V_KV}, s[24:27], 0 offen offset:{(fb*2+db)*1024} sc1')
    e('s_mov_b32 exec_lo, 0x00010001')
    e('s_mov_b32 exec_hi, 0x00010001')
    for fb in range(2):
        d = KV + (fb*3+2)*4
        e(f'buffer_store_dwordx4 v[{d}:{d+3}], v{V_KZ}, s[24:27], 0 offen offset:{fb*64} sc1')
    e('s_mov_b64 exec, -1')
    for i in range(6): q.issue('kvst')
    m.stamp('p1 kvst')
    R0 = 64
    HSET, HOPL, HRED, HST = hop_code(m, L, R0)
    e.ext(HSET)
    e(f's_lshl_b32 s49, s{S_CI}, 8\ns_add_u32 s49, s49, {flag_off(L, E_A1, 0)}\ns_lshl_b32 s52, s{S_CI}, 8\ns_add_u32 s52, s52, {flag_off(0, E_A2, 0)}\nv_lshlrev_b32 v28, 2, v30')
    T_SIG, T_LD, T_CHK, T_RED = opts.get('tq', (5, 9, 13, 17))
    bodies = []
    for u in range(NB2):
        B = []
        for s in range(2):
            t = 2 * u + s; p = s
            last = (t == 2 * NB2 - 1)
            ms = [mfma(b, b, tb, p) for b in range(2) for tb in range(4)]
            pre = []; bar = []; rd = []; ex = []
            if not last:
                if s == 1:
                    pre = [f'v_add_u32 v{V_XRD}, s42, v{V_XRD}'] + [f'v_add_u32 v{V_WRD+i}, s42, v{V_WRD+i}' for i in range(2)]
                    tags = {f'Q{u+1}'}
                    if t == T_SIG: tags |= {'kvst'}
                    if t == 11: tags |= {'hq'}
                    if t == T_CHK: tags |= {'flg'}
                    if t == 19: tags |= {'flg2'}
                    n = q.wait_for(tags)
                    bar = [f's_waitcnt vmcnt({n})', 's_barrier']
                    if t == T_SIG:
                        bar += m.signal(L, E_A1, f's_mov_b32 s18, s{S_CI}\ns_mov_b32 s19, s{S_MT}')
                    if t == 11 and L == 0: bar += m.signal(0, E_A2, f's_mov_b32 s18, s{S_CI}\ns_mov_b32 s19, s{S_MT}')
                    if t == T_CHK:
                        bar += m.soft_check(49, 28, 26)
                    if t == 19 and L == 0: bar += m.soft_check(52, 28, 27)
                else:
                    pre = [f'v_add_u32 v{V_XRD+1}, s42, v{V_XRD+1}']
                    ex = [f's_add_u32 s36, s36, {QST}', 's_cmp_eq_u32 s36, 163840', 's_cselect_b32 s42, s51, s50', f's_cselect_b32 s36, {QWRAP}, s36']
                rd = reads(p ^ 1, s ^ 1, 2)
            dm = []
            k = 0
            if t == T_RED: nhop = q.wait_for({'hop'})
            while qflat and k < (6 if t < 2 else 3) and qflat[0][2] <= t:
                ins, tag, _ = qflat.pop(0); dm.append(ins); q.issue(tag); k += 1
            if t == T_LD: dm.append(m.soft_load(49, 28, 26)); q.issue('flg')
            if t == T_CHK:
                for ins in HOPL: dm.append(ins); q.issue('hop')
            head = []
            if t == T_RED: head = [f's_waitcnt vmcnt({nhop})']
            if t in (T_RED, T_RED + 1): ex = ex + (HRED[:len(HRED)//2] if t == T_RED else HRED[len(HRED)//2:])
            if L == 0 and t == 15: dm.append(m.soft_load(52, 28, 27)); q.issue('flg2')
            if L == 0 and t == 19:
                for b in range(2): dm.append(csld(b, 23)); q.issue('csq')
            if L == 0 and opts.get('gut', 0) and s == 0 and u < 14:
                dm.append(['buffer_load_dword a65, v11, s[4:7], s37 offen', 's_add_u32 s37, s37, 512']); q.issue('touch')
            if L == 0 and t == 20:
                dm.append([f's_mov_b32 s4, s{P_WO}', f's_mov_b32 s5, s{P_WO+1}', f's_mov_b32 s6, {D*D*2}', 's_mov_b32 s7, 0x00020000', 's_lshl_b32 s39, s2, 2',
                           's_add_u32 s39, s39, s20', 's_lshl_b32 s39, s39, 11', 'v_lshlrev_b32 v0, 7, v30', 'buffer_load_dword a64, v0, s[4:7], s39 offen']); q.issue('touch')
            if L == 0 and t == (2 << G1S[0]) + 1: ex = ex + cs_pack(V_RAW + 24, 1)
            step = head + build_step(ms, needs[:8], 8, pre, bar, rd, dm, ex, nb=(2 if s == 1 else 1))
            if t == T_RED + 1: step += HST; q.issue('hst')
            if L == 0 and t < (2 << G1S[0]):
                l1 = m.lab('cq'); le = m.lab('cqe')
                step += [f's_cmp_lg_u32 s31, {u}', f's_cbranch_scc1 {le}', 's_cmp_lg_u32 s28, 0', f's_cbranch_scc1 {l1}']
                for wm in range(2):
                    step.append(f'v_mfma_f32_16x16x32_bf16 a[{CSP}:{CSP+3}], a[{ONES}:{ONES+3}], v[{wfrag(p,wm)}:{wfrag(p,wm)+3}], ' + ('0' if s == 0 else f'a[{CSP}:{CSP+3}]'))
                    if wm == 0: step += [f's_branch {le}', f'{l1}:']
                step += [f'{le}:']
            if L == 0 and t == (2 << G1S[0]) + 1:
                step += ['s_lshl_b32 s18, s28, 8', 's_add_u32 s18, s18, s62', 's_mov_b64 exec, 0xffff',
                         f'buffer_store_dword v{V_RAW+28}, v16, s[24:27], s18 offen sc1', 's_mov_b64 exec, -1']
                q.issue('hq')
            B += step
        bodies.append(B)
    assert not qflat
    if opts.get('qlst'):
        for i, bb in enumerate(bodies):
            e.ext(bb)
            if i % 2 == 1:
                sv = list(q.q); e('s_waitcnt lgkmcnt(0)'); m.stamp(f'p1 q{i+1}'); q.q = sv
    else:
        e.ext(loopify(bodies, m.lab('p1Q'), 38, 1))
    if L == 0: e(f's_waitcnt vmcnt({q.wait_for({"csq"})})')
    e.ext(corr(range(2)))
    e('s_barrier')
    m.stamp('p1 qdone')
    pre = Pre(m, next_pre)
    pre.emit_setup()
    e(f's_lshl_b32 s18, s2, 2\ns_add_u32 s18, s18, s20\ns_lshl_b32 s18, s18, 12\ns_add_u32 s18, s18, {reg(L, R_PX)}\nv_lshlrev_b32 v29, 4, v2')
    for k in range(4): e(f'buffer_store_dwordx4 v[{SENT}:{SENT+3}], v29, s[24:27], s18 offen offset:{k*1024} sc1'); q.issue('sent')
    KA = 100
    e(f's_mul_i32 s48, s54, 6144\ns_add_u32 s48, s48, {reg(L, R_KVR)}\ns_add_u32 s49, s48, 4096')
    kal = [f'buffer_load_dwordx4 v[{KA+4*i}:{KA+4*i+3}], v29, s[24:27], s{48 + i//4} offen offset:{(i%4)*1024} sc1' for i in range(6)]
    fq = capture(lambda: feat(0))
    cut = len(fq) - opts.get('kal', 70)
    pre.weave(fq[:cut], 10)
    e.ext(kal)
    e.ext(fq[cut:])
    m.stamp('p1 featq')
    pl = m.lab('kpl'); ok = m.lab('kok')
    e(f's_mov_b32 s44, {f2u(1e-6):#x}\ns_mov_b32 s39, {1 << 16}')
    for tb in range(4): e(f's_mov_b32 s{60+tb}, {tb*16*2048}')
    e(f'{pl}:')
    e('s_waitcnt vmcnt(0)'); q.clear()
    e(f'v_max3_u32 v3, v{KA}, v{KA+1}, v{KA+2}')
    for k in range(KA+3, KA+23, 2): e(f'v_max3_u32 v3, v3, v{k}, v{k+1}')
    e(f'''
    v_max_u32 v3, v3, v{KA+23}
    v_cmp_eq_u32 vcc, -1, v3
    s_nop 1
    s_cmp_eq_u64 vcc, 0
    s_cbranch_scc1 {ok}
    ''')
    e.ext(kal)
    e(f'''
    s_sub_u32 s39, s39, 1
    s_cmp_lg_u32 s39, 0
    s_cbranch_scc1 {pl}
    s_waitcnt vmcnt(0)
    {ok}:
    ''')
    m.stamp('p1 gotkv')
    o_compute(e, range(4), KA, lambda tb: PK + tb*8, lambda tb: [32, 56, 128, 176][tb], lambda tb: 160 + tb*4)
    for tb in range(4):
        e(f'buffer_store_dwordx4 v[{160+tb*4}:{163+tb*4}], v{V_OS}, s[24:27], s{60+tb} offen sc1')
    if opts.get('fine'): m.stamp('p1 o')
    m.publish(L, E_B, f's_mov_b32 s18, s{S_MT}\ns_mov_b32 s19, s{S_CI}')
    m.stamp('p1 pubB')

def hop_code(m, L, R0):
    ST = 32 * KVP_HEAD
    setup = [f's_lshr_b32 s18, s{S_MT}, 3', f's_lshl_b32 s19, s{S_CI}, 1', 's_add_u32 s18, s18, s19', f's_mul_i32 s60, s18, {KVP_HEAD}',
             f's_and_b32 s18, s{S_MT}, 7', 's_lshl_b32 s18, s18, 10', 's_add_u32 s60, s60, s18', 's_lshl_b32 s18, s20, 8', 's_add_u32 s60, s60, s18',
             f's_add_u32 s60, s60, {reg(L, R_KVP)}',
             f's_bfe_u32 s18, s{S_MT}, 0x10002', 's_add_u32 s18, s18, s19', f's_mul_i32 s61, s18, {KVP_HEAD}', f's_and_b32 s18, s{S_MT}, 3', 's_lshl_b32 s18, s18, 6',
             's_add_u32 s61, s61, s18', f's_add_u32 s61, s61, {reg(L, R_KVP) + 8192}',
             f's_mov_b32 s18, {ST}', 'v_mul_lo_u32 v25, v31, s18', 'v_lshl_add_u32 v25, v30, 4, v25', 'v_mul_lo_u32 v29, v30, s18', 'v_lshl_add_u32 v29, v31, 4, v29']
    A = [[f'buffer_load_dwordx4 v[{R0+4*i}:{R0+4*i+3}], v25, s[24:27], s60 offen sc1'] + ([f's_add_u32 s60, s60, {4*ST}'] if i < 3 else []) for i in range(4)]
    A.append([f'buffer_load_dwordx4 v[{R0+16}:{R0+19}], v29, s[24:27], s61 offen sc1'])
    Z = R0 + 16; T = R0 + 20
    o = []
    for (d, x) in ((0, 4), (8, 12), (0, 8)):
        o += [f'v_add_f32 v{R0+d+h}, v{R0+d+h}, v{R0+x+h}' for h in range(4)]
    for ror in (8, 4, 2, 1):
        o += [f'v_add_f32_dpp v{Z+h}, v{Z+h}, v{Z+h} row_ror:{ror} row_mask:0xf bank_mask:0xf' for h in range(4)]
    for sw in ('v_permlane32_swap_b32', 'v_permlane16_swap_b32'):
        o += [f'v_mov_b32 v{T+h}, v{R0+h}' for h in range(4)]
        o += [f'{sw} v{R0+h}, v{T+h}' for h in range(4)]
        o += [f'v_add_f32 v{R0+h}, v{R0+h}, v{T+h}' for h in range(4)]
    o += [f'v_cvt_pk_bf16_f32 v{R0+4}, v{R0}, v{R0+1}', f'v_cvt_pk_bf16_f32 v{R0+5}, v{R0+2}, v{R0+3}',
          f'v_cvt_pk_bf16_f32 v{R0+6}, v{Z}, v{Z+1}', f'v_cvt_pk_bf16_f32 v{R0+7}, v{Z+2}, v{Z+3}',
          'v_and_b32 v3, 3, v2', 'v_cmp_eq_u32 vcc, 0, v3', 'v_cmp_eq_u32 s[90:91], 1, v3', 'v_lshlrev_b32 v1, 4, v2', 'v_cndmask_b32 v3, 0, v24, s[90:91]',
          f'v_cndmask_b32 v{R0+6}, v3, v{R0+6}, vcc', f'v_cndmask_b32 v{R0+7}, v3, v{R0+7}, vcc', 's_lshl_b32 s18, s20, 8', 's_add_u32 s18, s18, s92']
    sk = m.lab('hz')
    st = ['s_mov_b64 exec, 0xffff', f'buffer_store_dwordx2 v[{R0+4}:{R0+5}], v1, s[24:27], s18 offen sc1', 's_mov_b64 exec, -1',
          f's_lshr_b32 s18, s{S_MT}, 3', 's_lshl_b32 s18, s18, 2', 's_add_u32 s18, s18, s20', 's_cmp_lg_u32 s18, 1', f's_cbranch_scc1 {sk}',
          f'buffer_store_dwordx2 v[{R0+6}:{R0+7}], v1, s[24:27], s93 offen sc1', f'{sk}:']
    return setup, A, o, st

def o_compute(e, tbs, KA, EB, NN, OUT):
    for tb in tbs:
        for sg in range(2):
            for bk in range(3):
                d = NN(tb) + (sg*3+bk)*4; a = KA + (sg*3+bk)*4; b = EB(tb) + sg*4
                e(f'v_mfma_f32_16x16x32_bf16 v[{d}:{d+3}], v[{a}:{a+3}], v[{b}:{b+3}], 0')
    for tb in tbs:
        for sg in range(2):
            z = NN(tb) + (sg*3+2)*4
            e(f'v_rcp_f32 v{z+1}, v{z+1}')
    for tb in tbs:
        zp = NN(tb) + 8; zm = NN(tb) + 20
        e(f'v_fma_f32 v{zp+2}, v{zp}, v{zp+1}, s44')
        e(f'v_fma_f32 v{zp+2}, v{zm}, v{zm+1}, v{zp+2}')
    for tb in tbs:
        zp = NN(tb) + 8
        e(f'v_rcp_f32 v{zp+2}, v{zp+2}')
    for tb in tbs:
        zp = NN(tb) + 8; zm = NN(tb) + 20
        e(f'v_mul_f32 v{zp}, v{zp+1}, v{zp+2}')
        e(f'v_mul_f32 v{zm}, v{zm+1}, v{zp+2}')
    for tb in tbs:
        n = NN(tb); zp = n + 8; zm = n + 20
        for i in range(4):
            e(f'v_pk_mul_f32 v[{n+2*i}:{n+2*i+1}], v[{n+2*i}:{n+2*i+1}], v[{zp}:{zp+1}] op_sel:[0,0] op_sel_hi:[1,0]')
        for i in range(4):
            e(f'v_pk_fma_f32 v[{n+2*i}:{n+2*i+1}], v[{n+12+2*i}:{n+12+2*i+1}], v[{zm}:{zm+1}], v[{n+2*i}:{n+2*i+1}] op_sel:[0,0,0] op_sel_hi:[1,0,1]')
    for tb in tbs:
        n = NN(tb); o = OUT(tb)
        for i in range(4): e(f'v_cvt_pk_bf16_f32 v{o+i}, v{n+2*i}, v{n+2*i+1}')
    for tb in tbs:
        o = OUT(tb)
        e(f'v_permlane16_swap_b32 v{o}, v{o+2}')
        e(f'v_permlane16_swap_b32 v{o+1}, v{o+3}')
```

```python
import sys
import build, p1 as p1old, p1d, p1e, pd, p3 as p3old, p3d, ps
from mega import *
from common import *
LDS = 163840
KN = 'interleave_layers__linear_kernel_hedgehog__geglu_ffn__prompt_kernel'
def make(opts=None, info=None):
    opts = opts or {}
    import common
    common.SHARE = opts.get('share', True)
    common.RPACE = opts.get('rpace', 1.6); common.RMARGIN = opts.get('rmargin', 3); common.COARSE = opts.get('coarse', 4)
    p1 = (p1e if opts.get('keepx', 1) else p1d) if opts.get('deferq', 1) else p1old
    p3 = p3d if opts.get('newp3') else p3old
    pd.OUT_AUX[0] = opts.get('outaux', ' sc1'); pd.OUT_LDS[0] = opts.get('outlds', 1)
    m = M(KN, opts)
    m.prologue()
    m.stamp('start')
    p1d.G1S[0] = p1e.G1S[0] = opts.get('g1s', 1)
    if p1 is not p1old and not opts.get('p1', {}).get('xlate', 1): p1.first_loads(m)
    p1.pre_w(m, 0)
    for L in range(2):
        xin = ('ptr', P_X) if L == 0 else ('ws', reg(0, R_X2))
        p1.run(m, L, lambda: pd.pre_w(m, 'p2', 1024, P_WO))
        pd.run(m, 'p2', 1024, reg(L, R_O), xin, ('ws', reg(L, R_X1)), reg(L, R_STF),
               lambda: m.wait(L, E_B, f's_mov_b32 s18, s{S_MT}', 16),
               lambda pre: m.publish(L, E_C, f's_and_b32 s18, s{S_MT}, 14\ns_add_u32 s18, s18, s{S_PAR}\ns_and_b32 s19, s{S_MT}, 1\ns_lshl_b32 s19, s19, 3\ns_and_b32 s39, s{S_CI}, 7\ns_add_u32 s19, s19, s39', pre, opts.get('nb_c', 0)),
               lambda: p3.pre_w(m, L, opts.get('p3pre', 4)), opts.get('p2', {}))
        p3.run(m, L, lambda: ps.pre_w(m, opts.get('p4pre', 5)))
        last = (L == 1)
        ps.run(m, L, ('ws', reg(L, R_X1)), ('ptr', P_OUT) if last else ('ws', reg(0, R_X2)), None if last else reg(1, R_STA),
               lambda: m.wait(L, E_D, f's_and_b32 s18, s{S_MT}, 14\ns_add_u32 s18, s18, s{S_PAR}', 16),
               (lambda pre: None) if last else (lambda pre: m.publish(L, E_E, f's_mov_b32 s18, s{S_MT}\ns_mov_b32 s19, s{S_CI}', pre, opts.get('nb_e', 0))),
               None if last else (lambda: p1.pre_w(m, 1, opts.get('p1pre', 4))), opts.get('p4', {}))
    if info is not None: info['stamps'] = m.stamp_names
    kt = m.finish()
    return build.assemble_file([(KN, 256, 256, LDS)], [kt], single=opts.get('single', False))
if __name__ == '__main__':
    out = sys.argv[1] if len(sys.argv) > 1 else 'interleave_layers__linear_kernel_hedgehog__geglu_ffn__prompt.s'
    opts = eval(sys.argv[2]) if len(sys.argv) > 2 else {}
    open(out, 'w').write(make(opts))
```

```python
from asmlib import *
from common import *

P_X, P_WQKV, P_PHI, P_WO, P_GATE, P_UP, P_DOWN, P_OUT = 64, 66, 68, 70, 74, 76, 78, 80
S_MT, S_CI, S_MT2, S_NT2, S_PAR = 84, 85, 86, 87, 88
SPIN_LIMIT = 1 << 17

class M:
    def __init__(self, name, opts):
        self.e = Asm(); self.name = name; self.opts = opts; self.nl = 0; self.q = DmaQ(); self.nst = 0
        self.stamp_names = []
    def lab(self, s):
        self.nl += 1
        return f'L{s}{self.nl}'
    def prologue(self):
        e = self.e
        e(f'''
        s_cmp_lt_u32 s2, 256
        s_cbranch_scc1 Lgo
        s_endpgm
        Lgo:
        s_load_dwordx16 s[64:79], s[0:1], 0
        s_load_dwordx4 s[80:83], s[0:1], 64
        s_load_dwordx2 s[16:17], s[0:1], 80
        v_lshrrev_b32 v1, 6, v0
        v_and_b32 v2, 63, v0
        v_readfirstlane_b32 s20, v1
        v_and_b32 v30, 15, v2
        v_lshrrev_b32 v31, 4, v2
        s_and_b32 s21, s2, 7
        s_lshr_b32 s22, s2, 3             ; idx
        s_lshr_b32 s23, s21, 1            ; rg
        s_and_b32 s{S_PAR}, s21, 1
        s_lshl_b32 s18, s23, 2
        s_and_b32 s19, s22, 3
        s_add_u32 s{S_MT}, s18, s19
        s_lshl_b32 s18, s{S_PAR}, 3
        s_lshr_b32 s19, s22, 2
        s_add_u32 s{S_CI}, s18, s19
        ''')
        if self.opts.get('map48', 1):
            e(f'''
            s_lshl_b32 s18, s{S_PAR}, 2
            s_and_b32 s19, s22, 3
            s_add_u32 s{S_MT2}, s18, s19
            s_lshl_b32 s18, s23, 3
            s_lshr_b32 s19, s22, 2
            s_add_u32 s{S_NT2}, s18, s19
            ''')
        else:
            e(f'''
        s_lshl_b32 s18, s23, 1
        s_and_b32 s19, s22, 1
        s_add_u32 s{S_MT2}, s18, s19
        s_lshl_b32 s18, s{S_PAR}, 4
        s_lshr_b32 s19, s22, 1
        s_add_u32 s{S_NT2}, s18, s19
            ''')
        e(f'''
        s_mov_b32 s11, 0x00020000
        s_mov_b32 s15, 0x00020000
        s_mov_b32 s26, {WS_SIZE - self.opts.get('ws0', 0)*MB}
        s_mov_b32 s27, 0x00020000
        s_mov_b32 s59, 0x00020000
        s_mov_b32 s46, {f2u(1.0/1024):#x}
        s_mov_b32 s47, {f2u(1e-5):#x}
        s_lshl_b32 s89, s2, 2
        s_add_u32 s89, s89, s20
        s_lshl_b32 s89, s89, 10
        s_add_u32 s89, s89, {WS_STAMP}
        s_waitcnt lgkmcnt(0)
        s_add_u32 s16, s16, {self.opts.get('ws0', 0)*MB}
        s_addc_u32 s17, s17, 0
        s_mov_b32 s24, s16
        s_mov_b32 s25, s17
        ''')
    def stamp(self, nm):
        if not self.opts.get('stamp'): return
        e = self.e
        i = self.nst; self.nst += 1; self.stamp_names.append(nm)
        e('s_memrealtime s[90:91]')
        e('s_memtime s[96:97]')
        e('s_waitcnt lgkmcnt(0)')
        e('v_mov_b32 v0, s90')
        e('v_mov_b32 v1, s96')
        e('v_mov_b32 v3, 0')
        e('s_mov_b64 exec, 1')
        e(f'buffer_store_dwordx2 v[0:1], v3, s[24:27], s89 offen offset:{8*i}')
        e('s_mov_b64 exec, -1')
        self.q.issue('stamp')
    def code_touch(self, dst):
        CT = self.opts.get('ct', 10)
        return [f's_getpc_b64 s[90:91]', 'Lpc:', f's_sub_u32 s90, s90, Lpc-Lgo', 's_subb_u32 s91, s91, 0',
                's_lshr_b32 s18, s2, 3', 's_lshl_b32 s18, s18, 2', 's_add_u32 s18, s18, s20', f's_mul_i32 s18, s18, {CT*128}',
                f'v_min_u32 v1, {CT-1}, v2', 'v_lshlrev_b32 v1, 7, v1', 'v_add_u32 v1, s18, v1', 's_mov_b32 s18, Lend-Lgo', 'v_min_u32 v1, s18, v1',
                f'global_load_dword {dst}, v1, s[90:91]']
    def tlb_touch(self, dst):
        P = 1 << 21
        o = ['v_lshlrev_b32 v1, 21, v2', 's_mov_b32 s7, 0x00020000']
        l = [self.lab('tt') for _ in range(5)]
        o += ['s_cmp_lg_u32 s20, 0', f's_cbranch_scc1 {l[1]}', f'v_min_u32 v1, {46*P}, v1', f'buffer_load_dword {dst}, v1, s[24:27], 0 offen', f'buffer_load_dword {dst}, v1, s[24:27], 0 offen', f's_branch {l[4]}', f'{l[1]}:']
        for w, (pa, sa, pb, sb) in enumerate(((P_GATE, D*F*2, P_UP, D*F*2), (P_DOWN, D*F*2, P_WO, D*D*2), (P_OUT, S*D*2, P_PHI, 65536)), 1):
            if w < 3: o += [f's_cmp_lg_u32 s20, {w}', f's_cbranch_scc1 {l[w+1]}']
            for ptr, sz in ((pa, sa), (pb, sb)):
                o += [f's_mov_b32 s4, s{ptr}', f's_mov_b32 s5, s{ptr+1}', f's_mov_b32 s6, {sz}', f'v_min_u32 v3, {sz - 4}, v1', f'buffer_load_dword {dst}, v3, s[4:7], 0 offen']
            if w < 3: o += [f's_branch {l[4]}', f'{l[w+1]}:']
        o += [f'{l[4]}:']
        return o
    def phase_touch(self, dst, vt=1, CT=3):
        if not self.opts.get('ptouch', 0): return None
        self.nph = getattr(self, 'nph', 0) + 1
        k = self.nph
        return [f's_getpc_b64 s[90:91]\nLph{k}:\ns_lshr_b32 s18, s2, 3\ns_lshl_b32 s18, s18, 2\ns_add_u32 s18, s18, s20\ns_mul_i32 s18, s18, {CT*128}',
                f'v_min_u32 v{vt}, {CT-1}, v2', f'v_lshlrev_b32 v{vt}, 7, v{vt}', f'v_add_u32 v{vt}, s18, v{vt}', f's_mov_b32 s18, Lend-Lph{k}', f'v_min_u32 v{vt}, s18, v{vt}',
                f'global_load_dword {dst}, v{vt}, s[90:91]']
    def tag_write(self):
        sk = self.lab('tw')
        return [f's_or_b32 s18, s2, s20\ns_cmp_lg_u32 s18, 0\ns_cbranch_scc1 {sk}\ns_memrealtime s[90:91]\ns_waitcnt lgkmcnt(0)\ns_or_b32 s18, s90, 1\n'
                f'v_mov_b32 v1, 0\nv_mov_b32 v3, s18\ns_mov_b64 exec, 1\nglobal_store_dword v1, v3, s[82:83] sc1\ns_mov_b64 exec, -1\n{sk}:']
    def tag_load(self, vz, v):
        return [f'v_mov_b32 v{vz}, 0', f'global_load_dword v{v}, v{vz}, s[82:83] sc1']
    def tag_check(self, vz, v):
        ok = self.lab('tok'); pl = self.lab('tpl')
        return [f's_mov_b32 s39, {SPIN_LIMIT}', f'{pl}:', f'v_readfirstlane_b32 s94, v{v}', 's_nop 0', 's_cmp_lg_u32 s94, 0', f's_cbranch_scc1 {ok}',
                's_sleep 1', f'global_load_dword v{v}, v{vz}, s[82:83] sc1', 's_waitcnt vmcnt(0)',
                's_sub_u32 s39, s39, 1', 's_cmp_lg_u32 s39, 0', f's_cbranch_scc1 {pl}', f'{ok}:']
    def signal(self, layer, edge, expr):
        skip = self.lab('pub')
        return [f's_cmp_lg_u32 s20, 0', f's_cbranch_scc1 {skip}'] + expr.split('\n') + [
            's_lshl_b32 s18, s18, 8', 's_lshl_b32 s19, s19, 2', 's_add_u32 s18, s18, s19', f's_add_u32 s18, s18, {flag_off(layer, edge, 0)}',
            'v_mov_b32 v1, 0', 'v_mov_b32 v3, s94', 's_mov_b64 exec, 1', 'buffer_store_dword v3, v1, s[24:27], s18 offen sc1', 's_mov_b64 exec, -1', f'{skip}:']
    def publish(self, layer, edge, expr, pre=None, nbefore=99):
        e = self.e
        self.q.issue('@')
        if pre is not None:
            pre.emit_setup()
            for _ in range(nbefore): pre.one()
        i = self.q.q.index('@')
        n = len(self.q.q) - 1 - i
        self.q.q = self.q.q[i + 1:]
        e(f's_waitcnt vmcnt({min(n, 63)})')
        e('s_barrier')
        e.ext(self.signal(layer, edge, expr))
        if pre is not None:
            while pre.dmas: pre.one()
    def wait(self, layer, edge, group_expr, n, nshard=1):
        e = self.e
        bar = self.lab('wbar'); poll = self.lab('poll'); got = self.lab('got')
        e(f's_cmp_lg_u32 s20, 0\ns_cbranch_scc1 {bar}')
        e(group_expr)
        assert n == 16
        e(f'''
        s_lshl_b32 s18, s18, 8
        s_add_u32 s18, s18, {flag_off(layer, edge, 0)}
        v_lshlrev_b32 v1, 2, v30
        v_lshl_add_u32 v1, v31, 8, v1
        s_mov_b32 exec_lo, {(1 << (16*nshard)) - 1:#x}
        s_mov_b32 exec_hi, 0
        s_mov_b32 s39, {SPIN_LIMIT}
        ''')
        if self.opts.get('poll2', 0):
            e(f'''
            buffer_load_dword v254, v1, s[24:27], s18 offen sc1
            {poll}:
            s_sleep {self.opts.get('psl', 2)}
            buffer_load_dword v255, v1, s[24:27], s18 offen sc1
            s_waitcnt vmcnt(1)
            v_cmp_ne_u32 vcc, s94, v254
            s_nop 1
            s_cmp_eq_u64 vcc, 0
            s_cbranch_scc1 {got}
            s_sleep {self.opts.get('psl', 2)}
            buffer_load_dword v254, v1, s[24:27], s18 offen sc1
            s_waitcnt vmcnt(1)
            v_cmp_ne_u32 vcc, s94, v255
            s_nop 1
            s_cmp_eq_u64 vcc, 0
            s_cbranch_scc1 {got}
            s_sub_u32 s39, s39, 1
            s_cmp_lg_u32 s39, 0
            s_cbranch_scc1 {poll}
            ''')
        else:
            e(f'''
        {poll}:
        buffer_load_dword v3, v1, s[24:27], s18 offen sc1
        s_waitcnt vmcnt(0)
        v_cmp_ne_u32 vcc, s94, v3
        s_nop 1
        s_cmp_eq_u64 vcc, 0
        s_cbranch_scc1 {got}
        s_sleep 1
        s_sub_u32 s39, s39, 1
        s_cmp_lg_u32 s39, 0
        s_cbranch_scc1 {poll}
            ''')
        e(f'''
        {got}:
        s_mov_b64 exec, -1
        {bar}:
        s_barrier
        ''')
    def soft_load(self, soff, voff, v):
        return [f'buffer_load_dword v{v}, v{voff}, s[24:27], s{soff} offen sc1']
    def soft_check(self, soff, voff, v):
        ok = self.lab('sok'); pl = self.lab('spl')
        return [f's_mov_b32 s39, {SPIN_LIMIT}', f'{pl}:', f'v_cmp_ne_u32 s[90:91], s94, v{v}', 's_nop 1', 's_cmp_eq_u64 s[90:91], 0', f's_cbranch_scc1 {ok}',
                's_sleep 1', f'buffer_load_dword v{v}, v{voff}, s[24:27], s{soff} offen sc1', 's_waitcnt vmcnt(0)',
                's_sub_u32 s39, s39, 1', 's_cmp_lg_u32 s39, 0', f's_cbranch_scc1 {pl}', f'{ok}:']
    def finish(self, vg=256, ag=256):
        e = self.e
        e(f'Lend:')
        e('s_endpgm')
        return kernel_text(self.name, hazard_pass(e.L), vg, ag, sgpr=100)

def srd(e, base, ptr=None, ws_off=None, size=None):
    if ptr is not None: e(f's_mov_b32 s{base}, s{ptr}\ns_mov_b32 s{base+1}, s{ptr+1}')
    else: e(f's_add_u32 s{base}, s16, {ws_off}\ns_addc_u32 s{base+1}, s17, 0')
    e(f's_mov_b32 s{base+2}, {size}')

def x_dma_offsets(e, v, row_sreg, ld, extra_sreg=None, blocked=False):
    if not blocked:
        e(f'''
        v_lshrrev_b32 v3, 3, v2
        v_add_u32 v3, s{row_sreg}, v3
        v_mul_u32_u24 v3, {ld}, v3
        ''')
        if extra_sreg is not None: e(f'v_add_u32 v3, s{extra_sreg}, v3')
        e(f'''
        v_and_b32 v1, 7, v2
        v_xor_b32 v1, v1, v31
        v_lshl_add_u32 v{v}, v1, 4, v3
        v_xor_b32 v1, 4, v1
        v_lshl_add_u32 v{v+1}, v1, 4, v3
        v_add_u32 v{v+1}, {8*ld - 1024}, v{v+1}
        v_add_u32 v{v+2}, {16*ld - 2048}, v{v}
        v_add_u32 v{v+3}, {16*ld - 2048}, v{v+1}
        ''')
    else:
        e(f'''
        s_mul_i32 s19, s{row_sreg}, {ld}
        v_lshlrev_b32 v{v}, 4, v2
        v_add_u32 v{v}, s19, v{v}
        ''')
        if extra_sreg is not None: e(f'v_add_u32 v{v}, s{extra_sreg}, v{v}')
        e(f'v_add_u32 v{v+1}, {16*ld - 2048}, v{v}')
BLK_BIAS = 0


def w_dma_offsets(e, v, n, krow_sreg, ld, col_sreg):
    e(f'''
    v_lshrrev_b32 v3, 3, v2
    v_add_u32 v3, s{krow_sreg}, v3
    v_mul_u32_u24 v3, {ld}, v3
    v_add_u32 v3, s{col_sreg}, v3
    v_and_b32 v1, 1, v31
    v_lshlrev_b32 v1, 1, v1
    v_and_b32 v0, 7, v2
    v_xor_b32 v1, v1, v0
    v_lshl_add_u32 v{v}, v1, 4, v3
    v_xor_b32 v1, 4, v1
    v_lshl_add_u32 v{v+1}, v1, 4, v3
    v_add_u32 v{v+1}, {8*ld - 1024}, v{v+1}
    ''')
    if n == 4:
        e(f'v_add_u32 v{v+2}, {16*ld - 2048}, v{v}\nv_add_u32 v{v+3}, {16*ld - 2048}, v{v+1}')

def x_read_addr_f(e, v, base_sreg):
    e(f'v_lshlrev_b32 v{v}, 4, v2\nv_add_u32 v{v}, s{base_sreg}, v{v}\nv_add_u32 v{v+1}, 1024, v{v}')

def frag_store_addr(e, v, base_sreg):
    e(f'''
    v_lshlrev_b32 v{v}, 4, v30
    v_and_b32 v1, 1, v31
    v_lshl_add_u32 v{v}, v1, 9, v{v}
    v_lshrrev_b32 v1, 1, v31
    v_lshl_add_u32 v{v}, v1, 8, v{v}
    v_add_u32 v{v}, s{base_sreg}, v{v}
    ''')

def x_read_addr(e, v, base_sreg):
    e(f'''
    v_lshrrev_b32 v1, 1, v30
    v_lshlrev_b32 v3, 7, v30
    v_add_u32 v3, s{base_sreg}, v3
    v_xor_b32 v{v}, v31, v1
    v_xor_b32 v{v+1}, 4, v{v}
    v_lshl_add_u32 v{v}, v{v}, 4, v3
    v_lshl_add_u32 v{v+1}, v{v+1}, 4, v3
    ''')

def w_read_addr(e, v, nbs, base_sreg, nb_xor_sreg=None):
    e(f'''
    v_bfe_u32 v1, v2, 2, 2
    v_lshl_add_u32 v3, v31, 3, v1
    v_lshlrev_b32 v3, 7, v3
    v_add_u32 v3, s{base_sreg}, v3
    v_and_b32 v0, 1, v2
    v_lshl_add_u32 v3, v0, 3, v3
    v_and_b32 v1, 2, v1
    v_and_b32 v0, 1, v31
    v_lshl_add_u32 v1, v0, 2, v1
    v_bfe_u32 v0, v2, 1, 1
    v_or_b32 v1, v1, v0
    ''')
    if nb_xor_sreg is not None: e(f'v_xor_b32 v1, s{nb_xor_sreg}, v1')
    for i, nb in enumerate(nbs):
        e(f'v_xor_b32 v0, {2*nb}, v1')
        e(f'v_lshl_add_u32 v{v+i}, v0, 4, v3')

def stats_loads(dst_fmt, voff, soff):
    return [[f'buffer_load_dwordx4 {dst_fmt(i*4)}, v{voff}, s[24:27], s{soff} offen offset:{i*256} sc1'] for i in range(8)]

class Pre:
    def __init__(self, m, fn):
        self.m = m; self.setup = []; self.dmas = []
        if fn is None: return
        keep_e, keep_q = m.e, m.q
        cap = Asm(); m.e = cap
        class Q:
            def __init__(s): s.marks = []
            def issue(s, tag): s.marks.append((len(cap.L), tag))
        m.q = Q()
        fn()
        marks = m.q.marks
        m.e, m.q = keep_e, keep_q
        first = next(i for i, l in enumerate(cap.L) if 'm0' in l)
        self.setup = cap.L[:first]
        prev = first
        for pos, tag in marks:
            self.dmas.append((cap.L[prev:pos], tag)); prev = pos
    def emit_setup(self):
        self.m.e.ext(self.setup); self.setup = []
    def emit_all(self):
        self.emit_setup()
        while self.dmas: self.one()
    def one(self):
        if self.dmas:
            ins, tag = self.dmas.pop(0)
            self.m.e.ext(ins); self.m.q.issue(tag)
    def weave(self, lines, every):
        for i, l in enumerate(lines):
            self.m.e(l)
            if i % every == every - 1: self.one()
        while self.dmas: self.one()
```

```python
from asmlib import *
from common import *
from mega import *

XT = 16384; WT = 8192; STAGE = 2 * XT + 2 * WT; NS = 3
def acc(nb, tb): return 32 + (nb * 4 + tb) * 4
def xfrag(p, tb): return 96 + p * 32 + tb * 4
def wfrag(p, nb): return 96 + p * 32 + 16 + nb * 4
V_RES = 160; V_TMP = 176
V_XOFF = 4; V_WOFF = 8; V_XRD = 12; V_WRD = 14
V_ST = 18; V_SST = 19; V_EX = 20; V_EXR = 21; V_RO = 22

def dma_x(half):
    g = []
    for j in range(4):
        ins = [f'buffer_load_dwordx4 v{V_XOFF+j//2}, s[8:11], s{30+half} offen offset:{j*1024} sc1 lds']
        if j == 0: ins = [f's_add_u32 m0, s34, s{40 if half == 0 else 52}', 's_nop 0'] + ins
        if j == 3 and half == 1: ins += [f's_add_u32 s34, s34, {STAGE}', f's_cmp_eq_u32 s34, {STAGE*NS}', 's_cselect_b32 s34, 0, s34']
        if j == 3: ins += [f's_add_u32 s{30+half}, s{30+half}, 4096']
        g.append(ins)
    return g
def dma_w():
    g = []
    for j in range(4):
        ins = [f'buffer_load_dwordx4 v{V_WOFF+j}, s[12:15], s32 offen offset:{j*1024} lds']
        if j == 0: ins = ['s_add_u32 m0, s35, s41', 's_nop 0'] + ins
        if j == 3: ins += [f's_add_u32 s35, s35, {STAGE}', f's_cmp_eq_u32 s35, {STAGE*NS}', 's_cselect_b32 s35, 0, s35']
        if j == 3: ins += [f's_add_u32 s32, s32, {128*2048}']
        g.append(ins)
    return g

def tail_addr(e, res_blk, out_blk, nt64):
    e(f'''
    s_mov_b32 s60, {16*2048}
    s_lshl_b32 s61, s18, 11
    ''')
    for blk, v, kind in ((res_blk, V_RO, 'r'), (out_blk, V_ST, 'o')):
        if blk:
            e(f's_lshl_b32 s19, {nt64}, 11\ns_add_u32 s19, s19, s61\nv_lshlrev_b32 v{v}, 4, v30')
            if kind == 'r': e(f'v_and_b32 v1, 1, v31\nv_lshl_add_u32 v{v}, v1, 3, v{v}\nv_lshrrev_b32 v1, 1, v31\nv_lshl_add_u32 v{v}, v1, 8, v{v}')
            else: e(f'v_and_b32 v1, 1, v31\nv_lshl_add_u32 v{v}, v1, 9, v{v}\nv_lshrrev_b32 v1, 1, v31\nv_lshl_add_u32 v{v}, v1, 8, v{v}')
        else:
            e(f's_lshl_b32 s19, {nt64}, 7\ns_add_u32 s19, s19, s61\ns_mov_b32 s93, s19\nv_lshlrev_b32 v{v}, 11, v30')
            if kind == 'r': e(f'v_lshl_add_u32 v{v}, v31, 3, v{v}')
            else: e(f'v_and_b32 v1, 1, v31\nv_lshl_add_u32 v{v}, v1, 5, v{v}\nv_lshrrev_b32 v1, 1, v31\nv_lshl_add_u32 v{v}, v1, 4, v{v}')
        e(f'v_add_u32 v{v}, s19, v{v}')
    e(f'''
    s_lshl_b32 s18, s18, 7
    s_lshr_b32 s19, {nt64}, 1
    s_lshl_b32 s19, s19, 8
    s_add_u32 s18, s18, s19
    s_and_b32 s19, {nt64}, 1
    s_lshl_b32 s19, s19, 3
    s_add_u32 s18, s18, s19
    v_lshlrev_b32 v{V_SST}, 4, v30
    v_add_u32 v{V_SST}, s18, v{V_SST}
    ''')

def res_loads(res):
    L = []
    for i in range(2):
        for nb in range(4):
            r = V_RES + (i * 4 + nb) * 2
            L.append([f'buffer_load_dwordx2 v[{r}:{r+1}], v{V_RO}, s[56:59], {"0" if i == 0 else "s60"} offen offset:{nb*(512 if res[0] == "ws" else 32)}' + (' sc1' if res[0] == 'ws' else '')])
    return L

def unpack_res(e):
    for i in range(2):
        for nb in range(4):
            r = V_RES + (i*4+nb)*2; tm = V_TMP + (i*4+nb)*4
            e(f'v_lshlrev_b32 v{tm}, 16, v{r}')
            e(f'v_and_b32 v{tm+1}, 0xffff0000, v{r}')
            e(f'v_lshlrev_b32 v{tm+2}, 16, v{r+1}')
            e(f'v_and_b32 v{tm+3}, 0xffff0000, v{r+1}')

OUT_AUX = ['']; OUT_LDS = [1]
def finalize(e, out, st_off):
    if out[0] == 'ptr': srd(e, 56, ptr=out[1], size=S*D*2)
    else: srd(e, 56, ws_off=out[1], size=S*D*2)
    for i in range(2):
        for nb in range(4):
            r = 96 + (i*4+nb)*4; tm = V_TMP + (i*4+nb)*4
            e(f'v_pk_add_f32 v[{tm}:{tm+1}], v[{tm}:{tm+1}], v[{r}:{r+1}]')
            e(f'v_pk_add_f32 v[{tm+2}:{tm+3}], v[{tm+2}:{tm+3}], v[{r+2}:{r+3}]')
    for i in range(2):
        for nb in range(4):
            tm = V_TMP + (i*4+nb)*4; o = 32 + i*8 + nb*2
            e(f'v_cvt_pk_bf16_f32 v{o}, v{tm}, v{tm+1}')
            e(f'v_cvt_pk_bf16_f32 v{o+1}, v{tm+2}, v{tm+3}')
    if st_off is not None:
        for d in range(16): e(f'v_mov_b32 v{64+d}, v{32+d}')
    blk = out[0] == 'ws'
    if not blk and OUT_LDS[0]:
        e(f'''
        s_mul_i32 s18, s20, 4608
        v_mul_u32_u24 v1, 144, v30
        v_and_b32 v3, 1, v31
        v_lshl_add_u32 v1, v3, 5, v1
        v_lshrrev_b32 v3, 1, v31
        v_lshl_add_u32 v1, v3, 4, v1
        v_add_u32 v1, s18, v1
        v_lshrrev_b32 v3, 3, v2
        v_mul_u32_u24 v0, 144, v3
        v_and_b32 v28, 7, v2
        v_lshl_add_u32 v0, v28, 4, v0
        v_add_u32 v0, s18, v0
        v_lshlrev_b32 v3, 11, v3
        v_lshl_add_u32 v3, v28, 4, v3
        v_add_u32 v3, s93, v3
        ''')
        for i in range(2):
            for pr in range(2):
                o = 32 + i*8 + pr*4
                e(f'v_permlane16_swap_b32 v{o}, v{o+2}')
                e(f'v_permlane16_swap_b32 v{o+1}, v{o+3}')
                e(f'ds_write_b128 v1, v[{o}:{o+3}] offset:{i*16*144 + pr*64}')
        e('s_waitcnt lgkmcnt(0)')
        for k in range(4): e(f'ds_read_b128 v[{64+4*k}:{67+4*k}], v0 offset:{k*8*144}')
        for k in range(4):
            e(f's_mov_b32 s19, {k*8*2048}')
            e(f's_waitcnt lgkmcnt({3-k})')
            e(f'buffer_store_dwordx4 v[{64+4*k}:{67+4*k}], v3, s[56:59], s19 offen{OUT_AUX[0]}')
        return
    for i in range(2):
        for pr in range(2):
            o = 32 + i*8 + pr*4
            e(f'v_permlane16_swap_b32 v{o}, v{o+2}')
            e(f'v_permlane16_swap_b32 v{o+1}, v{o+3}')
            e(f'buffer_store_dwordx4 v[{o}:{o+3}], v{V_ST}, s[56:59], {"0" if i == 0 else "s60"} offen offset:{pr*(1024 if blk else 64)}' + (' sc1' if blk else OUT_AUX[0]))
    if st_off is not None:
        e('s_mov_b32 s18, 0x3f803f80')
        for i in range(2):
            e(f'v_mov_b32 v{48+2*i}, 0'); e(f'v_mov_b32 v{49+2*i}, 0')
        for d in range(8):
            for i in range(2):
                o = 64 + i*8 + d
                e(f'v_dot2_f32_bf16 v{48+2*i}, v{o}, s18, v{48+2*i}')
                e(f'v_dot2_f32_bf16 v{49+2*i}, v{o}, v{o}, v{49+2*i}')
        e('s_nop 2')
        for sw in ('v_permlane32_swap_b32', 'v_permlane16_swap_b32'):
            for j in range(4): e(f'v_mov_b32 v{52+j}, v{48+j}')
            for j in range(4): e(f'{sw} v{48+j}, v{52+j}')
            for j in range(2): e(f'v_pk_add_f32 v[{48+2*j}:{49+2*j}], v[{48+2*j}:{49+2*j}], v[{52+2*j}:{53+2*j}]')
        e(f's_mov_b32 s18, {st_off}')
        e('s_mov_b64 exec, 0xffff')
        e(f'buffer_store_dwordx2 v[48:49], v{V_SST}, s[24:27], s18 offen sc1')
        e(f'buffer_store_dwordx2 v[50:51], v{V_SST}, s[24:27], s18 offen offset:2048 sc1')
        e('s_mov_b64 exec, -1')

def pre_w(m, tag, K, wptr, ntiles=3):
    e = m.e
    srd(e, 12, ptr=wptr, size=K*D*2)
    e(f's_lshl_b32 s18, s20, 5\ns_lshl_b32 s19, s{S_CI}, 7')
    w_dma_offsets(e, V_WOFF, 4, 18, 2048, 19)
    e(f'''
    s_mov_b32 s32, 0
    s_mov_b32 s35, 0
    s_lshl_b32 s41, s20, 12
    s_add_u32 s41, s41, {2*XT}
    ''')
    for u in range(ntiles):
        for ins in dma_w(): e.ext(ins); m.q.issue(f'{tag}T{u}')
    m.pd_w = ntiles

def run(m, tag, K, a_off, res, out, st_off, wait_fn, pub_fn, next_pre, opts):
    e = m.e; q = m.q
    LDA = K * 2; NBODY = K // 128; NSTEP = 2 * NBODY
    srd(e, 8, ws_off=a_off - BLK_BIAS, size=S*LDA + BLK_BIAS)
    if res[0] == 'ptr': srd(e, 56, ptr=res[1], size=S*D*2)
    else: srd(e, 56, ws_off=res[1], size=S*D*2)
    e(f'''
    s_lshl_b32 s23, s{S_MT}, 7
    s_and_b32 s28, s20, 1            ; wm
    s_lshr_b32 s29, s20, 1           ; wk
    s_lshl_b32 s18, s28, 6
    s_add_u32 s33, s23, s18
    s_lshl_b32 s18, s29, 11
    ''')
    x_dma_offsets(e, V_XOFF, 33, LDA, 18, blocked=True)
    e(f'''
    s_mov_b32 s30, 0
    s_mov_b32 s31, {32*LDA}
    s_mov_b32 s34, 0
    s_lshl_b32 s40, s20, 13
    s_add_u32 s52, s40, 4096
    s_lshl_b32 s18, s29, 5
    s_add_u32 s18, s18, s33
    ''')
    tail_addr(e, res[0] == 'ws', out[0] == 'ws', f's{S_CI}')
    e(f'''
    ''')
    x_read_addr_f(e, V_XRD, 40)
    e(f's_lshl_b32 s18, s29, 13\ns_add_u32 s18, s18, {2*XT}')
    w_read_addr(e, V_WRD, [0, 1, 2, 3], 18)
    e(f'''
    v_lshlrev_b32 v{V_EX}, 4, v2
    v_add_u32 v{V_EX}, s40, v{V_EX}
    v_xor_b32 v{V_EXR}, {2 << 13}, v{V_EX}
    s_mov_b32 s36, 0
    s_mov_b32 s42, 0
    s_mov_b32 s50, {STAGE}
    s_mov_b32 s51, {(-(NS-1)*STAGE) & 0xffffffff:#x}
    ''')
    m.stamp(tag + ' wait')
    wait_fn()
    m.stamp(tag + ' go')
    flat = []
    for u in range(NBODY):
        al = 2*(u - NS) + 1
        flat += [(ins, f'{tag}T{u}', al) for ins in dma_x(0) + dma_x(1)]
        if u >= m.pd_w: flat += [(ins, f'{tag}T{u}', al) for ins in dma_w()]
    def take(step, n):
        o = []
        while flat and len(o) < n and flat[0][2] <= step: o.append(flat.pop(0))
        return o
    n0 = sum(1 for f in flat if f[1] in (f'{tag}T0', f'{tag}T1'))
    for ins, tg, _ in take(-1, n0): e.ext(ins); q.issue(tg)
    small = res_loads(res)
    def mfma(nb, tb, p, c=None):
        a = acc(nb, tb)
        cc = f'v[{a}:{a+3}]' if c is None else c
        return f'v_mfma_f32_16x16x32_bf16 v[{a}:{a+3}], v[{wfrag(p,nb)}:{wfrag(p,nb)+3}], v[{xfrag(p,tb)}:{xfrag(p,tb)+3}], {cc}'
    def reads(p, s):
        x = lambda tb: f'ds_read_b128 v[{xfrag(p,tb)}:{xfrag(p,tb)+3}], v{V_XRD+s} offset:{tb*2048}'
        w = lambda nb, h: f'ds_read_b64_tr_b16 v[{wfrag(p,nb)+2*h}:{wfrag(p,nb)+2*h+1}], v{V_WRD+nb} offset:{(32*s+4*h)*128}'
        g = [x(0), w(0, 0), w(0, 1), x(1), x(2), x(3)]
        for nb in range(1, 4): g += [w(nb, 0), w(nb, 1)]
        return g
    needs = [max(2 if tb == 0 else 2 + tb, 5 + 2*b if b else 0) for b in range(4) for tb in range(4)]
    pt = m.phase_touch('v255') if True else None
    if pt: e.ext(pt); q.issue('pt')
    n = q.wait_for({f'{tag}T0'})
    e(f's_waitcnt vmcnt({n})')
    e('s_barrier')
    m.stamp(tag + ' main')
    e.ext(reads(0, 0))
    bodies = []
    for u in range(NBODY):
        B = []
        for s in range(2):
            t = 2 * u + s; p = s
            last = (t == NSTEP - 1)
            ms = [mfma(nb, tb, p, '0' if t == 0 else None) for nb in range(4) for tb in range(4)]
            pre = []; bar = []; rd = []
            if not last:
                if s == 1:
                    pre = [f's_add_u32 s36, s36, {STAGE}', f's_cmp_eq_u32 s36, {STAGE*NS}', 's_cselect_b32 s42, s51, s50',
                           's_cselect_b32 s36, 0, s36', f'v_add_u32 v{V_XRD}, s42, v{V_XRD}'] + \
                          [f'v_add_u32 v{V_WRD+i}, s42, v{V_WRD+i}' for i in range(4)]
                    n = q.wait_for({f'{tag}T{u+1}'})
                    bar = [f's_waitcnt vmcnt({n})', 's_barrier']
                else:
                    pre = [f'v_add_u32 v{V_XRD+1}, s42, v{V_XRD+1}']
                rd = reads(p ^ 1, s ^ 1)
            dm = []
            for ins, tg, _ in take(t, 8 if (s == 1 or t == 0) else 4): dm.append(ins); q.issue(tg)
            if not flat and not dm and small:
                for ins in small[:4]: dm.append(ins); q.issue('res')
                small = small[4:]
            B += build_step(ms, needs, 12, pre, bar, rd, dm, [], nb=(3 if s == 1 else 1))
        bodies.append(B)
    assert not flat and not small
    e.ext(loopify(bodies, m.lab(tag + 'L'), 38, m.opts.get('unroll', 1)))
    e('s_barrier')
    m.stamp(tag + ' epi')
    e('s_nop 7')
    l0 = m.lab('wk0'); lx = m.lab('ex')
    e(f's_cmp_eq_u32 s29, 0\ns_cbranch_scc1 {l0}')
    nres = q.wait_for({'res'})
    def exch(wk):
        keep = [2*wk, 2*wk+1]; send = [2 - 2*wk, 3 - 2*wk]
        for i, tb in enumerate(send):
            for nb in range(4):
                a = acc(nb, tb)
                e(f'ds_write_b128 v{V_EX}, v[{a}:{a+3}] offset:{(i*4+nb)*1024}')
        e(f's_waitcnt vmcnt({nres})')
        unpack_res(e)
        e('s_waitcnt lgkmcnt(0)')
        e('s_barrier')
        for i in range(2):
            for nb in range(4):
                r = 96 + (i*4+nb)*4
                e(f'ds_read_b128 v[{r}:{r+3}], v{V_EXR} offset:{(i*4+nb)*1024}')
        for i, tb in enumerate(keep):
            for nb in range(4):
                a = acc(nb, tb); tm = V_TMP + (i*4+nb)*4
                e(f'v_pk_add_f32 v[{tm}:{tm+1}], v[{tm}:{tm+1}], v[{a}:{a+1}]')
                e(f'v_pk_add_f32 v[{tm+2}:{tm+3}], v[{tm+2}:{tm+3}], v[{a+2}:{a+3}]')
    exch(1)
    e(f's_branch {lx}\n{l0}:')
    exch(0)
    e(f'{lx}:')
    e('s_waitcnt lgkmcnt(0)')
    finalize(e, out, st_off)
    m.stamp(tag + ' st')
    pub_fn(Pre(m, next_pre))
    m.stamp(tag + ' pub')
```
